```python
import torch

def _softmax(x, axis=-1):
    return torch.softmax(x, dim=axis)
def _gelu(x):
    return torch.nn.functional.gelu(x, approximate="tanh")
def _silu(x):
    return torch.nn.functional.silu(x)
def _sigmoid(x):
    return torch.sigmoid(x)
def _layernorm(x, axis=-1, eps=1e-5):
    m = x.mean(dim=axis, keepdim=True)
    v = x.var(dim=axis, keepdim=True, unbiased=False)
    return (x - m) / torch.sqrt(v + eps)
def _scatter_add(tgt, idx, src, axis=0):
    return tgt.clone().index_add_(axis, idx, src)
def _segment_sum(src, seg, n):
    out = torch.zeros((n,) + src.shape[1:], dtype=src.dtype)
    return out.index_add_(0, seg, src)
def _pad(x, pw):
    flat = tuple(v for pair in reversed(pw) for v in pair)
    return torch.nn.functional.pad(x, flat)

kernel_name = 'gated_mix__ssm_conv_s4d__geglu_ffn__prompt'

def setup_inputs():

    _w = (lambda a: (lambda t: t.to(torch.bfloat16) if t.is_floating_point() else t)(torch.as_tensor(a)))
    def _A_setup():
        Bsz, L, D, N = 1, 2048, 576, 128
        return {
            "u": _w((lambda *s: torch.randn(*s, dtype=torch.bfloat16) * 0.05)(Bsz, L, D)),
            "log_A_real": _w((lambda *s: torch.randn(*s, dtype=torch.bfloat16) * 6.4)(D, N) * 0.5),
            "A_imag": _w((lambda *s: torch.randn(*s, dtype=torch.bfloat16) * 0.05)(D, N) * 3.14),
            "C_real": _w((lambda *s: torch.randn(*s, dtype=torch.bfloat16) * 0.05)(D, N) / N ** 0.5),
            "C_imag": _w((lambda *s: torch.randn(*s, dtype=torch.bfloat16) * 0.05)(D, N) / N ** 0.5),
            "log_dt": _w((lambda *s: torch.randn(*s, dtype=torch.bfloat16) * 0.05)(D) * 0.5 - 4.0),
            "D_skip": _w((lambda *s: torch.randn(*s, dtype=torch.bfloat16) * 0.05)(D)),
        }
    _A_in = _A_setup()

    def _B_setup():
        B, S, D, F = 1, 2048, 576, 4608
        return {
            "x": _w((lambda *s: torch.randn(*s, dtype=torch.bfloat16) * 0.05)(B, S, D)),
            "w_gate": _w((lambda *s: torch.randn(*s, dtype=torch.bfloat16) * 0.05)(D, F)),
            "w_up": _w((lambda *s: torch.randn(*s, dtype=torch.bfloat16) * 0.05)(D, F)),
            "w_down": _w((lambda *s: torch.randn(*s, dtype=torch.bfloat16) * 0.05)(F, D)),
        }
    _B_in = _B_setup()

    return {
        "A_u": _A_in["u"],
        "A_log_A_real": _A_in["log_A_real"],
        "A_A_imag": _A_in["A_imag"],
        "A_C_real": _A_in["C_real"],
        "A_C_imag": _A_in["C_imag"],
        "A_log_dt": _A_in["log_dt"],
        "A_D_skip": _A_in["D_skip"],
        "B_x": _B_in["x"],
        "B_w_gate": _B_in["w_gate"],
        "B_w_up": _B_in["w_up"],
        "B_w_down": _B_in["w_down"],
        "gate_w": _w((lambda *s: torch.randn(*s, dtype=torch.bfloat16) * 0.05)(576) * 16.0),
    }

def reference(A_u, A_log_A_real, A_A_imag, A_C_real, A_C_imag, A_log_dt, A_D_skip, B_x, B_w_gate, B_w_up, B_w_down, gate_w):
    def _A_ref(u, log_A_real, A_imag, C_real, C_imag, log_dt, D_skip):
        L = u.shape[1]
        dt = torch.exp(log_dt)
        A = -torch.exp(log_A_real) + 1j * A_imag
        C = (C_real + 1j * C_imag) * dt[:, None]
        pos = (lambda x, dt: x.to(dt))(torch.arange(L), log_dt.dtype)
        P = torch.exp((A * dt[:, None])[:, :, None] * pos[None, None, :])
        K = 2.0 * torch.einsum("dn,dnl->dl", C, P).real
        L2 = 2 * L
        u_t = (lambda x, *d: x.permute(*d))(u, 0, 2, 1)
        Kf = (lambda x, *a, **k: torch.fft.rfft(x.float(), *a, **k))(K, L2)
        Uf = (lambda x, *a, **k: torch.fft.rfft(x.float(), *a, **k))(u_t, L2)
        y = (lambda x, *a, **k: torch.fft.irfft(x, *a, **k).to(torch.bfloat16))(Uf * Kf[None, :, :], L2)[:, :, :L]
        y = (lambda x, *d: x.permute(*d))(y, 0, 2, 1)
        return y + u * D_skip[None, None, :]

    def _B_ref(x, w_gate, w_up, w_down):
        return (_gelu(x @ w_gate) * (x @ w_up)) @ w_down

    x = A_u
    g = _sigmoid((x * gate_w).sum(-1, keepdims=True))
    a = _A_ref(x, A_log_A_real, A_A_imag, A_C_real, A_C_imag, A_log_dt, A_D_skip)
    b = _B_ref(x, B_w_gate, B_w_up, B_w_down)
    return g * a + (1 - g) * b
```

```python
NAME = "gated_mix__ssm_conv_s4d__geglu_ffn__prompt"

HEADER_COMMENT = """; Kernarg layout (120 bytes): 0 A_u | 8 log_A_real | 16 A_imag | 24 C_real | 32 C_imag | 40 log_dt | 48 D_skip
"""

def v(i, n=1):
    return f"v{i}" if n == 1 else f"v[{i}:{i+n-1}]"
def a(i, n=1):
    return f"a{i}" if n == 1 else f"a[{i}:{i+n-1}]"
def s(i, n=1):
    return f"s{i}" if n == 1 else f"s[{i}:{i+n-1}]"

class K:
    def __init__(self, name, grid, block, lds, vgpr, agpr=0, sgpr=102, wg_y=False):
        self.name = name; self.grid = grid; self.block = block; self.lds = lds
        self.vgpr = vgpr; self.agpr = agpr; self.sgpr = sgpr; self.wg_y = wg_y
        self.lines = []
        self.nlab = 0
    def __call__(self, text):
        for l in text.strip("\n").split("\n"):
            l = l.strip()
            if not l: continue
            if l.endswith(":") : self.lines.append(l)
            else: self.lines.append("    " + l)
    def label(self, prefix="L"):
        self.nlab += 1
        return f"{self.name}_{prefix}{self.nlab}"
    def launch_line(self):
        g = self.grid; b = self.block
        return f"; @launch kernel={self.name} grid=({g[0]},{g[1]},{g[2]}) block=({b[0]},{b[1]},{b[2]}) lds={self.lds}"
    def text(self):
        out = [f".globl {self.name}", ".p2align 8", f".type {self.name},@function", f"{self.name}:"]
        out += self.lines
        return "\n".join(out) + "\n"
    def desc(self):
        acc = (self.vgpr + 3)//4*4
        nfv = acc + self.agpr if self.agpr else self.vgpr
        o = [".p2align 6", f".amdhsa_kernel {self.name}",
             f"  .amdhsa_next_free_vgpr {nfv}", f"  .amdhsa_next_free_sgpr {self.sgpr}",
             f"  .amdhsa_accum_offset {acc}", "  .amdhsa_group_segment_fixed_size 0",
             "  .amdhsa_kernarg_size 120", "  .amdhsa_user_sgpr_count 2",
             "  .amdhsa_user_sgpr_kernarg_segment_ptr 1", "  .amdhsa_system_sgpr_workgroup_id_x 1"]
        if self.wg_y: o.append("  .amdhsa_system_sgpr_workgroup_id_y 1")
        o += ["  .amdhsa_float_denorm_mode_32 3", "  .amdhsa_float_denorm_mode_16_64 3"]
        o.append(".end_amdhsa_kernel")
        return "\n".join(o) + "\n"

def build(kernels, launches=None):
    launches = launches or kernels
    out = HEADER_COMMENT
    for k in launches: out += k.launch_line() + "\n"
    out += '.amdgcn_target "amdgcn-amd-amdhsa--gfx950"\n.text\n'
    for k in kernels: out += k.text()
    out += '.section .rodata,"a"\n'
    for k in kernels: out += k.desc()
    return out

def srd(k, dst, base, nbytes):
    k(f"s_mov_b32 s{dst}, s{base}")
    k(f"s_and_b32 s{dst+1}, s{base+1}, 0xffff")
    k(f"s_mov_b32 s{dst+2}, {nbytes}")
    k(f"s_mov_b32 s{dst+3}, 0x00020000")

def f2u(x):
    import struct
    return struct.unpack("<I", struct.pack("<f", x))[0]
def fimm(x):
    return f"0x{f2u(x):08x}"
```

```python
import sys, math
sys.path.insert(0, "gen")
from asmlib import *
LOG2E = 1.4426950408889634
WS_H = 0; WS_KT = 32<<20; WS_A = 48<<20
WS_BYTES = 268435456

def rne_bf16(k, dst, src):
    k(f"v_cvt_pk_bf16_f32 v{dst}, v{src}, v{src}")
    k(f"v_lshlrev_b32 v{dst}, 16, v{dst}")

def k_h():
    k = K("nh_kernel", (18,256,1), (256,1,1), 0, 64, wg_y=True)
    k("s_cmp_ge_u32 s2, 18")
    L = k.label("end")
    k(f"s_cbranch_scc1 {L}")
    k("s_load_dwordx2 s[4:5], s[0:1], 0")
    k("s_load_dwordx4 s[8:11], s[0:1], 64")
    k("s_load_dwordx2 s[6:7], s[0:1], 112")
    k("s_waitcnt lgkmcnt(0)")
    srd(k, 12, 8, 576*4608*2)
    srd(k, 16, 10, 576*4608*2)
    srd(k, 20, 6, WS_BYTES)
    k("s_lshl_b32 s24, s2, 8")
    k("v_add_u32 v1, s24, v0")
    k("v_lshlrev_b32 v1, 1, v1")
    k("s_mul_i32 s25, s3, 9216")
    k("s_add_u32 s4, s4, s25")
    k("s_addc_u32 s5, s5, 0")
    for i in range(16): k(f"v_mov_b32 v{2+i}, 0")
    k("s_mov_b32 s26, 0")
    k("s_mov_b32 s27, 0")
    Lc = k.label("chunk")
    k(f"{Lc}:")
    k("s_lshl_b32 s28, s26, 5")
    for t in range(8):
        k(f"s_add_u32 s29, s28, {t*1152}")
        k(f"s_load_dwordx8 s[{32+8*t}:{39+8*t}], s[4:5], s29")
    for kk in range(16):
        k(f"s_add_u32 s29, s27, {kk*9216}")
        k(f"buffer_load_ushort v{20+kk}, v1, s[12:15], s29 offen")
        k(f"buffer_load_ushort v{36+kk}, v1, s[16:19], s29 offen")
    k("s_waitcnt vmcnt(0) lgkmcnt(0)")
    for kk in range(16):
        k(f"v_lshlrev_b32 v{20+kk}, 16, v{20+kk}")
        k(f"v_lshlrev_b32 v{36+kk}, 16, v{36+kk}")
    for t in range(8):
        for kk in range(16):
            src = 32+8*t+kk//2
            if kk % 2 == 0: k(f"s_lshl_b32 s30, s{src}, 16")
            else: k(f"s_and_b32 s30, s{src}, 0xffff0000")
            k(f"v_fmac_f32 v{2+t}, s30, v{20+kk}")
            k(f"v_fmac_f32 v{10+t}, s30, v{36+kk}")
    k(f"s_add_u32 s27, s27, {16*9216}")
    k("s_add_u32 s26, s26, 1")
    k("s_cmp_lt_u32 s26, 36")
    k(f"s_cbranch_scc1 {Lc}")
    c0 = -2.0*math.sqrt(2.0/math.pi)*LOG2E; c1 = c0*0.044715
    k(f"v_mov_b32 v52, {fimm(c0)}")
    k(f"s_mov_b32 s31, {fimm(c1)}")
    k(f"s_mul_i32 s28, s3, {8*4608*2}")
    k(f"s_add_u32 s28, s28, {WS_H}")
    for t in range(8):
        rne_bf16(k, 20, 2+t)
        rne_bf16(k, 21, 10+t)
        k("v_mul_f32 v22, v20, v20")
        k("v_fma_f32 v22, v22, s31, v52")
        k("v_mul_f32 v22, v22, v20")
        k("v_exp_f32 v22, v22")
        k("s_nop 0")
        k("v_add_f32 v22, 1.0, v22")
        k("v_rcp_f32 v22, v22")
        k("s_nop 0")
        k("v_mul_f32 v22, v22, v20")
        rne_bf16(k, 22, 22)
        k("v_mul_f32 v22, v22, v21")
        k("v_cvt_pk_bf16_f32 v22, v22, v22")
        k(f"s_add_u32 s29, s28, {t*4608*2}")
        k("buffer_store_short v22, v1, s[20:23], s29 offen")
    k(f"{L}:")
    k("s_endpgm")
    return k

def k_kgen():
    k = K("nk_kernel", (8,576,1), (256,1,1), 0, 64, wg_y=True)
    k("s_cmp_ge_u32 s2, 8")
    L = k.label("end")
    k(f"s_cbranch_scc1 {L}")
    k("s_load_dwordx8 s[8:15], s[0:1], 8")
    k("s_load_dwordx2 s[16:17], s[0:1], 40")
    k("s_load_dwordx2 s[6:7], s[0:1], 112")
    k("s_waitcnt lgkmcnt(0)")
    srd(k, 20, 6, WS_BYTES)
    k("s_lshr_b32 s24, s3, 1")
    k("s_lshl_b32 s24, s24, 2")
    k("s_load_dword s25, s[16:17], s24")
    k("s_waitcnt lgkmcnt(0)")
    k("s_and_b32 s26, s3, 1")
    k("s_lshl_b32 s26, s26, 4")
    k("s_lshr_b32 s25, s25, s26")
    k("s_lshl_b32 s25, s25, 16")
    k(f"s_mov_b32 s27, {fimm(LOG2E)}")
    k("v_mov_b32 v2, s25")
    k("v_mul_f32 v2, s27, v2")
    k("v_exp_f32 v2, v2")
    k("s_nop 0")
    rne_bf16(k, 2, 2)
    k("s_lshl_b32 s24, s2, 8")
    k("v_add_u32 v1, s24, v0")
    k("v_cvt_f32_u32 v3, v1")
    rne_bf16(k, 3, 3)
    k("v_mov_b32 v4, 0")
    k("s_lshl_b32 s24, s3, 8")
    k("s_mov_b32 s28, 0")
    Ln = k.label("n")
    k(f"{Ln}:")
    k("s_lshl_b32 s29, s28, 2")
    k("s_add_u32 s29, s29, s24")
    k("s_load_dword s32, s[8:9], s29")
    k("s_load_dword s33, s[10:11], s29")
    k("s_load_dword s34, s[12:13], s29")
    k("s_load_dword s35, s[14:15], s29")
    k("s_waitcnt lgkmcnt(0)")
    for half in range(2):
        for j in range(4):
            if half == 0: k(f"s_lshl_b32 s{36+j}, s{32+j}, 16")
            else: k(f"s_and_b32 s{36+j}, s{32+j}, 0xffff0000")
        k("v_mov_b32 v5, s36")
        k("v_mul_f32 v5, s27, v5")
        k("v_exp_f32 v5, v5")
        k("s_nop 0")
        rne_bf16(k, 5, 5)
        k("v_mul_f32 v5, v5, v2")
        k("v_mul_f32 v6, s37, v2")
        k("v_mul_f32 v7, v5, v3")
        k("v_mul_f32 v8, v6, v3")
        k("v_mul_f32 v7, s27, v7")
        k("v_sub_f32 v7, 0, v7")
        k("v_exp_f32 v7, v7")
        k(f"v_mul_f32 v8, 0.15915494, v8")
        k("v_fract_f32 v8, v8")
        k("s_nop 0")
        k("v_cos_f32 v9, v8")
        k("v_sin_f32 v10, v8")
        k("v_mul_f32 v11, s38, v2")
        k("v_mul_f32 v12, s39, v2")
        k("v_mul_f32 v9, v9, v11")
        k("v_mul_f32 v10, v10, v12")
        k("v_sub_f32 v9, v9, v10")
        k("v_fmac_f32 v4, v9, v7")
    k("s_add_u32 s28, s28, 1")
    k("s_cmp_lt_u32 s28, 64")
    k(f"s_cbranch_scc1 {Ln}")
    k("v_add_f32 v4, v4, v4")
    k("s_movk_i32 s30, 2304")
    k("v_mul_lo_u32 v5, v1, s30")
    k("s_lshl_b32 s31, s3, 2")
    k(f"s_add_u32 s31, s31, {WS_KT}")
    k("buffer_store_dword v4, v5, s[20:23], s31 offen")
    k(f"{L}:")
    k("s_endpgm")
    return k

def k_conv():
    k = K("nc_kernel", (9,512,1), (256,1,1), 0, 64, wg_y=True)
    k("s_cmp_ge_u32 s2, 9")
    L = k.label("end")
    k(f"s_cbranch_scc1 {L}")
    k("s_load_dwordx2 s[4:5], s[0:1], 0")
    k("s_load_dwordx2 s[8:9], s[0:1], 48")
    k("s_load_dwordx2 s[6:7], s[0:1], 112")
    k("s_waitcnt lgkmcnt(0)")
    srd(k, 12, 4, 2048*576*2)
    srd(k, 16, 8, 576*2)
    srd(k, 20, 6, WS_BYTES)
    k("v_and_b32 v1, 63, v0")
    k("v_lshrrev_b32 v2, 6, v0")
    k("s_nop 0")
    k("v_readfirstlane_b32 s24, v2")
    k("s_lshl_b32 s25, s3, 2")
    k("s_add_u32 s24, s24, s25")
    k("s_lshl_b32 s25, s2, 6")
    k("v_add_u32 v1, s25, v1")
    k("v_lshlrev_b32 v3, 1, v1")
    k("v_lshlrev_b32 v4, 2, v1")
    k("v_mov_b32 v5, 0")
    k("s_mov_b32 s26, 0")
    k(f"s_mov_b32 s27, {WS_KT}")
    k("s_mul_i32 s28, s24, 1152")
    k("s_mov_b32 s30, s28")
    Lm = k.label("m")
    k(f"{Lm}:")
    k("buffer_load_dword v6, v4, s[20:23], s27 offen")
    k("buffer_load_ushort v7, v3, s[12:15], s28 offen")
    k("s_waitcnt vmcnt(0)")
    k("v_lshlrev_b32 v7, 16, v7")
    k("v_fmac_f32 v5, v6, v7")
    k("s_add_u32 s27, s27, 2304")
    k("s_sub_u32 s28, s28, 1152")
    k("s_add_u32 s26, s26, 1")
    k("s_cmp_le_u32 s26, s24")
    k(f"s_cbranch_scc1 {Lm}")
    k("buffer_load_ushort v7, v3, s[12:15], s30 offen")
    k("buffer_load_ushort v8, v3, s[16:19], 0 offen")
    k("s_waitcnt vmcnt(0)")
    k("v_lshlrev_b32 v7, 16, v7")
    k("v_lshlrev_b32 v8, 16, v8")
    k("v_mul_f32 v7, v7, v8")
    rne_bf16(k, 7, 7)
    rne_bf16(k, 5, 5)
    k("v_add_f32 v5, v5, v7")
    k("v_cvt_pk_bf16_f32 v5, v5, v5")
    k(f"s_add_u32 s30, s30, {WS_A}")
    k("buffer_store_short v5, v3, s[20:23], s30 offen")
    k(f"{L}:")
    k("s_endpgm")
    return k

def k_final(scale=None):
    k = K("nf_kernel", (9,512,1), (256,1,1), 0, 64, wg_y=True)
    k("s_cmp_ge_u32 s2, 9")
    L = k.label("end")
    k(f"s_cbranch_scc1 {L}")
    k("s_load_dwordx2 s[4:5], s[0:1], 0")
    k("s_load_dwordx2 s[8:9], s[0:1], 80")
    k("s_load_dwordx4 s[40:43], s[0:1], 88")
    k("s_load_dwordx2 s[6:7], s[0:1], 112")
    k("s_waitcnt lgkmcnt(0)")
    srd(k, 12, 8, 4608*576*2)
    srd(k, 16, 42, 2048*576*2)
    srd(k, 20, 6, WS_BYTES)
    k("v_and_b32 v1, 63, v0")
    k("v_lshrrev_b32 v2, 6, v0")
    k("s_nop 0")
    k("v_readfirstlane_b32 s24, v2")
    k("s_lshl_b32 s25, s3, 2")
    k("s_add_u32 s24, s24, s25")
    k("s_lshl_b32 s25, s2, 6")
    k("v_add_u32 v1, s25, v1")
    k("v_lshlrev_b32 v3, 1, v1")
    k("v_mov_b32 v5, 0")
    k("s_mul_i32 s26, s24, 9216")
    k("s_add_u32 s44, s6, s26")
    k("s_addc_u32 s45, s7, 0")
    k("s_mov_b32 s27, 0")
    k("s_mov_b32 s28, 0")
    Lf = k.label("f")
    k(f"{Lf}:")
    k("s_load_dwordx8 s[48:55], s[44:45], s27")
    for kk in range(16):
        k(f"s_add_u32 s29, s28, {kk*1152}")
        k(f"buffer_load_ushort v{20+kk}, v3, s[12:15], s29 offen")
    k("s_waitcnt vmcnt(0) lgkmcnt(0)")
    for kk in range(16):
        src = 48+kk//2
        if kk % 2 == 0: k(f"s_lshl_b32 s30, s{src}, 16")
        else: k(f"s_and_b32 s30, s{src}, 0xffff0000")
        k(f"v_lshlrev_b32 v{20+kk}, 16, v{20+kk}")
        k(f"v_fmac_f32 v5, s30, v{20+kk}")
    k(f"s_add_u32 s28, s28, {16*1152}")
    k("s_add_u32 s27, s27, 32")
    k("s_cmp_lt_u32 s27, 9216")
    k(f"s_cbranch_scc1 {Lf}")
    rne_bf16(k, 5, 5)
    k("s_mul_i32 s26, s24, 1152")
    k("s_add_u32 s46, s4, s26")
    k("s_addc_u32 s47, s5, 0")
    k("v_mov_b32 v6, 0")
    k("s_mov_b32 s27, 0")
    Lg = k.label("g")
    k(f"{Lg}:")
    k("s_load_dword s48, s[46:47], s27")
    k("s_load_dword s49, s[40:41], s27")
    k("s_waitcnt lgkmcnt(0)")
    for half in range(2):
        if half == 0:
            k("s_lshl_b32 s50, s48, 16"); k("s_lshl_b32 s51, s49, 16")
        else:
            k("s_and_b32 s50, s48, 0xffff0000"); k("s_and_b32 s51, s49, 0xffff0000")
        k("v_mov_b32 v7, s50")
        k("v_mul_f32 v7, s51, v7")
        rne_bf16(k, 7, 7)
        k("v_add_f32 v6, v6, v7")
    k("s_add_u32 s27, s27, 4")
    k("s_cmp_lt_u32 s27, 1152")
    k(f"s_cbranch_scc1 {Lg}")
    rne_bf16(k, 6, 6)
    k(f"v_mul_f32 v6, {fimm(-LOG2E)}, v6")
    k("v_exp_f32 v6, v6")
    k("s_nop 0")
    k("v_add_f32 v6, 1.0, v6")
    k("v_rcp_f32 v6, v6")
    k("s_nop 0")
    rne_bf16(k, 6, 6)
    k("v_sub_f32 v7, 1.0, v6")
    rne_bf16(k, 7, 7)
    k(f"s_add_u32 s30, s26, {WS_A}")
    k("buffer_load_ushort v8, v3, s[20:23], s30 offen")
    k("s_waitcnt vmcnt(0)")
    k("v_lshlrev_b32 v8, 16, v8")
    k("v_mul_f32 v8, v8, v6")
    rne_bf16(k, 8, 8)
    k("v_mul_f32 v7, v7, v5")
    rne_bf16(k, 7, 7)
    k("v_add_f32 v8, v8, v7")
    if scale is not None:
        k(f"v_mul_f32 v8, {fimm(scale)}, v8")
    k("v_cvt_pk_bf16_f32 v8, v8, v8")
    k("buffer_store_short v8, v3, s[16:19], s26 offen")
    k(f"{L}:")
    k("s_endpgm")
    return k

def k_empty(i):
    k = K(f"e{i}_kernel", (256,1,1), (256,1,1), 0, 32)
    k("s_endpgm")
    return k

if __name__ == "__main__":
    out = sys.argv[1]
    scale = float(sys.argv[2]) if len(sys.argv) > 2 and sys.argv[2] != "none" else None
    nempty = int(sys.argv[3]) if len(sys.argv) > 3 else 0
    ks = [k_h(), k_kgen(), k_conv(), k_final(scale)]
    es = [k_empty(0)] if nempty else []
    open(out, "w").write(build(ks+es, ks + es*nempty))
```

```python
import re
from asmlib import K

TRANS = ("v_exp_f32","v_log_f32","v_rcp_f32","v_rsq_f32","v_sqrt_f32","v_sin_f32","v_cos_f32","v_rcp_iflag_f32","v_exp_f16","v_rcp_f16")
REG_RE = re.compile(r"\b([vas])(?:(\d+)|\[(\d+):(\d+)\])")

def regs_of(tok):
    out = []
    for m in REG_RE.finditer(tok):
        kind = m.group(1)
        if m.group(2) is not None: out.append((kind, int(m.group(2))))
        else: out += [(kind, i) for i in range(int(m.group(3)), int(m.group(4))+1)]
    if "vcc" in tok: out += [("s", "vcc")]
    if re.search(r"\bm0\b", tok): out += [("s", "m0")]
    if re.search(r"\bexec\b", tok): out += [("s", "exec")]
    return out

def split_ops(text):
    t = text.split(";")[0].strip()
    parts = t.split(None, 1)
    op = parts[0]
    rest = parts[1] if len(parts) > 1 else ""
    ops = []; cur = ""; depth = 0
    for ch in rest:
        if ch == "[": depth += 1
        if ch == "]": depth -= 1
        if ch == "," and depth == 0: ops.append(cur.strip()); cur = ""
        else: cur += ch
    if cur.strip(): ops.append(cur.strip())
    return op, ops

def mfma_passes(op):
    if "32x32x16" in op or "32x32x8" in op: return 8
    if "16x16x32" in op or "16x16x16" in op: return 4
    if "32x32x2_f32" in op: return 16
    if "16x16x4_f32" in op: return 8
    raise ValueError(op)

class E:
    def __init__(self, k):
        self.k = k
        self.reset_state()
        self.count = 0
        self.nops_inserted = 0
    def reset_state(self):
        self.pos = 0
        self.mfma_w = {}
        self.mfma_c = {}
        self.valu_w = {}
        self.trans_w = {}
        self.valu_sw = {}
        self.store_r = {}
        self.m0_w = -100
        self.exec_w = -100
        self.ds = []
        self.vm = []
    def raw(self, text):
        self.k(text)
    def label(self, l):
        self.k(f"{l}:")
    def nop(self, n):
        while n > 0:
            m = min(n, 16)
            self.k(f"s_nop {m-1}"); self.pos += m; n -= m; self.nops_inserted += 1
    def __call__(self, text, tag=None):
        for l in text.strip("\n").split("\n"):
            l = l.strip()
            if l: self.emit1(l, tag)
    def emit1(self, text, tag):
        op, ops = split_ops(text)
        self.count += 1
        if op == "s_nop":
            self.k(text); self.pos += int(ops[0]) + 1; return
        is_mfma = op.startswith("v_mfma")
        is_valu = op.startswith("v_") and not is_mfma
        is_ds = op.startswith("ds_")
        is_vmem = op.startswith("buffer_") or op.startswith("global_") or op.startswith("flat_")
        is_salu = op.startswith("s_")
        dst = []; src = []
        if is_mfma:
            dst = regs_of(ops[0]); src = regs_of(ops[1]) + regs_of(ops[2]); srcc = regs_of(ops[3])
        elif is_valu:
            if op.startswith("v_cmp"):
                dst = regs_of(ops[0]); src = sum((regs_of(o) for o in ops[1:]), [])
            elif op.startswith("v_readfirstlane") or op.startswith("v_readlane"):
                dst = regs_of(ops[0]); src = sum((regs_of(o) for o in ops[1:]), [])
            elif op.startswith("v_permlane") and "swap" in op:
                dst = regs_of(ops[0]) + regs_of(ops[1]); src = dst[:]
            elif op.startswith(("v_add_co", "v_sub_co", "v_addc_co", "v_subb_co", "v_subrev_co", "v_div_scale", "v_mad_u64")):
                dst = regs_of(ops[0]) + regs_of(ops[1]); src = sum((regs_of(o) for o in ops[2:]), [])
            else:
                dst = regs_of(ops[0]); src = sum((regs_of(o) for o in ops[1:]), [])
                if op.startswith(("v_fmac", "v_mac", "v_pk_fmac", "v_dot2c")): src += dst
                if op.startswith("v_cndmask") and len(ops) == 3: src += [("s", "vcc")]
                if "_dpp" in op or "row_" in text or "quad_perm" in text or "_sdwa" in op: src += dst
        elif is_ds:
            if op.startswith(("ds_read", "ds_bpermute", "ds_permute", "ds_swizzle")):
                dst = regs_of(ops[0]); src = sum((regs_of(o) for o in ops[1:]), [])
            else:
                src = sum((regs_of(o) for o in ops), [])
        elif is_vmem:
            if ("_load" in op and " lds" not in text and "_lds_" not in op) :
                dst = regs_of(ops[0]); src = sum((regs_of(o) for o in ops[1:]), [])
            elif "atomic" in op and "sc0" in text:
                dst = regs_of(ops[0]); src = sum((regs_of(o) for o in ops), [])
            else:
                src = sum((regs_of(o) for o in ops), [])
        need = 0
        def req(p, n):
            nonlocal need
            d = self.pos - p
            have = self.pos - p - 1
            if n - have > need: need = n - have
        vsrc = [r for r in src if r[0] in "va"]
        vdst = [r for r in dst if r[0] in "va"]
        ssrc = [r for r in src if r[0] == "s"]
        if is_mfma:
            passes = mfma_passes(op)
            for r in [x for x in src + srcc if x[0] in "va"]:
                if r in self.valu_w: req(self.valu_w[r], 2)
            for r in vsrc:
                if r in self.mfma_w:
                    p, ps = self.mfma_w[r]; req(p, {2:5,4:8,8:12,16:20}[ps])
            cregs = [x for x in srcc if x[0] in "va"]
            for r in cregs:
                if r in self.mfma_w:
                    p, ps = self.mfma_w[r]
                    prev = getattr(self, "last_d", {}).get(r)
                    if prev != tuple(cregs) or ps != passes:
                        req(p, {2:4,4:6,8:10,16:18}[ps])
                    elif ps == 2:
                        req(p, 2)
            if not cregs:
                for r in dst:
                    if r in self.mfma_w:
                        p, ps = self.mfma_w[r]; req(p, {2:4,4:6,8:10,16:18}[ps])
            req(self.exec_w, 4)
        if is_valu or is_ds or is_vmem:
            for r in vsrc + vdst:
                if r in self.mfma_w:
                    p, ps = self.mfma_w[r]; req(p, {2:5,4:8,8:12,16:20}[ps])
        if is_valu:
            for r in vdst:
                if r in self.mfma_c:
                    p, ps = self.mfma_c[r]; req(p, {2:1,4:3,8:7,16:15}[ps])
                if r in self.store_r: req(self.store_r[r], 2)
            is_trans = op.split("_e32")[0].split("_e64")[0] in TRANS
            for r in vsrc:
                if r in self.trans_w and not is_trans: req(self.trans_w[r], 1)
                if r in self.trans_w and is_trans: req(self.trans_w[r], 1)
            for r in ssrc:
                if r in self.valu_sw: req(self.valu_sw[r], 2)
            if op.startswith(("v_readfirstlane", "v_readlane")):
                for r in vsrc:
                    if r in self.valu_w: req(self.valu_w[r], 1)
                for r in ssrc:
                    if r in self.valu_sw: req(self.valu_sw[r], 4)
            if "row_" in text or "quad_perm" in text or "_dpp" in op:
                for r in vsrc:
                    if r in self.valu_w: req(self.valu_w[r], 2)
                req(self.exec_w, 5)
            if op.startswith("v_permlane"):
                for r in vsrc:
                    if r in self.valu_w: req(self.valu_w[r], 2)
        if is_vmem or is_ds:
            for r in ssrc:
                if r in self.valu_sw: req(self.valu_sw[r], 5)
            for r in vsrc:
                if r in self.trans_w: req(self.trans_w[r], 1)
            if " lds" in text or "_lds_" in op: req(self.m0_w, 1)
            for r in vdst:
                if r in self.store_r: req(self.store_r[r], 1)
        if is_salu:
            for r in ssrc + [x for o in ops for x in regs_of(o) if x[0] == "s"]:
                if r in self.valu_sw: req(self.valu_sw[r], 1)
        if need > 0: self.nop(need)
        self.k(text)
        p = self.pos
        self.pos += 1
        if is_mfma:
            passes = mfma_passes(op)
            if not hasattr(self, "last_d"): self.last_d = {}
            for r in dst:
                self.mfma_w[r] = (p, passes); self.last_d[r] = tuple(dst)
                self.valu_w.pop(r, None); self.trans_w.pop(r, None)
            for r in srcc:
                if r[0] in "va": self.mfma_c[r] = (p, passes)
        elif is_valu:
            is_trans = op.split("_e32")[0].split("_e64")[0] in TRANS
            for r in dst:
                if r[0] in "va":
                    self.valu_w[r] = p
                    self.mfma_w.pop(r, None)
                    if is_trans: self.trans_w[r] = p
                    else: self.trans_w.pop(r, None)
                else:
                    self.valu_sw[r] = p
                    if r == ("s", "exec"): self.exec_w = p
            if op.startswith("v_cmpx"): self.exec_w = p
        elif is_ds or is_vmem:
            for r in vdst:
                self.mfma_w.pop(r, None); self.valu_w.pop(r, None); self.trans_w.pop(r, None)
            if is_vmem and ("store" in op) and ("x4" in op or "x3" in op):
                for r in vsrc: self.store_r[r] = p
            if is_ds: self.ds.append(tag)
            else: self.vm.append(tag)
        elif is_salu:
            if ops and ops[0] == "m0": self.m0_w = p
            if op.startswith(("s_load", "s_buffer_load", "s_memtime")): self.ds.append("smem")
            if op == "s_waitcnt":
                m = re.search(r"vmcnt\((\d+)\)", text)
                if m:
                    n = int(m.group(1));
                    if len(self.vm) > n: self.vm = self.vm[len(self.vm)-n:] if n else []
                m = re.search(r"lgkmcnt\((\d+)\)", text)
                if m:
                    n = int(m.group(1))
                    if len(self.ds) > n: self.ds = self.ds[len(self.ds)-n:] if n else []
    def _need(self, q, tags):
        last = -1
        for i, t in enumerate(q):
            if t in tags: last = i
        if last < 0: return None
        return len(q) - 1 - last
    def wait(self, ds=(), vm=()):
        parts = []
        if ds:
            n = self._need(self.ds, set(ds))
            if n is not None:
                if "smem" in self.ds: n = 0
                parts.append(f"lgkmcnt({min(n,15)})")
        if vm:
            n = self._need(self.vm, set(vm))
            if n is not None: parts.append(f"vmcnt({min(n,63)})")
        if parts: self.emit1("s_waitcnt " + " ".join(parts), None)
    def wait_all_ds(self):
        if self.ds: self.emit1("s_waitcnt lgkmcnt(0)", None)
    def wait_all_vm(self):
        if self.vm: self.emit1("s_waitcnt vmcnt(0)", None)
```

```python
import sys, math
sys.path.insert(0, "gen")
from asmlib import *
from emit import E
LOG2E = 1.4426950408889634
WS_P = 0
P_BYTES = 16*144*2048*8
WS_UT = 0x2800000
WS_G = 0x2B00000
WS_USED = 0x2C00000
SLOT = 16384
HREG = 5*SLOT
LDS_BYTES = 10*SLOT

ACC = lambda buf, a, b: 128 + buf*64 + (a*2+b)*16
ACC2 = lambda buf, a, b: (160 if buf == 0 else 64) + (a*2+b)*16
def XF(ks, b):
    return a((ks*2+b)*4, 4) if ks < 32 else v(96 + (ks-32)*8 + b*4, 4)
HF = lambda ks, b: a((ks*2+b)*4, 4)
AF = lambda st, a_: 72 + st*8 + a_*4
AF2 = lambda st, a_: 144 + st*12 + a_*4
OUT = lambda i: 64 + 4*i
TMP = 56
SX = 56; SW = 65; SD = 74
SU = 83
VW = 4; VTR = 8; VHW = 14; VK0 = 15; VWH = 16; VTRH = 18; VX = 21; VXR = 25; VXA = 29
VHWH = 33; VD = 34; VT2 = 37; VP = 46; VHR = 47; VHA = 48
STAMP0 = 92

def gen_f1(name="f1_kernel", store_flags="sc1", prefetch_code=True, profile=False, abl=(), init_units=4,
           ev0=2, ev1=4, evh=4, ev2=3, rot=1, chunks=(3,3,3), budget=5, rd_per_gap=2, fine=-1, side_flags=""):
    k = K(name, (256,1,1), (256,1,1), LDS_BYTES, 256, agpr=256, sgpr=102)
    e = E(k)
    stamps = []
    def stamp():
        if profile:
            r = ([92,93,94,95,96,97,98,99,24,23,50,52])[len(stamps)]; stamps.append(r)
            e(f"s_memtime s[40:41]"); e("s_waitcnt lgkmcnt(0)"); e(f"s_mov_b32 s{r}, s40")
    Lend = k.label("end")
    e("s_cmp_ge_u32 s2, 256")
    e(f"s_cbranch_scc1 {Lend}")
    if profile:
        e("s_memrealtime s[42:43]"); e("s_waitcnt lgkmcnt(0)"); e("s_mov_b32 vcc_lo, s42")
    stamp()
    e("s_load_dwordx2 s[32:33], s[0:1], 0")
    e("s_load_dwordx4 s[36:39], s[0:1], 64")
    e("s_load_dwordx2 s[44:45], s[0:1], 80")
    e("s_load_dwordx2 s[34:35], s[0:1], 112")
    e("s_load_dwordx2 s[100:101], s[0:1], 88")
    if prefetch_code:
        Lpf = k.label("pf")
        e("s_getpc_b64 s[40:41]")
        e.raw(f"{Lpf}:")
        e("v_min_u32 v1, 15, v0")
        e("s_lshr_b32 s43, s2, 3")
        e("s_lshl_b32 s43, s43, 4")
        e("v_add_u32 v1, s43, v1")
        e("v_lshlrev_b32 v1, 7, v1")
        e(f"v_min_u32 v1, ({Lend} - {Lpf}), v1")
        e("global_load_dword v63, v1, s[40:41]", tag="pf")
    e("v_lshrrev_b32 v1, 6, v0")
    e("v_and_b32 v0, 63, v0")
    e("v_readfirstlane_b32 s20, v1")
    e("s_and_b32 s42, s2, 7")
    e("s_lshr_b32 s43, s2, 3")
    e("s_and_b32 s46, s42, 1"); e("s_lshl_b32 s46, s46, 3"); e("s_and_b32 s47, s43, 7"); e("s_add_u32 s46, s46, s47")
    e("s_lshr_b32 s48, s42, 1"); e("s_lshl_b32 s48, s48, 2"); e("s_lshr_b32 s49, s43, 3"); e("s_add_u32 s48, s48, s49")
    e("s_lshr_b32 s21, s20, 1")
    e("s_and_b32 s22, s20, 1")
    e("s_mul_i32 s50, s48, 576")
    e("s_and_b32 s51, s48, 1")
    e("s_lshl_b32 s52, s51, 6"); e("s_add_u32 s52, s52, s50")
    e("s_xor_b32 s53, s51, 1"); e("s_lshl_b32 s53, s53, 9"); e("s_add_u32 s53, s53, s50")
    e("s_lshl_b32 s24, s46, 2"); e("s_add_u32 s24, s24, s20"); e(f"s_mul_i32 s24, s24, {32*1152}")
    e(f"s_mul_i32 s23, s20, {16*9216}")
    e(f"s_mov_b32 s{SX}, s24"); e(f"s_mov_b32 s{SW}, s23")
    e("s_lshl_b32 s54, s49, 1"); e("s_add_u32 s54, s54, s47"); e("s_bfe_u32 s55, s42, 0x10001"); e("s_add_u32 s54, s54, s55"); e("s_and_b32 s54, s54, 7")
    if not rot: e("s_mov_b32 s54, 0")
    for l in range(1, 9):
        e("s_add_u32 s55, s54, 1")
        e(f"s_lshl_b32 s29, s55, 7"); e(f"s_add_u32 s{SX+l}, s24, s29")
        e(f"s_mul_i32 s29, s55, {64*9216}"); e(f"s_add_u32 s{SW+l}, s23, s29")
        if l < 8:
            e("s_add_u32 s54, s54, 1"); e("s_and_b32 s54, s54, 7")
    e("s_lshl_b32 s30, s20, 12")
    e("s_lshl_b32 s31, s20, 11")
    c0 = -2.0*math.sqrt(2.0/math.pi)*LOG2E; c1 = c0*0.044715
    e(f"s_mov_b32 s27, {fimm(c1)}")
    e(f"v_mov_b32 v{VK0}, {fimm(c0)}")
    e("v_lshrrev_b32 v1, 3, v0"); e("v_and_b32 v2, 7, v0"); e("v_bfe_u32 v3, v0, 4, 1")
    e("s_movk_i32 s55, 9216"); e("v_mul_lo_u32 v1, v1, s55")
    for q in range(4):
        m = q >> 1
        e(f"v_or_b32 v{VW+q}, {m<<1}, v3")
        e(f"v_lshlrev_b32 v{VW+q}, 1, v{VW+q}")
        e(f"v_xor_b32 v{VW+q}, v{VW+q}, v2")
        e(f"v_lshl_add_u32 v{VW+q}, v{VW+q}, 4, v1")
        add = (8*9216 if q & 1 else 0) - 1024*q + (2048 if m else 0)
        if add: e(f"v_add_u32 v{VW+q}, {add}, v{VW+q}")
    e("v_lshrrev_b32 v1, 3, v0"); e("s_movk_i32 s55, 1152"); e("v_mul_lo_u32 v1, v1, s55"); e("v_lshrrev_b32 v3, 4, v0")
    for i in range(4):
        e(f"v_add_u32 v{VX+i}, {4*i}, v3")
        e(f"v_and_b32 v{VX+i}, 7, v{VX+i}")
        e(f"v_xor_b32 v{VX+i}, v{VX+i}, v2")
        e(f"v_lshl_add_u32 v{VX+i}, v{VX+i}, 4, v1")
        add = 8*i*1152 - 1024*i
        if add: e(f"v_add_u32 v{VX+i}, {add}, v{VX+i}")
    if profile and fine < 0: stamp()
    e("s_waitcnt lgkmcnt(0)")
    srd(e, 4, 32, 2048*1152)
    e("s_sub_u32 s38, s38, 2048"); e("s_subb_u32 s39, s39, 0")
    e("s_add_u32 s8, s36, s52"); e("s_addc_u32 s9, s37, 0"); e("s_and_b32 s9, s9, 0xffff")
    e(f"s_mov_b32 s10, {576*9216}"); e("s_mov_b32 s11, 0x00020000")
    e("s_add_u32 s12, s38, s52"); e("s_addc_u32 s13, s39, 0"); e("s_and_b32 s13, s13, 0xffff")
    e(f"s_mov_b32 s14, {576*9216 + 2048}"); e("s_mov_b32 s15, 0x00020000")
    units = []
    for c in range(9):
        units.append(("X", 0, c)); units.append(("W", 0, c))
    for s_ in range(1, 4):
        for c in range(9): units.append(("W", s_, c))
    for c in range(5): units.append(("HF", 4, c))
    for dc in range(len(chunks)):
        for c in range(9): units.append(("D", dc, c))
    phases = []
    n = 0
    for c in range(9): phases.append(([n, n+1], 0, 4*c, 4)); n += 2
    for s_ in range(1, 4):
        for c in range(9): phases.append(([n], s_, 4*c, 4)); n += 1
    for c in range(5): phases.append(([n], 4, 8*c, 8 if c < 4 else 4)); n += 1
    for dc in range(len(chunks)):
        for c in range(9): phases.append(([n], 5+dc, 2*c, 2)); n += 1
    unit_phase = {}
    for pi, ph in enumerate(phases):
        for u in ph[0]: unit_phase[u] = pi
    first_g2 = next(pi for pi, ph in enumerate(phases) if ph[1] == 5)
    first_g2c1 = next(pi for pi, ph in enumerate(phases) if ph[1] == 6)
    free_after = {i*SLOT: -1 for i in range(5)}
    slot_of = {}; issue_after = {}
    last = -1
    g2_ready = False
    for u in range(len(units)):
        if units[u][0] == "D" and not g2_ready:
            g2_ready = True
            old_fa = dict(free_after)
            free_after = {}
            US = 12288
            for i in range(6):
                lo, hi = i*US, (i+1)*US
                free_after[lo] = max(fa for s_, fa in old_fa.items() if s_ < hi and s_ + SLOT > lo)
            for i in range(6):
                free_after[HREG + i*US] = first_g2c1
        sl = min(free_after, key=lambda s_: (max(free_after[s_], last), s_))
        ia = max(free_after[sl], last)
        slot_of[u] = sl; issue_after[u] = ia; last = ia
        free_after[sl] = unit_phase[u] + 1
    col_of_chunk = [sum(chunks[:i])*64 for i in range(len(chunks))]
    def dma_unit(n):
        kind, g, c = units[n]
        slot = slot_of[n]
        out = []
        if kind == "X":
            out.append(f"s_add_u32 m0, s30, {slot}")
            for i in range(4):
                off = f" offset:{1024*i}" if i else ""
                out.append((f"buffer_load_dwordx4 v{VX+i}, s[4:7], s{SX+c} offen{off} lds", ("dma", n)))
        elif kind == "W":
            if c == 0 and g > 0:
                out.append("s_add_u32 s8, s8, 128"); out.append("s_addc_u32 s9, s9, 0")
                out.append("s_add_u32 s12, s12, 128"); out.append("s_addc_u32 s13, s13, 0")
            out.append(f"s_add_u32 m0, s30, {slot}")
            for q in range(4):
                srd_ = "s[8:11]" if q < 2 else "s[12:15]"
                off = f" offset:{1024*q}" if q else ""
                out.append((f"buffer_load_dwordx4 v{VW+q}, {srd_}, s{SW+c} offen{off} lds", ("dma", n)))
        elif kind == "HF":
            if c == 0:
                out.append("s_add_u32 s8, s36, s53"); out.append("s_addc_u32 s9, s37, 0"); out.append("s_and_b32 s9, s9, 0xffff")
                out.append("s_add_u32 s12, s38, s53"); out.append("s_addc_u32 s13, s39, 0"); out.append("s_and_b32 s13, s13, 0xffff")
            nk = 2 if c < 4 else 1
            for ee in range(nk):
                out.append(f"s_add_u32 m0, s31, {slot + ee*8192}")
                out.append((f"buffer_load_dwordx4 v{VWH}, s[8:11], s{SW+2*c+ee} offen lds", ("dma", n)))
                out.append((f"buffer_load_dwordx4 v{VWH+1}, s[12:15], s{SW+2*c+ee} offen offset:1024 lds", ("dma", n)))
        else:
            nt = chunks[g]
            assert nt == 3
            if c == 0 and g > 0:
                out.append(f"s_add_u32 s4, s4, {chunks[g-1]*128}"); out.append("s_addc_u32 s5, s5, 0")
            out.append(f"s_add_u32 m0, s28, {slot}")
            for i in range(3):
                off = f" offset:{1024*i}" if i else ""
                out.append((f"buffer_load_dwordx4 v{VD+i}, s[4:7], s{SD+c} offen{off} lds", ("dma", n)))
        return out
    def emit_list(lst):
        for it in lst:
            if isinstance(it, tuple) and it[0] == "WAITDS": e.wait(ds=[it[1]])
            elif isinstance(it, tuple) and it[0] == "WAITVM": e.wait(vm=[it[1]])
            elif isinstance(it, tuple): e(it[0], tag=it[1])
            else: e(it)
    next_dma = 0
    dma_q = []
    def release(bar):
        nonlocal next_dma
        while next_dma < len(units) and issue_after[next_dma] <= bar:
            if units[next_dma][0] == "D" and units[next_dma][1] == 0 and units[next_dma][2] == 0:
                dma_q.extend(g2_setup())
            if "nodma" in abl and next_dma >= init_units: pass
            else: dma_q.extend(dma_unit(next_dma))
            next_dma += 1
    def is_dma(it): return isinstance(it, tuple) and it[1] is not None and it[1][0] == "dma"
    def pop_dma(n):
        out = []
        while dma_q and n > 0:
            it = dma_q.pop(0); out.append(it)
            if is_dma(it): n -= 1
        return out
    def g2_setup():
        l = []
        l.append("s_mov_b32 s4, s44"); l.append("s_and_b32 s5, s45, 0xffff"); l.append(f"s_mov_b32 s6, {4608*1152}")
        return l
    release(-1)
    u0 = pop_dma(4); u1 = pop_dma(4)
    La = k.label("ord"); Lb = k.label("ordd")
    e("s_add_u32 s55, s47, s49"); e("s_and_b32 s55, s55, 1"); e("s_cmp_eq_u32 s55, 0")
    e(f"s_cbranch_scc1 {La}")
    vm_save = list(e.vm)
    emit_list(u1); emit_list(u0)
    e(f"s_branch {Lb}")
    e.raw(f"{La}:")
    e.vm = list(vm_save)
    emit_list(u0); emit_list(u1)
    e.raw(f"{Lb}:")
    e.m0_w = -100
    pending_init = init_units - 2
    if profile and fine < 0: stamp()
    srd(e, 16, 34, WS_USED)
    e("s_mul_i32 s24, s48, 288"); e("s_lshl_b32 s55, s20, 3"); e("s_add_u32 s24, s24, s55"); e("s_mul_i32 s24, s24, 1152")
    for l in range(9):
        if l < 8:
            if rot: e(f"s_add_u32 s54, s47, {l}"); e("s_and_b32 s54, s54, 7")
            else: e(f"s_mov_b32 s54, {l}")
            e("s_add_u32 s54, s54, s51")
        else:
            e("s_xor_b32 s54, s51, 1"); e("s_lshl_b32 s54, s54, 3")
        e(f"s_lshl_b32 s{SU+l}, s54, 13")
        e(f"s_mul_i32 s55, s54, {32*1152}"); e(f"s_add_u32 s{SD+l}, s24, s55")
    e("s_mul_i32 s28, s20, 3072")
    e("s_mul_i32 s25, s48, 144"); e("s_mul_i32 s55, s22, 24"); e("s_add_u32 s25, s25, s55"); e("s_lshl_b32 s25, s25, 14")
    e("s_lshl_b32 s55, s46, 1"); e("s_add_u32 s55, s55, s21"); e("s_lshl_b32 s55, s55, 9"); e("s_add_u32 s25, s25, s55")
    e("v_lshrrev_b32 v1, 4, v0"); e("v_bfe_u32 v2, v0, 2, 2"); e("v_and_b32 v3, 3, v0")
    T0, T1, T2, T3 = 56, 57, 58, 59
    e(f"v_lshrrev_b32 v{T0}, 1, v3")
    e(f"v_lshrrev_b32 v{T1}, 1, v1")
    e(f"v_lshl_add_u32 v{T1}, v{T1}, 3, v2")
    e(f"v_lshrrev_b32 v{T2}, 1, v2")
    e(f"v_lshl_or_b32 v60, v{T0}, 1, v{T2}")
    e(f"v_and_b32 v{T3}, 1, v1")
    e(f"v_lshlrev_b32 v61, 4, v{T3}")
    e("v_and_b32 v62, 1, v3")
    e("v_lshl_add_u32 v61, v62, 3, v61")
    e(f"v_lshlrev_b32 v62, 11, v{T0}")
    e(f"v_lshl_add_u32 v62, v{T1}, 7, v62")
    e("v_add_u32 v62, v62, v61")
    for a_ in range(2):
        e("s_lshl_b32 s55, s22, 1")
        if a_: e("s_add_u32 s55, s55, 1")
        e(f"v_xor_b32 v{VTR+1}, s55, v60")
        e(f"v_lshl_add_u32 v{VTR+3*a_}, v{VTR+1}, 5, v62") if a_ == 1 else None
        if a_ == 0:
            e(f"v_lshl_add_u32 v{VTR}, v{VTR+1}, 5, v62")
    e(f"v_add_u32 v{VTR+1}, 0x10000, v{VTR}")
    e(f"v_add_u32 v{VTR+4}, 0x10000, v{VTR+3}")
    e(f"v_lshlrev_b32 v62, 10, v{T0}")
    e(f"v_lshl_add_u32 v62, v{T1}, 6, v62")
    e("v_add_u32 v62, v62, v61")
    e(f"v_xor_b32 v60, s22, v{T0}")
    e(f"v_lshl_add_u32 v{VTRH}, v60, 5, v62")
    e(f"v_add_u32 v{VTRH+1}, 0x10000, v{VTRH}")
    e("v_lshrrev_b32 v60, 1, v1"); e("v_lshl_add_u32 v60, v60, 2, v2")
    e("s_movk_i32 s55, 384"); e("v_mul_lo_u32 v60, v60, s55")
    e(f"v_lshl_add_u32 v60, v{T3}, 5, v60"); e("v_lshl_add_u32 v60, v3, 3, v60")
    for a_ in range(3):
        e("s_mul_i32 s55, s22, 3"); e(f"s_add_u32 s55, s55, {a_}")
        e(f"v_xor_b32 v61, s55, v{T2}")
        e(f"v_lshl_add_u32 v{VT2+3*a_}, v61, 6, v60")
        e(f"v_add_u32 v{VT2+3*a_+1}, 0x10000, v{VT2+3*a_}")
        e(f"v_add_u32 v{VT2+3*a_+2}, 0x20000, v{VT2+3*a_}")
    for i in range(3):
        e(f"v_add_u32 v60, {64*i}, v0")
        e("v_mul_u32_u24 v61, 2731, v60"); e("v_lshrrev_b32 v61, 16, v61")
        e("v_mul_u32_u24 v62, 24, v61"); e("v_sub_u32 v62, v60, v62")
        e("v_bfe_u32 v60, v61, 1, 1"); e("v_lshlrev_b32 v60, 2, v60")
        e("v_xor_b32 v62, v62, v60")
        e("v_mul_u32_u24 v61, 1152, v61")
        e(f"v_lshl_add_u32 v{VD+i}, v62, 4, v61")
        if i: e(f"v_subrev_u32 v{VD+i}, {1024*i}, v{VD+i}")
    e("v_lshrrev_b32 v1, 2, v0"); e("s_movk_i32 s55, 9216"); e("v_mul_lo_u32 v1, v1, s55"); e("v_and_b32 v2, 3, v0")
    e(f"v_lshl_add_u32 v{VWH}, v2, 4, v1"); e("v_xor_b32 v2, 2, v2")
    e(f"v_lshl_add_u32 v{VWH+1}, v2, 4, v1"); e(f"v_add_u32 v{VWH+1}, 1024, v{VWH+1}")
    e("v_and_b32 v1, 31, v0"); e("s_lshl_b32 s55, s21, 6"); e("v_add_u32 v1, s55, v1"); e("v_lshlrev_b32 v1, 7, v1")
    e("v_lshrrev_b32 v2, 5, v0"); e("v_bfe_u32 v3, v0, 1, 3"); e("v_xor_b32 v3, v2, v3")
    e(f"v_lshl_add_u32 v{VXR}, v3, 4, v1")
    for ks in range(1, 4): e(f"v_xor_b32 v{VXR+ks}, {ks*32}, v{VXR}")
    e("v_and_b32 v1, 31, v0"); e("v_lshlrev_b32 v1, 3, v1"); e(f"v_lshl_add_u32 v{VP}, v2, 14, v1")
    e("v_lshlrev_b32 v1, 4, v0"); e("s_lshl_b32 s55, s21, 11"); e(f"s_add_u32 s55, s55, {HREG}"); e(f"v_add_u32 v{VHR}, s55, v1")
    e("s_add_u32 s55, s51, s22"); e("s_lshl_b32 s55, s55, 13"); e(f"v_add_u32 v{VHW}, s55, v{VHR}")
    e("s_xor_b32 s55, s51, 1"); e("s_lshl_b32 s55, s55, 4"); e("s_add_u32 s55, s55, s22"); e("s_lshl_b32 s55, s55, 12")
    e(f"v_add_u32 v{VHWH}, s55, v{VHR}")
    steps = []
    for pi, (us, sg, k0, nks) in enumerate(phases):
        for q in range(nks): steps.append((pi, q, sg, k0+q))
    def reads_for(si):
        pi, q, sg, ks = steps[si]
        us = phases[pi][0]
        out = []; st = si % 3
        if sg == 0:
            xs = slot_of[us[0]]
            if q == 0:
                for kk in range(4): out.append((f"v_add_u32 v{VXA+kk}, {xs}, v{VXR+kk}", None))
            for b in range(2):
                off = f" offset:{4096*b}" if b else ""
                out.append((f"ds_read_b128 {XF(ks,b)}, v{VXA+q}{off}", ("rd", si)))
        ws = slot_of[us[-1]]
        if sg < 4:
            for a_ in range(2):
                for t in range(2):
                    off = ws + q*4096 + t*512
                    out.append((f"ds_read_b64_tr_b16 {v(AF(st,a_)+2*t,2)}, v{VTR+3*a_+(off>>16)} offset:{off & 0xffff}", ("rd", si)))
        elif sg == 4:
            for t in range(2):
                off = ws + q*2048 + t*256
                out.append((f"ds_read_b64_tr_b16 {v(AF(st,0)+2*t,2)}, v{VTRH+(off>>16)} offset:{off & 0xffff}", ("rd", si)))
        else:
            if sg == 5:
                if q == 0: out.append((f"v_add_u32 v{VHA}, s{SU+ks//2}, v{VHR}", None))
                for b in range(2):
                    out.append((f"ds_read_b128 {HF(ks,b)}, v{VHA} offset:{q*4096 + b*1024}", ("rd", si)))
            for a_ in range(chunks[sg-5]):
                for t in range(2):
                    off = ws + q*16*384 + t*8*384
                    out.append((f"ds_read_b64_tr_b16 {a(AF2(st,a_)+2*t,2)}, v{VT2+3*a_+(off>>16)} offset:{off & 0xffff}", ("rd", si)))
        return out
    def barrier_for(pi):
        if "nodma" not in abl:
            for u in phases[pi][0]:
                assert u < next_dma and not any(isinstance(x, tuple) and x[1] == ("dma", u) for x in dma_q), f"DMA for unit {u} not issued before its barrier"
        e.wait(vm=[("dma", u) for u in phases[pi][0]])
        e.wait_all_ds()
        if "nobar" not in abl or pi == 0: e("s_barrier")
        release(pi)
    outsel = [0]
    def epi_tile(buf, a_, b, sg):
        A0 = ACC(buf, a_, b)
        o = OUT(outsel[0]); outsel[0] ^= 1
        l = []
        for hh in range(2):
            r0 = A0 + 8*hh; t = TMP + 4*hh
            for i in range(4): l.append(f"v_mul_f32 v{t+i}, v{r0+i}, v{r0+i}")
            for i in range(4): l.append(f"v_mul_f32 v{r0+4+i}, v{r0+i}, v{r0+4+i}")
            for i in range(4): l.append(f"v_fma_f32 v{t+i}, v{t+i}, s27, v{VK0}")
            for i in range(4): l.append(f"v_mul_f32 v{r0+i}, v{t+i}, v{r0+i}")
            for i in range(4): l.append(f"v_exp_f32 v{r0+i}, v{r0+i}")
            for i in range(4): l.append(f"v_add_f32 v{r0+i}, 1.0, v{r0+i}")
            for i in range(4): l.append(f"v_rcp_f32 v{r0+i}, v{r0+i}")
            for i in range(4): l.append(f"v_mul_f32 v{r0+4+i}, v{r0+4+i}, v{r0+i}")
            l.append(f"v_cvt_pk_bf16_f32 v{o+2*hh}, v{r0+4}, v{r0+5}")
            l.append(f"v_cvt_pk_bf16_f32 v{o+2*hh+1}, v{r0+6}, v{r0+7}")
        if sg < 4: l.append((f"ds_write_b128 v{VHW}, {v(o,4)} offset:{(4*sg+a_)*4096 + b*1024}", ("hw", 0)))
        else: l.append((f"ds_write_b128 v{VHWH}, {v(o,4)} offset:{b*1024}", ("hw", 0)))
        return l
    psel = [0]
    def epi2(dc):
        buf = dc & 1; l = []
        g0 = col_of_chunk[dc]//4
        for a_ in range(chunks[dc]):
            for q in range(4):
                l.append(f"s_add_u32 s26, s25, {(g0 + 8*a_ + 2*q)*16384}")
                for b in range(2):
                    r = ACC2(buf, a_, b) + 4*q
                    o = TMP + 2*(psel[0] & 3); psel[0] += 1
                    l.append(f"v_cvt_pk_bf16_f32 v{o}, v{r}, v{r+1}")
                    l.append(f"v_cvt_pk_bf16_f32 v{o+1}, v{r+2}, v{r+3}")
                    off = f" offset:{256*b}" if b else ""
                    l.append((f"buffer_store_dwordx2 {v(o,2)}, v{VP}, s[16:19], s26 offen{off} {store_flags}".rstrip(), ("st", 0)))
        return l
    emit_list(pop_dma(4*pending_init))
    GX = 96; GW = 106; GT = 112
    def gate_loads():
        l = []
        l.append("v_lshlrev_b32 v72, 2, v0")
        l.append("s_lshl_b32 s55, s46, 4"); l.append("s_add_u32 s55, s55, s48"); l.append("s_lshl_b32 s55, s55, 2"); l.append("s_add_u32 s55, s55, s20")
        l.append("s_lshl_b32 s26, s55, 1")
        l.append("s_lshl_b32 s3, s26, 3"); l.append(f"s_add_u32 s3, s3, {WS_G}")
        l.append("s_mul_i32 s29, s26, 1152")
        l.append("s_mov_b32 s8, s32"); l.append("s_and_b32 s9, s33, 0xffff"); l.append(f"s_mov_b32 s10, {2048*1152}")
        l.append("s_mov_b32 s12, s100"); l.append("s_and_b32 s13, s101, 0xffff"); l.append("s_mov_b32 s14, 1152")
        for t in range(2):
            for i in range(5):
                l.append((f"buffer_load_dword v{GX+5*t+i}, v72, s[8:11], s29 offen offset:{1152*t + 256*i}", "gl"))
        for i in range(5):
            l.append((f"buffer_load_dword v{GW+i}, v72, s[12:15], 0 offen offset:{256*i}", "gl"))
        return l
    def gate_jobs():
        l = [("WAITVM", "gl")]
        for i in range(5):
            l.append(f"v_lshlrev_b32 v{GT+2*i}, 16, v{GW+i}"); l.append(f"v_and_b32 v{GT+2*i+1}, 0xffff0000, v{GW+i}")
        for t in range(2):
            acc = 76 + t
            for i in range(5):
                x = GX+5*t+i
                l.append(f"v_lshlrev_b32 v74, 16, v{x}"); l.append(f"v_and_b32 v75, 0xffff0000, v{x}")
                l.append(f"v_mul_f32 v74, v74, v{GT+2*i}"); l.append(f"v_mul_f32 v75, v75, v{GT+2*i+1}")
                l.append(f"v_cvt_pk_bf16_f32 v73, v74, v75")
                l.append(f"v_lshlrev_b32 v74, 16, v73"); l.append(f"v_and_b32 v75, 0xffff0000, v73")
                if i == 0: l.append(f"v_add_f32 v{acc}, v74, v75")
                else:
                    l.append(f"v_add_f32 v{acc}, v{acc}, v74"); l.append(f"v_add_f32 v{acc}, v{acc}, v75")
        for sh in (1, 2, 4, 8):
            for t in range(2): l.append(f"v_add_f32_dpp v{76+t}, v{76+t}, v{76+t} row_shr:{sh} row_mask:0xf bank_mask:0xf bound_ctrl:0")
        for t in range(2): l.append(f"v_add_f32_dpp v{76+t}, v{76+t}, v{76+t} row_bcast:15 row_mask:0xa bank_mask:0xf")
        for t in range(2): l.append(f"v_add_f32_dpp v{76+t}, v{76+t}, v{76+t} row_bcast:31 row_mask:0xc bank_mask:0xf")
        for t in range(2):
            r = 76+t; o = 80+2*t
            l.append(f"v_readlane_b32 s55, v{r}, 63"); l.append(f"v_mov_b32 v{r}, s55")
            l.append(f"v_cvt_pk_bf16_f32 v{r}, v{r}, v{r}"); l.append(f"v_lshlrev_b32 v{r}, 16, v{r}")
            l.append(f"v_mul_f32 v{r}, {fimm(-LOG2E)}, v{r}"); l.append(f"v_exp_f32 v{r}, v{r}"); l.append(f"v_add_f32 v{r}, 1.0, v{r}"); l.append(f"v_rcp_f32 v{r}, v{r}")
            l.append(f"v_cvt_pk_bf16_f32 v{o}, v{r}, v{r}"); l.append(f"v_lshlrev_b32 v{o}, 16, v{o}")
            l.append(f"v_sub_f32 v{o+1}, 1.0, v{o}"); l.append(f"v_cvt_pk_bf16_f32 v{o+1}, v{o+1}, v{o+1}"); l.append(f"v_lshlrev_b32 v{o+1}, 16, v{o+1}")
        l.append("v_mov_b32 v74, s3")
        l.append((f"buffer_store_dwordx4 v[80:83], v74, s[16:19], 0 offen {side_flags}".rstrip(), ("st", 0)))
        return l
    XTA = 192
    e("v_lshrrev_b32 v156, 4, v0"); e("v_bfe_u32 v157, v0, 2, 2"); e("v_and_b32 v158, 3, v0")
    for t in range(2):
        e(f"v_lshl_add_u32 v159, v156, 3, v157")
        if t: e("v_add_u32 v159, 4, v159")
        e("v_bfe_u32 v160, v159, 1, 3")
        e("v_lshrrev_b32 v161, 1, v158"); e("v_xor_b32 v160, v160, v161")
        e("v_lshlrev_b32 v159, 7, v159"); e("v_lshl_add_u32 v159, v160, 4, v159")
        e("v_and_b32 v161, 1, v158"); e("v_lshl_add_u32 v159, v161, 3, v159")
        e(f"v_add_u32 v{XTA+4*t}, s30, v159")
        for cb in range(1, 4): e(f"v_xor_b32 v{XTA+4*t+cb}, {32*cb}, v{XTA+4*t}")
    e("s_and_b32 s26, s48, 3"); e("s_lshl_b32 s26, s26, 5")
    for t in range(2): e(f"v_xor_b32 v{XTA+9+t}, s26, v{XTA+4*t}")
    e("v_and_b32 v159, 15, v0"); e("v_lshlrev_b32 v159, 12, v159"); e(f"v_lshl_add_u32 v{XTA+8}, v156, 4, v159")
    def xt_jobs(lam):
        l = []
        sl = slot_of[2*lam]
        assert sl + 0 < 65536
        if lam == 1:
            for cb in range(4):
                for t in range(2): l.append((f"ds_read_b64_tr_b16 {v(XTA+12+4*cb+2*t,2)}, v{XTA+4*t+cb} offset:{sl}", ("xtr", lam)))
            l.append(f"s_sub_u32 s26, s{SX+1}, s{SX}"); l.append("s_lshl_b32 s26, s26, 11")
        else:
            for t in range(2): l.append((f"ds_read_b64_tr_b16 {v(XTA+28+2*t,2)}, v{XTA+9+t} offset:{sl}", ("xtr", lam)))
            l.append("s_and_b32 s26, s48, 3"); l.append("s_lshl_b32 s26, s26, 16")
        l.append("s_lshl_b32 s55, s46, 8"); l.append("s_add_u32 s26, s26, s55"); l.append("s_lshl_b32 s55, s20, 6"); l.append("s_add_u32 s26, s26, s55")
        l.append(f"s_add_u32 s26, s26, {WS_UT}")
        l.append(("WAITDS", ("xtr", lam)))
        if lam == 1:
            for cb in range(4):
                l.append((f"buffer_store_dwordx4 {v(XTA+12+4*cb,4)}, v{XTA+8}, s[16:19], s26 offen {side_flags}".rstrip(), ("st", 0)))
                if cb < 3: l.append(f"s_add_u32 s26, s26, {16*4096}")
        else:
            l.append((f"buffer_store_dwordx4 {v(XTA+28,4)}, v{XTA+8}, s[16:19], s26 offen {side_flags}".rstrip(), ("st", 0)))
        return l
    epi_q = []
    if profile and fine < 0: stamp()
    barrier_for(0)
    if profile and fine < 0: stamp()
    for si in (0, 1):
        for t_, tag in reads_for(si): e(t_, tag=tag)
    nsteps = len(steps)
    gapctr = 0
    now_q = []
    dma_credit = [0.0]
    def cost(it):
        t = it[0] if isinstance(it, tuple) else it
        op = t.split()[0]
        if op.startswith(("v_exp", "v_rcp")): return 2
        if op.startswith("buffer_"): return 2
        if op.startswith("ds_write"): return 2
        return 1
    for si in range(nsteps):
        pi, q, sg, ks = steps[si]
        if profile and fine >= 0 and sg == fine and q == 0 and len(stamps) < 11: stamp()
        if sg == 0 and ks == 0: now_q += xt_jobs(0)
        if sg == 0 and ks == 3: now_q += xt_jobs(1)
        if sg == 5 and ks == 11: epi_q += gate_jobs()
        if ks == 0 and sg >= 1:
            if profile and fine < 0 and sg in (1, 4, 5, 6): stamp()
            assert not epi_q, f"epilogue not drained at stage {sg}"
            if "noepi" not in abl:
                if sg <= 4:
                    for a_ in range(2):
                        for b in range(2): epi_q += epi_tile((sg-1) & 1, a_, b, sg-1)
                elif sg == 5:
                    epi_q += gate_loads()
                    for b in range(2): epi_q += epi_tile(0, 0, b, 4)
                else:
                    epi_q += epi2(sg-6)
        e.wait(ds=[("rd", si)])
        mf = []
        if sg < 4:
            buf = sg & 1
            for a_ in range(2):
                for b in range(2):
                    c = "0" if ks == 0 else v(ACC(buf,a_,b),16)
                    mf.append(f"v_mfma_f32_32x32x16_bf16 {v(ACC(buf,a_,b),16)}, {v(AF(si%3,a_),4)}, {XF(ks,b)}, {c}")
        elif sg == 4:
            for b in range(2):
                c = "0" if ks == 0 else v(ACC(0,0,b),16)
                mf.append(f"v_mfma_f32_32x32x16_bf16 {v(ACC(0,0,b),16)}, {v(AF(si%3,0),4)}, {XF(ks,b)}, {c}")
        else:
            buf = (sg-5) & 1
            for a_ in range(chunks[sg-5]):
                for b in range(2):
                    c = "0" if ks == 0 else v(ACC2(buf,a_,b),16)
                    mf.append(f"v_mfma_f32_32x32x16_bf16 {v(ACC2(buf,a_,b),16)}, {a(AF2(si%3,a_),4)}, {HF(ks,b)}, {c}")
        ng = len(mf)
        do_bar = si + 2 < nsteps and steps[si+2][1] == 0
        rds = reads_for(si+2) if (si + 2 < nsteps and "nords" not in abl) else []
        nk_stage = 36 if sg <= 4 else 18
        if sg == 5: rem = max(1, 11 - ks) if ks < 11 else max(1, 17 - ks)
        else: rem = max(1, nk_stage - ks - 3)
        want = -(-sum(cost(x) for x in epi_q) // rem) if epi_q else 0
        ev = ev0 if sg == 0 else (ev1 if sg < 4 else (evh if sg == 4 else ev2))
        for gi in range(ng):
            e(mf[gi])
            used = 0
            if gi == ng-1: used += 1
            if gi == 0 and do_bar:
                barrier_for(steps[si+2][0]); used += budget
                gapctr += 1
                if ng > 2: continue
            if now_q and gi >= 1:
                emit_list(now_q); now_q.clear(); used += budget
            left_g = ng - gi
            nrd = min(len(rds), max(rd_per_gap, -(-len(rds) // left_g)))
            if gi == ng-1: nrd = len(rds)
            for it in rds[:nrd]: used += cost(it)
            emit_list(rds[:nrd]); rds = rds[nrd:]
            gapctr += 1
            npend = sum(1 for x in dma_q if is_dma(x))
            evv = ev if npend <= 8 else max(1, ev // 2)
            dma_credit[0] += 1.0 / evv
            if dma_q and dma_credit[0] >= 1.0 and (used + 3 <= budget or dma_credit[0] >= 2.0):
                lst = pop_dma(1); dma_credit[0] -= 1.0
                for it in lst: used += cost(it)
                emit_list(lst)
            if not dma_q: dma_credit[0] = min(dma_credit[0], 1.0)
            while epi_q and want > 0:
                c = cost(epi_q[0])
                must = (gi == ng-1)
                if used + c > budget and not must: break
                used += c; want -= c
                emit_list([epi_q.pop(0)])
        assert not rds
    if profile and fine < 0: stamp()
    assert not dma_q or "nodma" in abl
    emit_list(epi_q)
    if "noepi" not in abl: emit_list(epi2(len(chunks)-1))
    if profile:
        if fine < 0: stamp()
        e("s_waitcnt vmcnt(0)")
        while len(stamps) < 12: stamp()
        e("s_memrealtime s[42:43]"); e("s_waitcnt lgkmcnt(0)")
        e("s_add_u32 s34, s34, 0xC800000"); e("s_addc_u32 s35, s35, 0")
        srd(e, 16, 34, 1<<20)
        e("s_lshl_b32 s53, s2, 2"); e("s_add_u32 s53, s53, s20"); e("s_lshl_b32 s53, s53, 6")
        for i, r in enumerate(stamps[1:]):
            e(f"s_sub_u32 s54, s{r}, s{stamps[0]}")
            e("v_mov_b32 v1, s54"); e(f"v_mov_b32 v2, {4*i}")
            e("buffer_store_dword v1, v2, s[16:19], s53 offen")
        e("s_sub_u32 s54, s42, vcc_lo"); e("v_mov_b32 v1, s54"); e("v_mov_b32 v2, 60")
        e("buffer_store_dword v1, v2, s[16:19], s53 offen")
        e("v_mov_b32 v1, vcc_lo"); e("v_mov_b32 v2, 56")
        e("buffer_store_dword v1, v2, s[16:19], s53 offen")
    e.raw(f"{Lend}:")
    e.raw("s_endpgm")
    print(f"F1: {e.count} instrs, nops inserted {e.nops_inserted}, stamps {len(stamps)}", file=sys.stderr)
    return k

if __name__ == "__main__":
    abl = [x for x in sys.argv[2:] if x.startswith("no")]
    kw = {}
    for x in sys.argv[2:]:
        if "=" in x:
            a_, b_ = x.split("="); kw[a_] = int(b_) if b_.lstrip("-").isdigit() else b_
    k = gen_f1(profile=("prof" in sys.argv[2:]), abl=abl, **kw)
    open(sys.argv[1], "w").write(build([k]))
```

```python
import sys, math
sys.path.insert(0, "gen")
from asmlib import *
from emit import E
LOG2E = 1.4426950408889634
WS_P = 0; WS_UT = 0x2800000; WS_G = 0x2B00000; WS_USED = 0x2C00000
CHP = 31232
ROWP = 528
TBL = 30096
CP = 4160
UT0 = 4*CHP
UTP = 5120
LDS_BYTES = UT0 + 4*UTP
YP = 9216

def gen_k2(name="k2_kernel", profile=False, prefetch_code=True):
    k = K(name, (144,1,1), (512,1,1), LDS_BYTES, 256, sgpr=102)
    e = E(k)
    stamps = []
    def stamp():
        if profile:
            r = 80 + len(stamps); stamps.append(r)
            e("s_memtime s[78:79]"); e("s_waitcnt lgkmcnt(0)"); e(f"s_mov_b32 s{r}, s78")
    Lend = k.label("end")
    e("s_cmp_ge_u32 s2, 144"); e(f"s_cbranch_scc1 {Lend}")
    if profile:
        e("s_memrealtime s[76:77]"); e("s_waitcnt lgkmcnt(0)"); e("s_mov_b32 s75, s76")
    stamp()
    e("s_load_dwordx8 s[8:15], s[0:1], 8")
    e("s_load_dwordx4 s[16:19], s[0:1], 40")
    e("s_load_dwordx2 s[20:21], s[0:1], 96")
    e("s_load_dwordx2 s[22:23], s[0:1], 112")
    if prefetch_code:
        Lpf = k.label("pf")
        e("s_getpc_b64 s[40:41]")
        e.raw(f"{Lpf}:")
        e("v_min_u32 v1, 7, v0"); e("s_lshr_b32 s43, s2, 3"); e("s_lshl_b32 s43, s43, 3"); e("v_add_u32 v1, s43, v1")
        e("v_lshlrev_b32 v1, 7, v1"); e(f"v_min_u32 v1, ({Lend} - {Lpf}), v1")
        e("global_load_dword v127, v1, s[40:41]", tag="pf")
    e("v_mov_b32 v1, v0")
    e("v_lshrrev_b32 v2, 6, v0"); e("v_and_b32 v0, 63, v0")
    e("v_readfirstlane_b32 s24, v2")
    e("s_and_b32 s25, s2, 7"); e("s_mul_i32 s25, s25, 18"); e("s_lshr_b32 s26, s2, 3"); e("s_add_u32 s25, s25, s26")
    e("s_lshr_b32 s27, s24, 1")
    e("s_and_b32 s28, s24, 1")
    e("s_lshl_b32 s29, s25, 2"); e("s_add_u32 s29, s29, s27")
    e(f"s_mul_i32 s30, s27, {CHP}")
    e(f"s_mul_i32 s31, s27, {UTP}"); e(f"s_add_u32 s31, s31, {UT0}")
    e("s_lshl_b32 s32, s28, 6"); e("v_add_u32 v3, s32, v0")
    e("v_lshlrev_b32 v4, 1, v3")
    e("s_lshl_b32 s33, s29, 8")
    e("s_waitcnt lgkmcnt(0)")
    def mksrd(dst, base, n):
        e(f"s_mov_b32 s{dst}, s{base}"); e(f"s_and_b32 s{dst+1}, s{base+1}, 0xffff"); e(f"s_mov_b32 s{dst+2}, {n}"); e(f"s_mov_b32 s{dst+3}, 0x00020000")
    for i in range(4):
        mksrd(44, 8+2*i, 576*256)
        e(f"buffer_load_ushort v{8+i}, v4, s[44:47], s33 offen", tag="par")
    e("s_lshl_b32 s34, s29, 1"); e("v_mov_b32 v5, s34")
    mksrd(44, 16, 1152); e("buffer_load_ushort v12, v5, s[44:47], 0 offen", tag="par")
    mksrd(48, 22, WS_USED)
    mksrd(52, 20, 2048*1152)
    mksrd(56, 18, 1152)
    e("v_lshrrev_b32 v6, 2, v0")
    e("v_and_b32 v7, 3, v0")
    e("v_bfe_u32 v13, v6, 2, 1"); e("v_lshlrev_b32 v13, 1, v13"); e("v_xor_b32 v7, v7, v13")
    e("v_lshlrev_b32 v6, 6, v6"); e("v_lshl_add_u32 v6, v7, 4, v6")
    e("s_lshl_b32 s34, s29, 12"); e("s_lshl_b32 s35, s28, 11"); e("s_add_u32 s34, s34, s35"); e(f"s_add_u32 s34, s34, {WS_UT}")
    e("s_add_u32 s36, s31, 1024"); e("s_add_u32 m0, s36, s35")
    e("buffer_load_dwordx4 v6, s[48:51], s34 offen lds", tag="ut")
    e("buffer_load_dwordx4 v6, s[48:51], s34 offen offset:1024 lds", tag="ut")
    e("v_mov_b32 v14, 0"); e("v_mov_b32 v15, 0"); e("v_mov_b32 v16, 0"); e("v_mov_b32 v17, 0")
    e("v_lshlrev_b32 v13, 4, v0"); e("v_add_u32 v13, s31, v13")
    e("ds_write_b128 v13, v[14:17]", tag="z")
    e("v_lshlrev_b32 v18, 4, v1")
    e("s_lshl_b32 s37, s25, 14")
    PR = 128
    def p_loads(lo, hi):
        for i in range(lo, hi):
            fs, p = i // 2, i % 2
            e(f"s_add_u32 s38, s37, {fs*144*16384 + p*8192}")
            e(f"buffer_load_dwordx4 {v(PR+4*(i%16),4)}, v18, s[48:51], s38 offen", tag=("p", i))
    e(f"s_mov_b32 s38, {WS_G}")
    e("buffer_load_dwordx4 v[112:115], v18, s[48:51], s38 offen", tag="g")
    e(f"s_mov_b32 s38, {WS_G + 8192}")
    e("buffer_load_dwordx4 v[116:119], v18, s[48:51], s38 offen", tag="g")
    e("s_lshl_b32 s38, s25, 3"); e("v_mov_b32 v19, s38")
    e("buffer_load_dwordx2 v[120:121], v19, s[56:59], 0 offen", tag="g")
    PRb = 192
    for i in range(16):
        fs, p = i // 2, i % 2
        e(f"s_add_u32 s38, s37, {fs*144*16384 + p*8192}")
        e(f"buffer_load_dwordx4 {v(PRb+4*i if i < 15 else PRb+60,4)}, v18, s[48:51], s38 offen", tag=("p", i))
    stamp()
    e.wait(vm=["par"])
    for i in range(5): e(f"v_lshlrev_b32 v{8+i}, 16, v{8+i}")
    for r in (12, 8):
        e(f"v_mul_f32 v{r}, {fimm(LOG2E)}, v{r}"); e(f"v_exp_f32 v{r}, v{r}")
        e(f"v_cvt_pk_bf16_f32 v{r}, v{r}, v{r}"); e(f"v_lshlrev_b32 v{r}, 16, v{r}")
    e("v_mul_f32 v8, v8, v12")
    e("v_mul_f32 v9, v9, v12")
    e("v_mul_f32 v10, v10, v12"); e("v_mul_f32 v11, v11, v12")
    e("v_add_f32 v20, v10, v10"); e("v_add_f32 v21, v11, v11")
    e(f"v_mul_f32 v8, {fimm(-LOG2E)}, v8")
    e(f"v_mul_f32 v9, {fimm(1.0/(2*math.pi))}, v9")
    EREG = {1: 22, 2: 24, 4: 26, 8: 28, 128: 30, 256: 32, 512: 34, 1024: 36}
    T = 40
    ps = list(EREG)
    for i, p in enumerate(ps):
        lg = int(math.log2(p))
        e(f"v_ldexp_f32 v{T+3*i}, v8, {lg}") if lg else e(f"v_mov_b32 v{T+3*i}, v8")
        e(f"v_ldexp_f32 v{T+3*i+1}, v9, {lg}") if lg else e(f"v_mov_b32 v{T+3*i+1}, v9")
    for i in range(8): e(f"v_fract_f32 v{T+3*i+1}, v{T+3*i+1}")
    for i in range(8): e(f"v_exp_f32 v{T+3*i}, v{T+3*i}")
    for i in range(8): e(f"v_sin_f32 v{T+3*i+2}, v{T+3*i+1}")
    for i in range(8): e(f"v_cos_f32 v{T+3*i+1}, v{T+3*i+1}")
    for i, p in enumerate(ps):
        e(f"v_mul_f32 v{EREG[p]}, v{T+3*i}, v{T+3*i+1}"); e(f"v_mul_f32 v{EREG[p]+1}, v{T+3*i}, v{T+3*i+2}")
    e("v_lshlrev_b32 v6, 2, v3"); e("v_add_u32 v6, s30, v6")
    def cmul(dst, a_, b_):
        e(f"v_pk_mul_f32 {v(dst,2)}, {v(a_,2)}, {v(b_,2)} op_sel:[0,0] op_sel_hi:[0,1]")
        e(f"v_pk_fma_f32 {v(dst,2)}, {v(a_,2)}, {v(b_,2)}, {v(dst,2)} op_sel:[1,1,0] op_sel_hi:[1,0,1] neg_lo:[0,1,0]")
    wsel = [0]
    def put(row, src, conj=False):
        o = 100 + (wsel[0] & 3); wsel[0] += 1
        e(f"v_cvt_pk_bf16_f32 v{o}, v{src}, {'-' if conj else ''}v{src+1}")
        e(f"ds_write_b32 v6, v{o} offset:{row*ROWP}", tag="uv")
    A0, A1, B0, B1 = 64, 66, 68, 70
    cur = 20
    regs = [64, 66]
    for i in range(8):
        if i > 0:
            nxt = regs[i & 1]; cmul(nxt, cur, EREG[1]); cur = nxt
        put(i, cur)
        cmul(68 + 2*(i & 1), cur, EREG[128]); put(8+i, 68 + 2*(i & 1))
    cmul(72, 20, EREG[256]); cur = 72
    for i in range(4):
        if i > 0:
            nxt = regs[i & 1]; cmul(nxt, cur, EREG[2]); cur = nxt
        put(16+i, cur)
        cmul(68 + 2*(i & 1), cur, EREG[128]); put(20+i, 68 + 2*(i & 1))
    cmul(72, 20, EREG[512]); cmul(74, 72, EREG[4])
    c0_, c1_ = 72, 74
    for i in range(4):
        put(24+2*i, c0_); put(25+2*i, c1_)
        if i < 3:
            n0 = 64 if c0_ != 64 else 72; n1 = 66 if c1_ != 66 else 74
            cmul(n0, c0_, EREG[128]); cmul(n1, c1_, EREG[128]); c0_, c1_ = n0, n1
    cmul(68, 20, EREG[1024]); cur = 68
    for i in range(9):
        put(32+i, cur)
        if i < 8:
            nxt = 70 if cur == 68 else 68; cmul(nxt, cur, EREG[128]); cur = nxt
    e("v_mov_b32 v64, 1.0"); e("v_mov_b32 v65, 0")
    put(41, 64, conj=True); put(42, EREG[8], conj=True)
    cur = EREG[8]
    for j in range(2, 16):
        nxt = 64 if cur != 64 else 66; cmul(nxt, cur, EREG[8]); cur = nxt
        put(41+j, cur, conj=True)
    stamp()
    e.wait_all_ds(); e("s_barrier")
    e("v_and_b32 v7, 15, v0"); e("v_lshrrev_b32 v13, 4, v0")
    e(f"v_mul_u32_u24 v22, {ROWP}, v7"); e("v_lshl_add_u32 v22, v13, 4, v22"); e("v_add_u32 v22, s30, v22")
    Lh1 = k.label("h1"); Lj = k.label("hj")
    KA, KB = 24, 56
    def ktile(tile, acc):
        for s_ in range(8): e(f"ds_read_b128 {v(KA+4*s_,4)}, v22 offset:{tile*16*ROWP + 64*s_}", tag="ka")
        e.wait(ds=["ka", "kb"])
        for s_ in range(8):
            c = "0" if s_ == 0 else v(acc,4)
            e(f"v_mfma_f32_16x16x32_bf16 {v(acc,4)}, {v(KA+4*s_,4)}, {v(KB+4*s_,4)}, {c}")
    for s_ in range(8): e(f"ds_read_b128 {v(KB+4*s_,4)}, v22 offset:{41*ROWP + 64*s_}", tag="kb")
    e("s_cmp_eq_u32 s28, 1"); e(f"s_cbranch_scc1 {Lh1}")
    st = (list(e.ds), list(e.vm))
    ktile(0, 88); ktile(2, 92)
    e("v_lshrrev_b32 v23, 1, v13"); e("v_lshlrev_b32 v23, 8, v23"); e("v_lshl_add_u32 v23, v7, 4, v23")
    e("v_and_b32 v24, 1, v13"); e("v_lshl_add_u32 v23, v24, 3, v23"); e("v_add_u32 v23, s30, v23")
    e("v_cvt_pk_bf16_f32 v24, v88, v89"); e("v_cvt_pk_bf16_f32 v25, v90, v91")
    e.wait_all_ds(); e("s_barrier")
    e("ds_write_b64 v23, v[24:25] offset:64", tag="c0")
    e("v_lshlrev_b32 v23, 7, v13"); e("v_lshl_add_u32 v23, v7, 1, v23"); e("v_add_u32 v23, s30, v23")
    e("v_cvt_pk_bf16_f32 v24, v92, v93"); e("v_cvt_pk_bf16_f32 v25, v94, v95")
    e("v_cmp_gt_u32 vcc, 3, v13"); e("s_and_saveexec_b64 s[60:61], vcc")
    e(f"ds_write_b16 v23, v24 offset:{TBL + 512}", tag="tb")
    e("v_cmp_gt_u32 vcc, 2, v13"); e("s_and_b64 exec, exec, vcc")
    e(f"ds_write_b16_d16_hi v23, v24 offset:{TBL + 512 + 32}", tag="tb")
    e(f"ds_write_b16 v23, v25 offset:{TBL + 512 + 64}", tag="tb")
    e(f"ds_write_b16_d16_hi v23, v25 offset:{TBL + 512 + 96}", tag="tb")
    e("s_mov_b64 exec, s[60:61]")
    e(f"s_branch {Lj}")
    e.raw(f"{Lh1}:")
    e.ds, e.vm = list(st[0]), list(st[1]); e.mfma_w = {}; e.valu_w = {}
    ktile(1, 88)
    e("v_cvt_pk_bf16_f32 v24, v88, v89"); e("v_cvt_pk_bf16_f32 v25, v90, v91")
    e.wait_all_ds(); e("s_barrier")
    e("v_lshlrev_b32 v23, 7, v13"); e("v_lshl_add_u32 v23, v7, 3, v23"); e("v_add_u32 v23, s30, v23")
    e("v_cmp_gt_u32 vcc, 2, v13"); e("s_and_saveexec_b64 s[60:61], vcc")
    e(f"ds_write_b64 v23, v[24:25] offset:{TBL}", tag="tb")
    e("s_andn2_b64 exec, s[60:61], exec")
    e("v_subrev_u32 v23, 2, v13"); e("v_lshlrev_b32 v23, 7, v23"); e("v_lshl_add_u32 v23, v7, 2, v23"); e("v_add_u32 v23, s30, v23")
    e(f"ds_write_b32 v23, v24 offset:{TBL + 256}", tag="tb")
    e(f"ds_write_b32 v23, v25 offset:{TBL + 256 + 64}", tag="tb")
    e("s_mov_b64 exec, s[60:61]")
    e.raw(f"{Lj}:")
    e.mfma_w = {}; e.valu_w = {}; e.ds = ["tb"]
    e.wait_all_ds(); e("s_barrier")
    Le1 = k.label("e1"); Lej = k.label("ej")
    e(f"s_mov_b32 s40, 0x01000100"); e("s_mov_b32 s41, 0x05040100"); e("s_mov_b32 s42, 0x05040504")
    e("s_cmp_eq_u32 s28, 1"); e(f"s_cbranch_scc1 {Le1}")
    e("v_lshlrev_b32 v23, 2, v0"); e("v_add_u32 v23, s30, v23")
    e(f"ds_read_u16 v24, v23 offset:{TBL+512}", tag="x"); e(f"ds_read_u16 v25, v23 offset:{TBL+514}", tag="x"); e(f"ds_read_u16 v26, v23 offset:{TBL+516}", tag="x")
    e("v_lshlrev_b32 v27, 5, v0"); e("v_add_u32 v27, s30, v27")
    e.wait_all_ds()
    e("v_perm_b32 v28, v24, v24, s40"); e("v_mov_b32 v29, v28"); e("v_perm_b32 v30, v25, v24, s41"); e("v_perm_b32 v31, v25, v25, s40")
    e("v_perm_b32 v32, v25, v25, s40"); e("v_mov_b32 v33, v32"); e("v_perm_b32 v34, v26, v26, s40"); e("v_mov_b32 v35, v34")
    e(f"ds_write_b128 v27, v[28:31] offset:{64 + 2048}", tag="c0"); e(f"ds_write_b128 v27, v[32:35] offset:{64 + 2048 + 16}", tag="c0")
    e("v_mov_b32 v36, 0"); e("v_mov_b32 v37, 0"); e("v_min_u32 v38, 7, v0"); e("v_lshlrev_b32 v38, 3, v38"); e("v_add_u32 v38, s30, v38")
    e("ds_write_b64 v38, v[36:37]", tag="c0")
    e(f"s_branch {Lej}")
    e.raw(f"{Le1}:")
    e.ds = []; e.valu_w = {}
    e("v_lshlrev_b32 v23, 2, v0"); e("v_add_u32 v23, s30, v23")
    for sg_, base in ((1, TBL), (2, TBL+256)):
        r0 = 24 if sg_ == 1 else 28
        e(f"ds_read_u16 v{r0}, v23 offset:{base}", tag="x"); e(f"ds_read_u16 v{r0+1}, v23 offset:{base+2}", tag="x"); e(f"ds_read_u16 v{r0+2}, v23 offset:{base+4}", tag="x")
    e("v_lshlrev_b32 v27, 3, v0"); e("v_add_u32 v27, s30, v27"); e("v_lshlrev_b32 v31, 4, v0"); e("v_add_u32 v31, s30, v31")
    e.wait_all_ds()
    e("v_perm_b32 v32, v24, v24, s40"); e("v_perm_b32 v33, v26, v25, s41")
    e(f"ds_write_b64 v27, v[32:33] offset:{64 + 512}", tag="c0")
    e("v_perm_b32 v36, v28, v28, s40"); e("v_perm_b32 v37, v29, v28, s41"); e("v_perm_b32 v38, v29, v29, s40"); e("v_perm_b32 v39, v30, v30, s40")
    e(f"ds_write_b128 v31, v[36:39] offset:{64 + 1024}", tag="c0")
    e.raw(f"{Lej}:")
    e.ds = ["c0"]; e.valu_w = {}
    e.wait_all_ds(); e("s_barrier")
    for ps_ in range(3):
        e(f"s_mul_i32 s34, s28, 130"); e(f"s_add_u32 s34, s34, {64*ps_}")
        e("v_add_u32 v23, s34, v0")
        if ps_ == 2:
            e("s_mul_i32 s35, s28, 130"); e("s_add_u32 s35, s35, 129"); e("v_min_u32 v23, s35, v23")
        e("v_lshlrev_b32 v23, 4, v23"); e("v_add_u32 v23, s30, v23")
        e("v_subrev_u32 v24, 8, v23")
        e("v_max_u32 v24, s30, v24") if False else None
        e("ds_read_b128 v[28:31], v23", tag="cr")
        e("v_max_i32 v24, 0, v24")
        e("ds_read_b64 v[26:27], v24", tag="cr")
        e.wait_all_ds()
        e("v_alignbit_b32 v32, v28, v27, 16"); e("v_alignbit_b32 v33, v29, v28, 16"); e("v_alignbit_b32 v34, v30, v29, 16"); e("v_alignbit_b32 v35, v31, v30, 16")
        e(f"ds_write_b128 v23, v[32:35] offset:{CP}", tag="cw")
        e("v_mov_b32 v36, v27"); e("v_mov_b32 v37, v28"); e("v_mov_b32 v38, v29"); e("v_mov_b32 v39, v30")
        e(f"ds_write_b128 v23, v[36:39] offset:{2*CP}", tag="cw")
        e("v_alignbit_b32 v40, v27, v26, 16"); e("v_mov_b32 v41, v32"); e("v_mov_b32 v42, v33"); e("v_mov_b32 v43, v34")
        e(f"ds_write_b128 v23, v[40:43] offset:{3*CP}", tag="cw")
    stamp()
    PA = 44
    def p_consume(lo, hi, first):
        for i in range(lo, hi):
            e.wait(vm=[("p", i)])
            p = i % 2; r = PRb + 4*(i % 16)
            for d_ in range(4):
                a0 = PA + 8*p + 4*(d_ >> 1) + 2*(d_ & 1)
                if first and i < 2:
                    e(f"v_lshlrev_b32 v{a0}, 16, v{r+d_}"); e(f"v_and_b32 v{a0+1}, 0xffff0000, v{r+d_}")
                else:
                    e(f"v_lshlrev_b32 v60, 16, v{r+d_}"); e(f"v_and_b32 v61, 0xffff0000, v{r+d_}")
                    e(f"v_add_f32 v{a0}, v{a0}, v60"); e(f"v_add_f32 v{a0+1}, v{a0+1}, v61")
    p_consume(0, 16, True)
    for i in range(16, 32):
        fs, p = i // 2, i % 2
        e(f"s_add_u32 s38, s37, {fs*144*16384 + p*8192}")
        e(f"buffer_load_dwordx4 {v(PRb+4*(i%16),4)}, v18, s[48:51], s38 offen", tag=("p", i))
    e.wait(vm=["ut"])
    e.wait_all_ds(); e("s_barrier")
    stamp()
    e("v_bfe_u32 v23, v0, 2, 2"); e(f"v_mul_u32_u24 v23, {CP}, v23")
    e("v_and_b32 v24, 3, v0"); e("v_lshl_add_u32 v23, v24, 3, v23")
    e("v_lshlrev_b32 v24, 4, v13"); e("v_sub_u32 v23, v23, v24")
    e("s_lshl_b32 s34, s28, 9"); e("s_add_u32 s34, s34, s30"); e(f"s_add_u32 s34, s34, {64 - 8}"); e("v_add_u32 v23, s34, v23")
    VA = 23
    ACCc = 64
    AFr = lambda st, j, rt: (128 if st == 0 else 160) + (j*2+rt)*4
    BFr = lambda st, m: (96 if st == 0 else 0) + m*4
    BF = lambda st, m: (96 + 4*m) if st == 0 else (24 + 4*m)
    def conv_reads(i, st):
        e(f"s_lshl_b32 s35, s28, 3"); e(f"s_sub_u32 s35, {16 - i}, s35")
        e("v_add_u32 v62, s35, v7")
        e("v_bfe_u32 v63, v62, 2, 1"); e("v_lshlrev_b32 v63, 1, v63"); e("v_xor_b32 v63, v63, v13")
        e("v_lshlrev_b32 v62, 6, v62"); e("v_lshl_add_u32 v62, v63, 4, v62"); e("v_add_u32 v62, s31, v62")
        for m in range(4): e(f"ds_read_b128 {v(BF(st,m),4)}, v62 offset:{1024*m}", tag=("cv", i))
        for j in range(4):
            for rt in range(2):
                for t in range(2):
                    e(f"ds_read_b64_tr_b16 {v(AFr(st,j,rt)+2*t,2)}, v{VA} offset:{64*i + 1024*j + 32*rt - 8*t + 8}", tag=("cv", i))
    conv_reads(0, 0)
    first = set()
    for i in range(8):
        st = i & 1
        if i + 1 < 8:
            pass
        e.wait(ds=[("cv", i)])
        mf = []
        for j in range(4):
            for ct in range(j, 4):
                for rt in range(2):
                    acc = ACCc + (ct*2+rt)*4
                    c = v(acc,4) if (ct, rt) in first else "0"
                    first.add((ct, rt))
                    mf.append(f"v_mfma_f32_16x16x32_bf16 {v(acc,4)}, {v(AFr(st,j,rt),4)}, {v(BF(st,ct-j),4)}, {c}")
        if i + 1 < 8:
            save = k.lines; k.lines = []; est = (list(e.ds), e.pos)
            rl = []
            d0 = i + 1; s2 = (i+1) & 1
            rl.append(f"s_lshl_b32 s35, s28, 3"); rl.append(f"s_sub_u32 s35, {16 - d0}, s35")
            rl.append("v_add_u32 v62, s35, v7"); rl.append("v_bfe_u32 v63, v62, 2, 1"); rl.append("v_lshlrev_b32 v63, 1, v63"); rl.append("v_xor_b32 v63, v63, v13")
            rl.append("v_lshlrev_b32 v62, 6, v62"); rl.append("v_lshl_add_u32 v62, v63, 4, v62"); rl.append("v_add_u32 v62, s31, v62")
            for m in range(4): rl.append((f"ds_read_b128 {v(BF(s2,m),4)}, v62 offset:{1024*m}", ("cv", d0)))
            for j in range(4):
                for rt in range(2):
                    for t in range(2):
                        rl.append((f"ds_read_b64_tr_b16 {v(AFr(s2,j,rt)+2*t,2)}, v{VA} offset:{64*d0 + 1024*j + 32*rt - 8*t + 8}", ("cv", d0)))
            k.lines = save
        else: rl = []
        per = -(-len(rl) // len(mf)) if rl else 0
        idx = 0
        for m_ in mf:
            e(m_)
            for _ in range(2):
                if idx < len(rl):
                    it = rl[idx]; idx += 1
                    if isinstance(it, tuple): e(it[0], tag=it[1])
                    else: e(it)
        while idx < len(rl):
            it = rl[idx]; idx += 1
            if isinstance(it, tuple): e(it[0], tag=it[1])
            else: e(it)
    stamp()
    p_consume(16, 32, False)
    e("s_barrier")
    e("s_lshl_b32 s34, s28, 2"); e("s_add_u32 s34, s34, s27"); e(f"s_mul_i32 s34, s34, {YP}")
    e("v_mul_u32_u24 v62, 144, v7"); e("v_lshl_add_u32 v62, v13, 4, v62"); e("v_add_u32 v62, s34, v62")
    for ct in range(4):
        for rt in range(2):
            e(f"ds_write_b128 v62, {v(ACCc+(ct*2+rt)*4,4)} offset:{ct*16*144 + rt*64}", tag="y")
    e.wait_all_ds(); e("s_barrier")
    e("v_lshrrev_b32 v62, 4, v1"); e("v_mul_u32_u24 v62, 144, v62"); e("v_and_b32 v63, 15, v1"); e("v_lshl_add_u32 v62, v63, 3, v62")
    e("v_lshrrev_b32 v24, 4, v1")
    e("v_bfe_u32 v25, v24, 2, 1"); e("v_lshlrev_b32 v25, 1, v25"); e("v_bfe_u32 v26, v1, 2, 2"); e("v_xor_b32 v25, v25, v26")
    e("v_lshlrev_b32 v24, 6, v24"); e("v_lshl_add_u32 v24, v25, 4, v24"); e("v_and_b32 v25, 3, v1"); e("v_lshl_add_u32 v24, v25, 2, v24")
    e(f"v_add_u32 v24, {UT0 + 1024}, v24")
    YR = 128; UR = 160
    e(f"v_add_u32 v63, {32*144}, v62")
    for p in range(2):
        for ch in range(4):
            for h in range(2):
                e(f"ds_read_b64 {v(YR + 16*p + 4*ch + 2*h, 2)}, v{62+p} offset:{(h*4+ch)*YP}", tag="yr")
            e(f"ds_read_b32 v{UR + 4*p + ch}, v24 offset:{ch*UTP + p*2048}", tag="yr")
    e.wait(vm=["g"])
    e("v_lshlrev_b32 v122, 16, v120"); e("v_and_b32 v123, 0xffff0000, v120"); e("v_lshlrev_b32 v124, 16, v121"); e("v_and_b32 v125, 0xffff0000, v121")
    e("v_lshlrev_b32 v26, 1, v1"); e("s_movk_i32 s34, 1152"); e("v_mul_lo_u32 v26, v26, s34"); e("s_lshl_b32 s35, s25, 3")
    e.wait_all_ds()
    def rne(dst, src):
        e(f"v_cvt_pk_bf16_f32 v{dst}, v{src}, v{src}"); e(f"v_lshlrev_b32 v{dst}, 16, v{dst}")
    for p in range(2):
        for tk in range(2):
            g_ = 112 + 4*p + 2*tk
            res = []
            for ch in range(4):
                y0 = YR + 16*p + 4*ch + tk; y1 = y0 + 2
                t0 = 28 + ch
                e(f"v_add_f32 v{t0}, v{y0}, v{y1}"); rne(t0, t0)
                ur = UR + 4*p + ch
                if tk == 0: e(f"v_lshlrev_b32 v32, 16, v{ur}")
                else: e(f"v_and_b32 v32, 0xffff0000, v{ur}")
                e(f"v_mul_f32 v32, v32, v{122+ch}"); rne(32, 32)
                e(f"v_add_f32 v{t0}, v{t0}, v32"); rne(t0, t0)
                e(f"v_mul_f32 v{t0}, v{t0}, v{g_}"); rne(t0, t0)
                b_ = PA + 8*p + 4*tk + ch
                rne(33, b_)
                e(f"v_mul_f32 v33, v33, v{g_+1}"); rne(33, 33)
                e(f"v_add_f32 v{t0}, v{t0}, v33")
            o = 36 + 2*(2*p+tk)
            e(f"v_cvt_pk_bf16_f32 v{o}, v28, v29"); e(f"v_cvt_pk_bf16_f32 v{o+1}, v30, v31")
            e(f"s_add_u32 s36, s35, {(1024*p + tk)*1152}")
            e(f"buffer_store_dwordx2 {v(o,2)}, v26, s[52:55], s36 offen", tag="o")
    if profile:
        stamp(); e("s_waitcnt vmcnt(0)"); stamp()
        e("s_memrealtime s[76:77]"); e("s_waitcnt lgkmcnt(0)")
        e("s_add_u32 s22, s22, 0xC900000"); e("s_addc_u32 s23, s23, 0")
        mksrd(48, 22, 1<<20)
        e("s_lshl_b32 s34, s2, 3"); e("s_add_u32 s34, s34, s24"); e("s_lshl_b32 s34, s34, 6")
        for i, r in enumerate(stamps[1:]):
            e(f"s_sub_u32 s35, s{r}, s{stamps[0]}"); e("v_mov_b32 v1, s35"); e(f"v_mov_b32 v2, {4*i}")
            e("buffer_store_dword v1, v2, s[48:51], s34 offen")
        e("s_sub_u32 s35, s76, s75"); e("v_mov_b32 v1, s35"); e("v_mov_b32 v2, 60"); e("buffer_store_dword v1, v2, s[48:51], s34 offen")
        e("v_mov_b32 v1, s75"); e("v_mov_b32 v2, 56"); e("buffer_store_dword v1, v2, s[48:51], s34 offen")
    e.raw(f"{Lend}:")
    e.raw("s_endpgm")
    print(f"K2: {e.count} instrs, nops inserted {e.nops_inserted}", file=sys.stderr)
    return k

if __name__ == "__main__":
    k = gen_k2(profile=("prof" in sys.argv[2:]))
    open(sys.argv[1], "w").write(build([k]))
```

```python
import sys
sys.path.insert(0, "gen")
from asmlib import *
from f1 import gen_f1
from k2 import gen_k2
def parse(args):
    kw = {}
    for x in args:
        if "=" in x:
            a_, b_ = x.split("="); kw[a_] = int(b_) if b_.lstrip("-").isdigit() else b_
    return kw
prof = "prof" in sys.argv[2:]
k1 = gen_f1(name="ffn_fused_kernel", profile=False, **parse(sys.argv[2:]))
k2 = gen_k2(name="ssm_mix_kernel", profile=prof)
open(sys.argv[1], "w").write(build([k1, k2]))
```

```python
import sys, math
sys.path.insert(0, "gen")
from asmlib import *
from emit import E
LOG2E = 1.4426950408889634
WS_P = 0; WS_UT = 0x2800000; WS_G = 0x2B00000; WS_USED = 0x2C00000
ROWP = 528
TBL = 57*ROWP
CHP = 31616
CP = 4160
UT0 = 4*CHP
UTP = 5120
LDS_BYTES = UT0 + 4*UTP
YP = 9216

def gen_k2(name="k2_kernel", profile=False, prefetch_code=True, nsplit=16, bg_period=280, lag=6, out_flags=""):
    k = K(name, (144,1,1), (512,1,1), LDS_BYTES, 256, sgpr=102)
    e0 = E(k)
    NP = 2*nsplit
    PRb = 192; PA = 44
    bg = []
    for i in range(NP + lag):
        grp = []
        if i < NP:
            fs, p = i // 2, i % 2
            grp.append(f"s_add_u32 s38, s37, {fs*144*16384 + p*8192}")
            grp.append((f"buffer_load_dwordx4 {v(PRb+4*(i%8),4)}, v18, s[48:51], s38 offen", ("p", i)))
        j = i - lag
        if j >= 0:
            grp.append(("WAITVM", ("p", j)))
            p = j % 2; r = PRb + 4*(j % 8)
            for d_ in range(4):
                a0 = PA + 8*p + 4*(d_ >> 1) + 2*(d_ & 1)
                grp.append(f"v_dot2c_f32_bf16 v{a0}, s39, v{r+d_}"); grp.append(f"v_dot2c_f32_bf16 v{a0+1}, s40, v{r+d_}")
        bg.append(grp)
    state = {"on": False, "cnt": 0}
    def bg_pop():
        for it in bg.pop(0):
            if isinstance(it, tuple) and it[0] == "WAITVM": e0.wait(vm=[it[1]])
            elif isinstance(it, tuple): e0(it[0], tag=it[1])
            else: e0(it)
    class W:
        def __call__(self, text, tag=None):
            e0(text, tag)
            if state["on"] and bg:
                op = text.split()[0]
                state["cnt"] += 32 if op.startswith("v_mfma") else (8 if op.startswith(("v_exp","v_sin","v_cos","ds_")) else 5)
                if state["cnt"] >= bg_period:
                    state["cnt"] -= bg_period; bg_pop()
        def __getattr__(self, n): return getattr(e0, n)
        def __setattr__(self, n, val): setattr(e0, n, val)
    e = W()
    stamps = []
    def stamp():
        if profile:
            r = 80 + len(stamps); stamps.append(r)
            e0("s_memtime s[78:79]"); e0("s_waitcnt lgkmcnt(0)"); e0(f"s_mov_b32 s{r}, s78")
    Lend = k.label("end")
    e("s_cmp_ge_u32 s2, 144"); e(f"s_cbranch_scc1 {Lend}")
    if profile:
        e("s_memrealtime s[76:77]"); e("s_waitcnt lgkmcnt(0)"); e("s_mov_b32 s90, s76")
    stamp()
    e("s_load_dwordx8 s[8:15], s[0:1], 8")
    e("s_load_dwordx4 s[16:19], s[0:1], 40")
    e("s_load_dwordx2 s[20:21], s[0:1], 96")
    e("s_load_dwordx2 s[22:23], s[0:1], 112")
    if prefetch_code:
        Lpf = k.label("pf")
        e("s_getpc_b64 s[40:41]")
        e.raw(f"{Lpf}:")
        e("v_min_u32 v1, 7, v0"); e("s_lshr_b32 s43, s2, 3"); e("s_lshl_b32 s43, s43, 3"); e("v_add_u32 v1, s43, v1")
        e("v_lshlrev_b32 v1, 7, v1"); e(f"v_min_u32 v1, ({Lend} - {Lpf}), v1")
        e("global_load_dword v127, v1, s[40:41]", tag="pf")
    e("v_mov_b32 v1, v0")
    e("v_lshrrev_b32 v2, 6, v0"); e("v_and_b32 v0, 63, v0")
    e("v_readfirstlane_b32 s24, v2")
    e("s_and_b32 s25, s2, 7"); e("s_mul_i32 s25, s25, 18"); e("s_lshr_b32 s26, s2, 3"); e("s_add_u32 s25, s25, s26")
    e("s_lshr_b32 s27, s24, 1")
    e("s_and_b32 s28, s24, 1")
    e("s_lshl_b32 s29, s25, 2"); e("s_add_u32 s29, s29, s27")
    e(f"s_mul_i32 s30, s27, {CHP}")
    e(f"s_mul_i32 s31, s27, {UTP}"); e(f"s_add_u32 s31, s31, {UT0}")
    e("s_lshl_b32 s32, s28, 6"); e("v_add_u32 v3, s32, v0")
    e("v_lshlrev_b32 v4, 1, v3")
    e("s_lshl_b32 s33, s29, 8")
    e("s_lshl_b32 s34, s29, 1"); e("v_mov_b32 v5, s34")
    e("v_lshrrev_b32 v6, 2, v0"); e("v_and_b32 v7, 3, v0")
    e("v_bfe_u32 v13, v6, 2, 1"); e("v_lshlrev_b32 v13, 1, v13"); e("v_xor_b32 v7, v7, v13")
    e("v_lshlrev_b32 v6, 6, v6"); e("v_lshl_add_u32 v6, v7, 4, v6")
    e("s_lshl_b32 s34, s29, 12"); e("s_lshl_b32 s35, s28, 11"); e("s_add_u32 s34, s34, s35"); e(f"s_add_u32 s34, s34, {WS_UT}")
    e("s_add_u32 s36, s31, 1024"); e("s_add_u32 m0, s36, s35")
    e("v_lshlrev_b32 v18, 4, v1")
    e("s_lshl_b32 s37, s25, 14")
    e("s_mov_b32 s39, 0x00003f80"); e("s_mov_b32 s40, 0x3f800000")
    for i in range(16): e(f"v_mov_b32 v{PA+i}, 0")
    e("v_mov_b32 v14, 0"); e("v_mov_b32 v15, 0"); e("v_mov_b32 v16, 0"); e("v_mov_b32 v17, 0")
    e("v_lshlrev_b32 v13, 4, v0"); e("v_add_u32 v13, s31, v13")
    e("ds_write_b128 v13, v[14:17]", tag="z")
    e("s_waitcnt lgkmcnt(0)")
    def mksrd(dst, base, n):
        e(f"s_mov_b32 s{dst}, s{base}"); e(f"s_and_b32 s{dst+1}, s{base+1}, 0xffff"); e(f"s_mov_b32 s{dst+2}, {n}"); e(f"s_mov_b32 s{dst+3}, 0x00020000")
    for i in range(4):
        mksrd(60+4*i, 8+2*i, 576*256)
    mksrd(44, 16, 1152)
    for i in range(4): e(f"buffer_load_ushort v{8+i}, v4, s[{60+4*i}:{63+4*i}], s33 offen", tag="par")
    e("buffer_load_ushort v12, v5, s[44:47], 0 offen", tag="par")
    mksrd(48, 22, WS_USED)
    e("buffer_load_dwordx4 v6, s[48:51], s34 offen lds", tag="ut")
    e("buffer_load_dwordx4 v6, s[48:51], s34 offen offset:1024 lds", tag="ut")
    mksrd(52, 20, 2048*1152)
    mksrd(56, 18, 1152)
    e(f"s_mov_b32 s38, {WS_G}")
    e("buffer_load_dwordx4 v[112:115], v18, s[48:51], s38 offen", tag="g")
    e(f"s_mov_b32 s38, {WS_G + 8192}")
    e("buffer_load_dwordx4 v[116:119], v18, s[48:51], s38 offen", tag="g")
    e("s_lshl_b32 s38, s25, 3"); e("v_mov_b32 v19, s38")
    e("buffer_load_dwordx2 v[120:121], v19, s[56:59], 0 offen", tag="g")
    for _ in range(3): bg_pop()
    stamp()
    e.wait(vm=["par"])
    state["on"] = True
    for i in range(5): e(f"v_lshlrev_b32 v{8+i}, 16, v{8+i}")
    for r in (12, 8):
        e(f"v_mul_f32 v{r}, {fimm(LOG2E)}, v{r}"); e(f"v_exp_f32 v{r}, v{r}")
        e(f"v_cvt_pk_bf16_f32 v{r}, v{r}, v{r}"); e(f"v_lshlrev_b32 v{r}, 16, v{r}")
    e("v_mul_f32 v8, v8, v12"); e("v_mul_f32 v9, v9, v12")
    e("v_mul_f32 v10, v10, v12"); e("v_mul_f32 v11, v11, v12")
    e("v_add_f32 v20, v10, v10"); e("v_add_f32 v21, v11, v11")
    e(f"v_mul_f32 v8, {fimm(-LOG2E)}, v8")
    e(f"v_mul_f32 v9, {fimm(1.0/(2*math.pi))}, v9")
    EREG = {1: 22, 2: 24, 4: 26, 8: 28, 128: 30, 256: 32, 512: 34, 1024: 36}
    T = 64
    ps = list(EREG)
    for i, p in enumerate(ps):
        lg = int(math.log2(p))
        if lg:
            e(f"v_ldexp_f32 v{T+3*i}, v8, {lg}"); e(f"v_ldexp_f32 v{T+3*i+1}, v9, {lg}")
        else:
            e(f"v_mov_b32 v{T+3*i}, v8"); e(f"v_mov_b32 v{T+3*i+1}, v9")
    for i in range(8): e(f"v_fract_f32 v{T+3*i+1}, v{T+3*i+1}")
    for i in range(8): e(f"v_exp_f32 v{T+3*i}, v{T+3*i}")
    for i in range(8): e(f"v_sin_f32 v{T+3*i+2}, v{T+3*i+1}")
    for i in range(8): e(f"v_cos_f32 v{T+3*i+1}, v{T+3*i+1}")
    for i, p in enumerate(ps):
        e(f"v_mul_f32 v{EREG[p]}, v{T+3*i}, v{T+3*i+1}"); e(f"v_mul_f32 v{EREG[p]+1}, v{T+3*i}, v{T+3*i+2}")
    e("v_lshlrev_b32 v6, 2, v3"); e("v_add_u32 v6, s30, v6")
    def cmul(dst, a_, b_):
        e(f"v_pk_mul_f32 {v(dst,2)}, {v(a_,2)}, {v(b_,2)} op_sel:[0,0] op_sel_hi:[0,1]")
        e(f"v_pk_fma_f32 {v(dst,2)}, {v(a_,2)}, {v(b_,2)}, {v(dst,2)} op_sel:[1,1,0] op_sel_hi:[1,0,1] neg_lo:[0,1,0]")
    wsel = [0]
    def put(row, src, conj=False):
        o = 100 + (wsel[0] & 3); wsel[0] += 1
        e(f"v_cvt_pk_bf16_f32 v{o}, v{src}, {'-' if conj else ''}v{src+1}")
        e(f"ds_write_b32 v6, v{o} offset:{row*ROWP}", tag="uv")
    def chain_seg0():
        cur = 20; regs = [64, 66]
        for i in range(8):
            if i > 0:
                nxt = regs[i & 1]; yield ("c", nxt, cur, EREG[1]); cur = nxt
            yield ("p", i, cur, False)
            yield ("c", 68 + 2*(i & 1), cur, EREG[128]); yield ("p", 8+i, 68 + 2*(i & 1), False)
    def chain_seg12():
        yield ("c", 72, 20, EREG[256]); cur = 72; regs = [74, 76]
        for i in range(4):
            if i > 0:
                nxt = regs[i & 1]; yield ("c", nxt, cur, EREG[2]); cur = nxt
            yield ("p", 16+i, cur, False)
            yield ("c", 78 + 2*(i & 1), cur, EREG[128]); yield ("p", 20+i, 78 + 2*(i & 1), False)
        yield ("c", 72, 20, EREG[512]); yield ("c", 74, 72, EREG[4])
        c0_, c1_ = 72, 74
        for i in range(4):
            yield ("p", 24+2*i, c0_, False); yield ("p", 25+2*i, c1_, False)
            if i < 3:
                n0 = 76 if c0_ != 76 else 72; n1 = 78 if c1_ != 78 else 74
                yield ("c", n0, c0_, EREG[128]); yield ("c", n1, c1_, EREG[128]); c0_, c1_ = n0, n1
    def chain_seg3():
        yield ("c", 82, 20, EREG[1024]); cur = 82
        for i in range(9):
            yield ("p", 32+i, cur, False)
            if i < 8:
                nxt = 84 if cur == 82 else 82; yield ("c", nxt, cur, EREG[128]); cur = nxt
    def chain_v():
        yield ("m", 86); yield ("p", 41, 86, True); yield ("p", 42, EREG[8], True)
        cur = EREG[8]
        for j in range(2, 16):
            nxt = 86 if cur != 86 else 88; yield ("c", nxt, cur, EREG[8]); cur = nxt
            yield ("p", 41+j, cur, True)
    chains = [chain_seg0(), chain_seg12(), chain_seg3(), chain_v()]
    live = list(chains)
    while live:
        for c in list(live):
            try: it = next(c)
            except StopIteration: live.remove(c); continue
            if it[0] == "c": cmul(it[1], it[2], it[3])
            elif it[0] == "p": put(it[1], it[2], it[3])
            else: e(f"v_mov_b32 v{it[1]}, 1.0"); e(f"v_mov_b32 v{it[1]+1}, 0")
    stamp()
    e("v_and_b32 v7, 15, v0"); e("v_lshrrev_b32 v13, 4, v0")
    e(f"v_mul_u32_u24 v22, {ROWP}, v7"); e("v_lshl_add_u32 v22, v13, 4, v22"); e("v_add_u32 v22, s30, v22")
    e.wait_all_ds(); e("s_barrier")
    KB = 64; KA = 96; KD = 24
    KA = 128
    for s_ in range(8): e(f"ds_read_b128 {v(KB+4*s_,4)}, v22 offset:{41*ROWP + 64*s_}", tag="kb")
    for tile in range(2):
        for s_ in range(8): e(f"ds_read_b128 {v(KA+32*tile+4*s_,4)}, v22 offset:{tile*16*ROWP + 64*s_}", tag=("ka", tile))
    def kt(tile, areg):
        e.wait(ds=[("ka", tile), "kb"])
        for s_ in range(8):
            c = "0" if s_ == 0 else v(KD+4*tile,4)
            e(f"v_mfma_f32_16x16x32_bf16 {v(KD+4*tile,4)}, {v(areg+4*s_,4)}, {v(KB+4*s_,4)}, {c}")
    kt(0, KA)
    for s_ in range(8): e(f"ds_read_b128 {v(KA+4*s_,4)}, v22 offset:{2*16*ROWP + 64*s_}", tag=("ka", 2))
    kt(1, KA+32)
    kt(2, KA)
    e("v_lshrrev_b32 v36, 1, v13"); e("v_lshlrev_b32 v36, 8, v36"); e("v_lshl_add_u32 v36, v7, 4, v36")
    e("v_and_b32 v37, 1, v13"); e("v_lshl_add_u32 v36, v37, 3, v36"); e("v_add_u32 v36, s30, v36")
    e("v_cvt_pk_bf16_f32 v38, v24, v25"); e("v_cvt_pk_bf16_f32 v39, v26, v27")
    e(f"ds_write_b64 v36, v[38:39] offset:{TBL}", tag="tb")
    T1 = TBL + 512; T2 = T1 + 256; T3 = T2 + 256
    e("v_lshlrev_b32 v36, 7, v13"); e("v_lshl_add_u32 v37, v7, 3, v36")
    e("v_lshl_add_u32 v36, v7, 2, v36")
    e("v_cmp_gt_u32 vcc, 2, v13")
    e("v_cndmask_b32 v36, v36, v37, vcc")
    e("v_mov_b32 v37, 64"); e("v_cndmask_b32 v37, v37, 4, vcc") if False else None
    e("v_mov_b32 v40, 64"); e("v_mov_b32 v41, 4"); e("v_cndmask_b32 v37, v40, v41, vcc")
    e("v_add_u32 v36, s30, v36"); e("v_add_u32 v37, v36, v37")
    e("v_cvt_pk_bf16_f32 v38, v28, v29"); e("v_cvt_pk_bf16_f32 v39, v30, v31")
    e(f"ds_write_b32 v36, v38 offset:{T1}", tag="tb"); e(f"ds_write_b32 v37, v39 offset:{T1}", tag="tb")
    e("v_lshlrev_b32 v36, 7, v13"); e("v_lshl_add_u32 v36, v7, 1, v36"); e("v_add_u32 v36, s30, v36")
    e("v_cvt_pk_bf16_f32 v38, v32, v33"); e("v_cvt_pk_bf16_f32 v39, v34, v35")
    e("v_min_u32 v37, 2, v13"); e("v_lshlrev_b32 v37, 7, v37"); e("v_lshl_add_u32 v37, v7, 1, v37"); e("v_add_u32 v37, s30, v37")
    e("v_cmp_gt_u32 vcc, 3, v13"); e("s_and_saveexec_b64 s[76:77], vcc") if False else None
    e("v_cmp_eq_u32 vcc, 3, v13"); e("v_add_u32 v40, 0x60, v37"); e("v_cndmask_b32 v41, v36, v40, vcc")
    e(f"ds_write_b16 v41, v38 offset:{T3}", tag="tb")
    e(f"ds_write_b16_d16_hi v37, v38 offset:{T3 + 32}", tag="tb")
    e(f"ds_write_b16 v37, v39 offset:{T3 + 64}", tag="tb")
    e(f"ds_write_b16_d16_hi v37, v39 offset:{T3 + 96}", tag="tb")
    e.wait_all_ds(); e("s_barrier")
    stamp()
    e("s_mov_b32 s41, 0x01000100"); e("s_mov_b32 s42, 0x05040100")
    e("v_lshlrev_b32 v23, 2, v0"); e("v_add_u32 v23, s30, v23")
    for sg_, base in ((1, T1), (2, T2), (3, T3)):
        r0 = 24 + 4*(sg_-1)
        for q in range(3): e(f"ds_read_u16 v{r0+q}, v23 offset:{base+2*q}", tag="x")
    e("v_lshlrev_b32 v27, 3, v0"); e("v_add_u32 v27, s30, v27")
    e(f"ds_read_b64 v[36:37], v27 offset:{TBL}", tag="x")
    e("v_lshlrev_b32 v31, 4, v0"); e("v_add_u32 v31, s30, v31"); e("v_lshlrev_b32 v35, 5, v0"); e("v_add_u32 v35, s30, v35")
    e("v_mov_b32 v38, 0"); e("v_mov_b32 v39, 0"); e("v_min_u32 v40, 7, v0"); e("v_lshlrev_b32 v40, 3, v40"); e("v_add_u32 v40, s30, v40")
    e("ds_write_b64 v40, v[38:39]", tag="c0")
    e.wait(ds=["x"])
    e(f"ds_write_b64 v27, v[36:37] offset:64", tag="c0")
    e("v_perm_b32 v64, v24, v24, s41"); e("v_perm_b32 v65, v26, v25, s42")
    e(f"ds_write_b64 v27, v[64:65] offset:{64 + 512}", tag="c0")
    e("v_perm_b32 v68, v28, v28, s41"); e("v_perm_b32 v69, v29, v28, s42"); e("v_perm_b32 v70, v29, v29, s41"); e("v_perm_b32 v71, v30, v30, s41")
    e(f"ds_write_b128 v31, v[68:71] offset:{64 + 1024}", tag="c0")
    e("v_perm_b32 v72, v32, v32, s41"); e("v_mov_b32 v73, v72"); e("v_perm_b32 v74, v33, v32, s42"); e("v_perm_b32 v75, v33, v33, s41")
    e("v_mov_b32 v76, v75"); e("v_mov_b32 v77, v75"); e("v_perm_b32 v78, v34, v34, s41"); e("v_mov_b32 v79, v78")
    e(f"ds_write_b128 v35, v[72:75] offset:{64 + 2048}", tag="c0"); e(f"ds_write_b128 v35, v[76:79] offset:{64 + 2048 + 16}", tag="c0")
    e.wait_all_ds()
    for ps_ in range(3):
        a_ = 24 + ps_
        e(f"s_mul_i32 s34, s28, 130"); e(f"s_add_u32 s34, s34, {64*ps_}")
        e(f"v_add_u32 v{a_}, s34, v0")
        if ps_ == 2:
            e("s_mul_i32 s35, s28, 130"); e("s_add_u32 s35, s35, 129"); e(f"v_min_u32 v{a_}, s35, v{a_}")
        e(f"v_lshlrev_b32 v{a_}, 4, v{a_}"); e(f"v_add_u32 v{a_}, s30, v{a_}")
        e(f"v_subrev_u32 v27, 8, v{a_}"); e("v_max_i32 v27, 0, v27")
        e(f"ds_read_b128 {v(64+8*ps_+4,4)}, v{a_}", tag=("cr", ps_))
        e(f"ds_read_b64 {v(64+8*ps_+2,2)}, v27", tag=("cr", ps_))
    for ps_ in range(3):
        a_ = 24 + ps_; D = 64 + 8*ps_
        e.wait(ds=[("cr", ps_)])
        o = 128 + 12*ps_
        e(f"v_alignbit_b32 v{o}, v{D+4}, v{D+3}, 16"); e(f"v_alignbit_b32 v{o+1}, v{D+5}, v{D+4}, 16"); e(f"v_alignbit_b32 v{o+2}, v{D+6}, v{D+5}, 16"); e(f"v_alignbit_b32 v{o+3}, v{D+7}, v{D+6}, 16")
        e(f"ds_write_b128 v{a_}, {v(o,4)} offset:{CP}", tag="cw")
        e(f"v_mov_b32 v{o+4}, v{D+3}"); e(f"v_mov_b32 v{o+5}, v{D+4}"); e(f"v_mov_b32 v{o+6}, v{D+5}"); e(f"v_mov_b32 v{o+7}, v{D+6}")
        e(f"ds_write_b128 v{a_}, {v(o+4,4)} offset:{2*CP}", tag="cw")
        e(f"v_alignbit_b32 v{o+8}, v{D+3}, v{D+2}, 16"); e(f"v_mov_b32 v{o+9}, v{o}"); e(f"v_mov_b32 v{o+10}, v{o+1}"); e(f"v_mov_b32 v{o+11}, v{o+2}")
        e(f"ds_write_b128 v{a_}, {v(o+8,4)} offset:{3*CP}", tag="cw")
    e("v_bfe_u32 v23, v0, 2, 2"); e(f"v_mul_u32_u24 v23, {CP}, v23")
    e("v_and_b32 v24, 3, v0"); e("v_lshl_add_u32 v23, v24, 3, v23")
    e("v_lshlrev_b32 v24, 4, v13"); e("v_sub_u32 v23, v23, v24")
    e("s_lshl_b32 s34, s28, 9"); e("s_add_u32 s34, s34, s30"); e(f"s_add_u32 s34, s34, {64 - 8}"); e("v_add_u32 v23, s34, v23")
    VA = 23
    e.wait(vm=["ut"])
    e.wait_all_ds(); e("s_barrier")
    stamp()
    ACCc = 64
    AFr = lambda st, j, rt: (128 if st == 0 else 160) + (j*2+rt)*4
    BF = lambda st, m: (96 + 4*m) if st == 0 else (24 + 4*m)
    def conv_reads(d0):
        s2 = d0 & 1; rl = []
        rl.append(f"s_lshl_b32 s35, s28, 3"); rl.append(f"s_sub_u32 s35, {16 - d0}, s35")
        rl.append("v_add_u32 v62, s35, v7"); rl.append("v_bfe_u32 v63, v62, 2, 1"); rl.append("v_lshlrev_b32 v63, 1, v63"); rl.append("v_xor_b32 v63, v63, v13")
        rl.append("v_lshlrev_b32 v62, 6, v62"); rl.append("v_lshl_add_u32 v62, v63, 4, v62"); rl.append("v_add_u32 v62, s31, v62")
        rl.append((f"ds_read_b128 {v(BF(s2,0),4)}, v62", ("cv", d0)))
        for j in range(4):
            for rt in range(2):
                for t in range(2):
                    rl.append((f"ds_read_b64_tr_b16 {v(AFr(s2,j,rt)+2*t,2)}, v{VA} offset:{64*d0 + 1024*j + 32*rt - 8*t + 8}", ("cv", d0)))
            if j < 3: rl.append((f"ds_read_b128 {v(BF(s2,j+1),4)}, v62 offset:{1024*(j+1)}", ("cv", d0)))
        return rl
    def em(it):
        if isinstance(it, tuple): e(it[0], tag=it[1])
        else: e(it)
    for it in conv_reads(0): em(it)
    first = set()
    for i in range(8):
        st = i & 1
        e.wait(ds=[("cv", i)])
        mf = []
        for j in range(4):
            for ct in range(j, 4):
                for rt in range(2):
                    acc = ACCc + (ct*2+rt)*4
                    c = v(acc,4) if (ct, rt) in first else "0"
                    first.add((ct, rt))
                    mf.append(f"v_mfma_f32_16x16x32_bf16 {v(acc,4)}, {v(AFr(st,j,rt),4)}, {v(BF(st,ct-j),4)}, {c}")
        rl = conv_reads(i+1) if i + 1 < 8 else []
        idx = 0
        for m_ in mf:
            e(m_)
            for _ in range(2):
                if idx < len(rl): em(rl[idx]); idx += 1
        while idx < len(rl): em(rl[idx]); idx += 1
    stamp()
    state["on"] = False
    e("s_barrier")
    e("s_lshl_b32 s34, s28, 2"); e("s_add_u32 s34, s34, s27"); e(f"s_mul_i32 s34, s34, {YP}")
    e("v_mul_u32_u24 v62, 144, v7"); e("v_lshl_add_u32 v62, v13, 4, v62"); e("v_add_u32 v62, s34, v62")
    for ct in range(4):
        for rt in range(2):
            e(f"ds_write_b128 v62, {v(ACCc+(ct*2+rt)*4,4)} offset:{ct*16*144 + rt*64}", tag="y")
    while bg: bg_pop()
    e("v_lshrrev_b32 v62, 4, v1"); e("v_mul_u32_u24 v62, 144, v62"); e("v_and_b32 v63, 15, v1"); e("v_lshl_add_u32 v62, v63, 3, v62")
    e("v_lshrrev_b32 v24, 4, v1")
    e("v_bfe_u32 v25, v24, 2, 1"); e("v_lshlrev_b32 v25, 1, v25"); e("v_bfe_u32 v26, v1, 2, 2"); e("v_xor_b32 v25, v25, v26")
    e("v_lshlrev_b32 v24, 6, v24"); e("v_lshl_add_u32 v24, v25, 4, v24"); e("v_and_b32 v25, 3, v1"); e("v_lshl_add_u32 v24, v25, 2, v24")
    e(f"v_add_u32 v24, {UT0 + 1024}, v24")
    e(f"v_add_u32 v63, {32*144}, v62")
    e("v_lshlrev_b32 v26, 1, v1"); e("s_movk_i32 s34, 1152"); e("v_mul_lo_u32 v26, v26, s34"); e("s_lshl_b32 s35, s25, 3")
    e.wait(vm=["g"])
    e("v_lshlrev_b32 v122, 16, v120"); e("v_and_b32 v123, 0xffff0000, v120"); e("v_lshlrev_b32 v124, 16, v121"); e("v_and_b32 v125, 0xffff0000, v121")
    UR = 160
    for p in range(2):
        for ch in range(4): e(f"ds_read_b32 v{UR + 4*p + ch}, v24 offset:{ch*UTP + p*2048}", tag="ur")
    e.wait(ds=["y"]); e("s_barrier")
    stamp()
    YR = 128
    for p in range(2):
        for ch in range(4):
            for h in range(2):
                e(f"ds_read_b64 {v(YR + 16*p + 4*ch + 2*h, 2)}, v{62+p} offset:{(h*4+ch)*YP}", tag=("yr", p))
    for p in range(2):
        e.wait(ds=[("yr", p), "ur"])
        for tk in range(2):
            g_ = 112 + 4*p + 2*tk
            for ch in range(4):
                y0 = YR + 16*p + 4*ch + tk; y1 = y0 + 2
                t0 = 28 + ch; ur = UR + 4*p + ch
                if tk == 0: e(f"v_lshlrev_b32 v{32+ch}, 16, v{ur}")
                else: e(f"v_and_b32 v{32+ch}, 0xffff0000, v{ur}")
            for ch in range(4): e(f"v_fma_f32 v{32+ch}, v{32+ch}, v{122+ch}, v{YR + 16*p + 4*ch + tk}")
            for ch in range(4): e(f"v_add_f32 v{32+ch}, v{32+ch}, v{YR + 16*p + 4*ch + tk + 2}")
            for ch in range(4): e(f"v_mul_f32 v{28+ch}, v{g_+1}, v{PA + 8*p + 4*tk + ch}")
            for ch in range(4): e(f"v_fma_f32 v{28+ch}, v{g_}, v{32+ch}, v{28+ch}")
            o = 36 + 2*(2*p+tk)
            e(f"v_cvt_pk_bf16_f32 v{o}, v28, v29"); e(f"v_cvt_pk_bf16_f32 v{o+1}, v30, v31")
            e(f"s_add_u32 s36, s35, {(1024*p + tk)*1152}")
            e(f"buffer_store_dwordx2 {v(o,2)}, v26, s[52:55], s36 offen {out_flags}".rstrip(), tag="o")
    if profile:
        stamp(); e("s_waitcnt vmcnt(0)"); stamp()
        e("s_memrealtime s[76:77]"); e("s_waitcnt lgkmcnt(0)")
        e("s_add_u32 s22, s22, 0xC900000"); e("s_addc_u32 s23, s23, 0")
        mksrd(48, 22, 1<<20)
        e("s_lshl_b32 s34, s2, 3"); e("s_add_u32 s34, s34, s24"); e("s_lshl_b32 s34, s34, 6")
        for i, r in enumerate(stamps[1:]):
            e(f"s_sub_u32 s35, s{r}, s{stamps[0]}"); e("v_mov_b32 v1, s35"); e(f"v_mov_b32 v2, {4*i}")
            e("buffer_store_dword v1, v2, s[48:51], s34 offen")
        e("s_sub_u32 s35, s76, s90"); e("v_mov_b32 v1, s35"); e("v_mov_b32 v2, 60"); e("buffer_store_dword v1, v2, s[48:51], s34 offen")
        e("v_mov_b32 v1, s90"); e("v_mov_b32 v2, 56"); e("buffer_store_dword v1, v2, s[48:51], s34 offen")
    e.raw(f"{Lend}:")
    e.raw("s_endpgm")
    print(f"K2: {e0.count} instrs, nops inserted {e0.nops_inserted}, bg left {len(bg)}, stamps {len(stamps)}", file=sys.stderr)
    return k

if __name__ == "__main__":
    k = gen_k2(profile=("prof" in sys.argv[2:]))
    open(sys.argv[1], "w").write(build([k]))
```

```python
import sys
sys.path.insert(0, "gen")
from asmlib import *
from f1 import gen_f1
from k2 import gen_k2
def parse(args):
    kw = {}
    for x in args:
        if "=" in x:
            a_, b_ = x.split("="); kw[a_] = int(b_) if b_.lstrip("-").isdigit() else b_
    return kw
prof = "prof" in sys.argv[2:]
kw = parse(sys.argv[2:])
kw2 = {k_[3:]: v_ for k_, v_ in kw.items() if k_.startswith("k2_")}
kw1 = {k_: v_ for k_, v_ in kw.items() if not k_.startswith("k2_")}
both = "both" in sys.argv[2:]
k1 = gen_f1(name="ffn_fused_kernel", profile=both, **kw1)
k2 = gen_k2(name="ssm_mix_kernel", profile=prof or both, **kw2)
open(sys.argv[1], "w").write(build([k1, k2]))
```

```python
import sys, math
sys.path.insert(0, "gen")
from asmlib import *
from emit import E
LOG2E = 1.4426950408889634
WS_P = 0
P_BYTES = 16*144*2048*8
WS_UT = 0x2800000
WS_G = 0x2B00000
WS_USED = 0x2C00000
SLOT = 16384
HREG = 5*SLOT
LDS_BYTES = 10*SLOT

ACC = lambda buf, a, b: 128 + buf*64 + (a*2+b)*16
ACC2 = lambda buf, a, b: (160 if buf == 0 else 64) + (a*2+b)*16
def XF(ks, b):
    return a((ks*2+b)*4, 4) if ks < 32 else v(96 + (ks-32)*8 + b*4, 4)
HF = lambda ks, b: a((ks*2+b)*4, 4)
AF = lambda st, a_: 72 + st*8 + a_*4
AF2 = lambda st, a_: 144 + st*12 + a_*4
OUT = lambda i: 64 + 4*i
TMP = 56
SX = 56; SW = 65; SD = 74
SU = 83
VW = 4; VTR = 8; VHW = 14; VK0 = 15; VWH = 16; VTRH = 18; VX = 21; VXR = 25; VXA = 29
VHWH = 33; VD = 34; VT2 = 37; VP = 46; VHR = 47; VHA = 48
STAMP0 = 92

def gen_f1(name="f1_kernel", store_flags="sc1", prefetch_code=True, profile=False, abl=(), init_units=4,
           ev0=2, ev1=4, evh=4, ev2=3, rot=1, chunks=(3,3,3), budget=5, rd_per_gap=2, fine=-1, side_flags="", dbg=0):
    k = K(name, (256,1,1), (256,1,1), LDS_BYTES, 256, agpr=256, sgpr=102)
    e = E(k)
    stamps = []
    def stamp():
        if profile:
            r = ([92,93,94,95,96,97,98,99,24,23,50,52])[len(stamps)]; stamps.append(r)
            e(f"s_memtime s[40:41]"); e("s_waitcnt lgkmcnt(0)"); e(f"s_mov_b32 s{r}, s40")
    Lend = k.label("end")
    e("s_cmp_ge_u32 s2, 256")
    e(f"s_cbranch_scc1 {Lend}")
    if profile:
        e("s_memrealtime s[42:43]"); e("s_waitcnt lgkmcnt(0)"); e("s_mov_b32 vcc_lo, s42")
    stamp()
    e("s_load_dwordx2 s[32:33], s[0:1], 0")
    e("s_load_dwordx4 s[36:39], s[0:1], 64")
    e("s_load_dwordx2 s[44:45], s[0:1], 80")
    e("s_load_dwordx2 s[34:35], s[0:1], 112")
    e("s_load_dwordx2 s[100:101], s[0:1], 88")
    if prefetch_code:
        Lpf = k.label("pf")
        e("s_getpc_b64 s[40:41]")
        e.raw(f"{Lpf}:")
        e("v_min_u32 v1, 15, v0")
        e("s_lshr_b32 s43, s2, 3")
        e("s_lshl_b32 s43, s43, 4")
        e("v_add_u32 v1, s43, v1")
        e("v_lshlrev_b32 v1, 7, v1")
        e(f"v_min_u32 v1, ({Lend} - {Lpf}), v1")
        e("global_load_dword v63, v1, s[40:41]", tag="pf")
    e("v_lshrrev_b32 v1, 6, v0")
    e("v_and_b32 v0, 63, v0")
    e("v_readfirstlane_b32 s20, v1")
    e("s_and_b32 s42, s2, 7")
    e("s_lshr_b32 s43, s2, 3")
    e("s_and_b32 s46, s42, 1"); e("s_lshl_b32 s46, s46, 3"); e("s_and_b32 s47, s43, 7"); e("s_add_u32 s46, s46, s47")
    e("s_lshr_b32 s48, s42, 1"); e("s_lshl_b32 s48, s48, 2"); e("s_lshr_b32 s49, s43, 3"); e("s_add_u32 s48, s48, s49")
    e("s_lshr_b32 s21, s20, 1")
    e("s_and_b32 s22, s20, 1")
    e("s_mul_i32 s50, s48, 576")
    e("s_and_b32 s51, s48, 1")
    e("s_lshl_b32 s52, s51, 6"); e("s_add_u32 s52, s52, s50")
    e("s_xor_b32 s53, s51, 1"); e("s_lshl_b32 s53, s53, 9"); e("s_add_u32 s53, s53, s50")
    e("s_lshl_b32 s24, s46, 2"); e("s_add_u32 s24, s24, s20"); e(f"s_mul_i32 s24, s24, {32*1152}")
    e(f"s_mul_i32 s23, s20, {16*9216}")
    e(f"s_mov_b32 s{SX}, s24"); e(f"s_mov_b32 s{SW}, s23")
    e("s_lshl_b32 s54, s49, 1"); e("s_add_u32 s54, s54, s47"); e("s_bfe_u32 s55, s42, 0x10001"); e("s_add_u32 s54, s54, s55"); e("s_and_b32 s54, s54, 7")
    if not rot: e("s_mov_b32 s54, 0")
    for l in range(1, 9):
        e("s_add_u32 s55, s54, 1")
        e(f"s_lshl_b32 s29, s55, 7"); e(f"s_add_u32 s{SX+l}, s24, s29")
        e(f"s_mul_i32 s29, s55, {64*9216}"); e(f"s_add_u32 s{SW+l}, s23, s29")
        if l < 8:
            e("s_add_u32 s54, s54, 1"); e("s_and_b32 s54, s54, 7")
    e("s_lshl_b32 s30, s20, 12")
    e("s_lshl_b32 s31, s20, 11")
    c0 = -2.0*math.sqrt(2.0/math.pi)*LOG2E; c1 = c0*0.044715
    e(f"s_mov_b32 s27, {fimm(c1)}")
    e(f"v_mov_b32 v{VK0}, {fimm(c0)}")
    e("v_lshrrev_b32 v1, 3, v0"); e("v_and_b32 v2, 7, v0"); e("v_bfe_u32 v3, v0, 4, 1")
    e("s_movk_i32 s55, 9216"); e("v_mul_lo_u32 v1, v1, s55")
    for q in range(4):
        m = q >> 1
        e(f"v_or_b32 v{VW+q}, {m<<1}, v3")
        e(f"v_lshlrev_b32 v{VW+q}, 1, v{VW+q}")
        e(f"v_xor_b32 v{VW+q}, v{VW+q}, v2")
        e(f"v_lshl_add_u32 v{VW+q}, v{VW+q}, 4, v1")
        add = (8*9216 if q & 1 else 0) - 1024*q + (2048 if m else 0)
        if add: e(f"v_add_u32 v{VW+q}, {add}, v{VW+q}")
    e("v_lshrrev_b32 v1, 3, v0"); e("s_movk_i32 s55, 1152"); e("v_mul_lo_u32 v1, v1, s55"); e("v_lshrrev_b32 v3, 4, v0")
    for i in range(4):
        e(f"v_add_u32 v{VX+i}, {4*i}, v3")
        e(f"v_and_b32 v{VX+i}, 7, v{VX+i}")
        e(f"v_xor_b32 v{VX+i}, v{VX+i}, v2")
        e(f"v_lshl_add_u32 v{VX+i}, v{VX+i}, 4, v1")
        add = 8*i*1152 - 1024*i
        if add: e(f"v_add_u32 v{VX+i}, {add}, v{VX+i}")
    if profile and fine < 0: stamp()
    e("s_waitcnt lgkmcnt(0)")
    srd(e, 4, 32, 2048*1152)
    e("s_sub_u32 s38, s38, 2048"); e("s_subb_u32 s39, s39, 0")
    e("s_add_u32 s8, s36, s52"); e("s_addc_u32 s9, s37, 0"); e("s_and_b32 s9, s9, 0xffff")
    e(f"s_mov_b32 s10, {576*9216}"); e("s_mov_b32 s11, 0x00020000")
    e("s_add_u32 s12, s38, s52"); e("s_addc_u32 s13, s39, 0"); e("s_and_b32 s13, s13, 0xffff")
    e(f"s_mov_b32 s14, {576*9216 + 2048}"); e("s_mov_b32 s15, 0x00020000")
    units = []
    for c in range(9):
        units.append(("X", 0, c)); units.append(("W", 0, c))
    for s_ in range(1, 4):
        for c in range(9): units.append(("W", s_, c))
    for c in range(5): units.append(("HF", 4, c))
    for dc in range(len(chunks)):
        for c in range(9): units.append(("D", dc, c))
    phases = []
    n = 0
    for c in range(9): phases.append(([n, n+1], 0, 4*c, 4)); n += 2
    for s_ in range(1, 4):
        for c in range(9): phases.append(([n], s_, 4*c, 4)); n += 1
    for c in range(5): phases.append(([n], 4, 8*c, 8 if c < 4 else 4)); n += 1
    for dc in range(len(chunks)):
        for c in range(9): phases.append(([n], 5+dc, 2*c, 2)); n += 1
    unit_phase = {}
    for pi, ph in enumerate(phases):
        for u in ph[0]: unit_phase[u] = pi
    first_g2 = next(pi for pi, ph in enumerate(phases) if ph[1] == 5)
    first_g2c1 = next(pi for pi, ph in enumerate(phases) if ph[1] == 6)
    free_after = {i*SLOT: -1 for i in range(5)}
    slot_of = {}; issue_after = {}
    last = -1
    g2_ready = False
    for u in range(len(units)):
        if units[u][0] == "D" and not g2_ready:
            g2_ready = True
            old_fa = dict(free_after)
            free_after = {}
            US = 12288
            for i in range(6):
                lo, hi = i*US, (i+1)*US
                free_after[lo] = max(fa for s_, fa in old_fa.items() if s_ < hi and s_ + SLOT > lo)
            for i in range(6):
                free_after[HREG + i*US] = first_g2c1
        sl = min(free_after, key=lambda s_: (max(free_after[s_], last), s_))
        ia = max(free_after[sl], last)
        slot_of[u] = sl; issue_after[u] = ia; last = ia
        free_after[sl] = unit_phase[u] + 1
    col_of_chunk = [sum(chunks[:i])*64 for i in range(len(chunks))]
    def dma_unit(n):
        kind, g, c = units[n]
        slot = slot_of[n]
        out = []
        if kind == "X":
            out.append(f"s_add_u32 m0, s30, {slot}")
            for i in range(4):
                off = f" offset:{1024*i}" if i else ""
                out.append((f"buffer_load_dwordx4 v{VX+i}, s[4:7], s{SX+c} offen{off} lds", ("dma", n)))
        elif kind == "W":
            if c == 0 and g > 0:
                out.append("s_add_u32 s8, s8, 128"); out.append("s_addc_u32 s9, s9, 0")
                out.append("s_add_u32 s12, s12, 128"); out.append("s_addc_u32 s13, s13, 0")
            out.append(f"s_add_u32 m0, s30, {slot}")
            for q in range(4):
                srd_ = "s[8:11]" if q < 2 else "s[12:15]"
                off = f" offset:{1024*q}" if q else ""
                out.append((f"buffer_load_dwordx4 v{VW+q}, {srd_}, s{SW+c} offen{off} lds", ("dma", n)))
        elif kind == "HF":
            if c == 0:
                out.append("s_add_u32 s8, s36, s53"); out.append("s_addc_u32 s9, s37, 0"); out.append("s_and_b32 s9, s9, 0xffff")
                out.append("s_add_u32 s12, s38, s53"); out.append("s_addc_u32 s13, s39, 0"); out.append("s_and_b32 s13, s13, 0xffff")
            nk = 2 if c < 4 else 1
            for ee in range(nk):
                out.append(f"s_add_u32 m0, s31, {slot + ee*8192}")
                out.append((f"buffer_load_dwordx4 v{VWH}, s[8:11], s{SW+2*c+ee} offen lds", ("dma", n)))
                out.append((f"buffer_load_dwordx4 v{VWH+1}, s[12:15], s{SW+2*c+ee} offen offset:1024 lds", ("dma", n)))
        else:
            nt = chunks[g]
            assert nt == 3
            if c == 0 and g > 0:
                out.append(f"s_add_u32 s4, s4, {chunks[g-1]*128}"); out.append("s_addc_u32 s5, s5, 0")
            out.append(f"s_add_u32 m0, s28, {slot}")
            for i in range(3):
                off = f" offset:{1024*i}" if i else ""
                out.append((f"buffer_load_dwordx4 v{VD+i}, s[4:7], s{SD+c} offen{off} lds", ("dma", n)))
        return out
    def emit_list(lst):
        for it in lst:
            if isinstance(it, tuple) and it[0] == "WAITDS": e.wait(ds=[it[1]])
            elif isinstance(it, tuple) and it[0] == "WAITVM": e.wait(vm=[it[1]])
            elif isinstance(it, tuple): e(it[0], tag=it[1])
            else: e(it)
    next_dma = 0
    dma_q = []
    def release(bar):
        nonlocal next_dma
        while next_dma < len(units) and issue_after[next_dma] <= bar:
            if units[next_dma][0] == "D" and units[next_dma][1] == 0 and units[next_dma][2] == 0:
                dma_q.extend(g2_setup())
            if "nodma" in abl and next_dma >= init_units: pass
            else: dma_q.extend(dma_unit(next_dma))
            next_dma += 1
    def is_dma(it): return isinstance(it, tuple) and it[1] is not None and it[1][0] == "dma"
    def pop_dma(n):
        out = []
        while dma_q and n > 0:
            it = dma_q.pop(0); out.append(it)
            if is_dma(it): n -= 1
        return out
    def g2_setup():
        l = []
        l.append("s_mov_b32 s4, s44"); l.append("s_and_b32 s5, s45, 0xffff"); l.append(f"s_mov_b32 s6, {4608*1152}")
        return l
    release(-1)
    u0 = pop_dma(4); u1 = pop_dma(4)
    La = k.label("ord"); Lb = k.label("ordd")
    e("s_add_u32 s55, s47, s49"); e("s_and_b32 s55, s55, 1"); e("s_cmp_eq_u32 s55, 0")
    e(f"s_cbranch_scc1 {La}")
    vm_save = list(e.vm)
    emit_list(u1); emit_list(u0)
    e(f"s_branch {Lb}")
    e.raw(f"{La}:")
    e.vm = list(vm_save)
    emit_list(u0); emit_list(u1)
    e.raw(f"{Lb}:")
    e.m0_w = -100
    pending_init = init_units - 2
    if profile and fine < 0: stamp()
    srd(e, 16, 34, WS_USED)
    e("s_mul_i32 s24, s48, 288"); e("s_lshl_b32 s55, s20, 3"); e("s_add_u32 s24, s24, s55"); e("s_mul_i32 s24, s24, 1152")
    for l in range(9):
        if l < 8:
            if rot: e(f"s_add_u32 s54, s47, {l}"); e("s_and_b32 s54, s54, 7")
            else: e(f"s_mov_b32 s54, {l}")
            e("s_add_u32 s54, s54, s51")
        else:
            e("s_xor_b32 s54, s51, 1"); e("s_lshl_b32 s54, s54, 3")
        e(f"s_lshl_b32 s{SU+l}, s54, 13")
        e(f"s_mul_i32 s55, s54, {32*1152}"); e(f"s_add_u32 s{SD+l}, s24, s55")
    e("s_mul_i32 s28, s20, 3072")
    e("s_mul_i32 s25, s48, 144"); e("s_mul_i32 s55, s22, 24"); e("s_add_u32 s25, s25, s55"); e("s_lshl_b32 s25, s25, 14")
    e("s_lshl_b32 s55, s46, 1"); e("s_add_u32 s55, s55, s21"); e("s_lshl_b32 s55, s55, 9"); e("s_add_u32 s25, s25, s55")
    e("v_lshrrev_b32 v1, 4, v0"); e("v_bfe_u32 v2, v0, 2, 2"); e("v_and_b32 v3, 3, v0")
    T0, T1, T2, T3 = 56, 57, 58, 59
    e(f"v_lshrrev_b32 v{T0}, 1, v3")
    e(f"v_lshrrev_b32 v{T1}, 1, v1")
    e(f"v_lshl_add_u32 v{T1}, v{T1}, 3, v2")
    e(f"v_lshrrev_b32 v{T2}, 1, v2")
    e(f"v_lshl_or_b32 v60, v{T0}, 1, v{T2}")
    e(f"v_and_b32 v{T3}, 1, v1")
    e(f"v_lshlrev_b32 v61, 4, v{T3}")
    e("v_and_b32 v62, 1, v3")
    e("v_lshl_add_u32 v61, v62, 3, v61")
    e(f"v_lshlrev_b32 v62, 11, v{T0}")
    e(f"v_lshl_add_u32 v62, v{T1}, 7, v62")
    e("v_add_u32 v62, v62, v61")
    for a_ in range(2):
        e("s_lshl_b32 s55, s22, 1")
        if a_: e("s_add_u32 s55, s55, 1")
        e(f"v_xor_b32 v{VTR+1}, s55, v60")
        e(f"v_lshl_add_u32 v{VTR+3*a_}, v{VTR+1}, 5, v62") if a_ == 1 else None
        if a_ == 0:
            e(f"v_lshl_add_u32 v{VTR}, v{VTR+1}, 5, v62")
    e(f"v_add_u32 v{VTR+1}, 0x10000, v{VTR}")
    e(f"v_add_u32 v{VTR+4}, 0x10000, v{VTR+3}")
    e(f"v_lshlrev_b32 v62, 10, v{T0}")
    e(f"v_lshl_add_u32 v62, v{T1}, 6, v62")
    e("v_add_u32 v62, v62, v61")
    e(f"v_xor_b32 v60, s22, v{T0}")
    e(f"v_lshl_add_u32 v{VTRH}, v60, 5, v62")
    e(f"v_add_u32 v{VTRH+1}, 0x10000, v{VTRH}")
    e("v_lshrrev_b32 v60, 1, v1"); e("v_lshl_add_u32 v60, v60, 2, v2")
    e("s_movk_i32 s55, 384"); e("v_mul_lo_u32 v60, v60, s55")
    e(f"v_lshl_add_u32 v60, v{T3}, 5, v60"); e("v_lshl_add_u32 v60, v3, 3, v60")
    for a_ in range(3):
        e("s_mul_i32 s55, s22, 3"); e(f"s_add_u32 s55, s55, {a_}")
        e(f"v_xor_b32 v61, s55, v{T2}")
        e(f"v_lshl_add_u32 v{VT2+3*a_}, v61, 6, v60")
        e(f"v_add_u32 v{VT2+3*a_+1}, 0x10000, v{VT2+3*a_}")
        e(f"v_add_u32 v{VT2+3*a_+2}, 0x20000, v{VT2+3*a_}")
    for i in range(3):
        e(f"v_add_u32 v60, {64*i}, v0")
        e("v_mul_u32_u24 v61, 2731, v60"); e("v_lshrrev_b32 v61, 16, v61")
        e("v_mul_u32_u24 v62, 24, v61"); e("v_sub_u32 v62, v60, v62")
        e("v_bfe_u32 v60, v61, 1, 1"); e("v_lshlrev_b32 v60, 2, v60")
        e("v_xor_b32 v62, v62, v60")
        e("v_mul_u32_u24 v61, 1152, v61")
        e(f"v_lshl_add_u32 v{VD+i}, v62, 4, v61")
        if i: e(f"v_subrev_u32 v{VD+i}, {1024*i}, v{VD+i}")
    e("v_lshrrev_b32 v1, 2, v0"); e("s_movk_i32 s55, 9216"); e("v_mul_lo_u32 v1, v1, s55"); e("v_and_b32 v2, 3, v0")
    e(f"v_lshl_add_u32 v{VWH}, v2, 4, v1"); e("v_xor_b32 v2, 2, v2")
    e(f"v_lshl_add_u32 v{VWH+1}, v2, 4, v1"); e(f"v_add_u32 v{VWH+1}, 1024, v{VWH+1}")
    e("v_and_b32 v1, 31, v0"); e("s_lshl_b32 s55, s21, 6"); e("v_add_u32 v1, s55, v1"); e("v_lshlrev_b32 v1, 7, v1")
    e("v_lshrrev_b32 v2, 5, v0"); e("v_bfe_u32 v3, v0, 1, 3"); e("v_xor_b32 v3, v2, v3")
    e(f"v_lshl_add_u32 v{VXR}, v3, 4, v1")
    for ks in range(1, 4): e(f"v_xor_b32 v{VXR+ks}, {ks*32}, v{VXR}")
    e("v_and_b32 v1, 31, v0"); e("v_lshlrev_b32 v1, 3, v1"); e(f"v_lshl_add_u32 v{VP}, v2, 14, v1")
    e("v_lshlrev_b32 v1, 4, v0"); e("s_lshl_b32 s55, s21, 11"); e(f"s_add_u32 s55, s55, {HREG}"); e(f"v_add_u32 v{VHR}, s55, v1")
    e("s_add_u32 s55, s51, s22"); e("s_lshl_b32 s55, s55, 13"); e(f"v_add_u32 v{VHW}, s55, v{VHR}")
    e("s_xor_b32 s55, s51, 1"); e("s_lshl_b32 s55, s55, 4"); e("s_add_u32 s55, s55, s22"); e("s_lshl_b32 s55, s55, 12")
    e(f"v_add_u32 v{VHWH}, s55, v{VHR}")
    steps = []
    for pi, (us, sg, k0, nks) in enumerate(phases):
        for q in range(nks): steps.append((pi, q, sg, k0+q))
    def reads_for(si):
        pi, q, sg, ks = steps[si]
        us = phases[pi][0]
        out = []; st = si % 3
        if sg == 0:
            xs = slot_of[us[0]]
            if q == 0:
                for kk in range(4): out.append((f"v_add_u32 v{VXA+kk}, {xs}, v{VXR+kk}", None))
            for b in range(2):
                off = f" offset:{4096*b}" if b else ""
                out.append((f"ds_read_b128 {XF(ks,b)}, v{VXA+q}{off}", ("rd", si)))
        ws = slot_of[us[-1]]
        if sg < 4:
            for a_ in range(2):
                for t in range(2):
                    off = ws + q*4096 + t*512
                    out.append((f"ds_read_b64_tr_b16 {v(AF(st,a_)+2*t,2)}, v{VTR+3*a_+(off>>16)} offset:{off & 0xffff}", ("rd", si)))
        elif sg == 4:
            for t in range(2):
                off = ws + q*2048 + t*256
                out.append((f"ds_read_b64_tr_b16 {v(AF(st,0)+2*t,2)}, v{VTRH+(off>>16)} offset:{off & 0xffff}", ("rd", si)))
        else:
            if sg == 5:
                if q == 0: out.append((f"v_add_u32 v{VHA}, s{SU+ks//2}, v{VHR}", None))
                for b in range(2):
                    out.append((f"ds_read_b128 {HF(ks,b)}, v{VHA} offset:{q*4096 + b*1024}", ("rd", si)))
            for a_ in range(chunks[sg-5]):
                for t in range(2):
                    off = ws + q*16*384 + t*8*384
                    out.append((f"ds_read_b64_tr_b16 {a(AF2(st,a_)+2*t,2)}, v{VT2+3*a_+(off>>16)} offset:{off & 0xffff}", ("rd", si)))
        return out
    def barrier_for(pi):
        if "nodma" not in abl:
            for u in phases[pi][0]:
                assert u < next_dma and not any(isinstance(x, tuple) and x[1] == ("dma", u) for x in dma_q), f"DMA for unit {u} not issued before its barrier"
        e.wait(vm=[("dma", u) for u in phases[pi][0]])
        e.wait_all_ds()
        if "nobar" not in abl or pi == 0: e("s_barrier")
        release(pi)
    outsel = [0]
    def epi_tile(buf, a_, b, sg):
        A0 = ACC(buf, a_, b)
        o = OUT(outsel[0]); outsel[0] ^= 1
        l = []
        for hh in range(2):
            r0 = A0 + 8*hh; t = TMP + 4*hh
            for i in range(4): l.append(f"v_mul_f32 v{t+i}, v{r0+i}, v{r0+i}")
            for i in range(4): l.append(f"v_mul_f32 v{r0+4+i}, v{r0+i}, v{r0+4+i}")
            for i in range(4): l.append(f"v_fma_f32 v{t+i}, v{t+i}, s27, v{VK0}")
            for i in range(4): l.append(f"v_mul_f32 v{r0+i}, v{t+i}, v{r0+i}")
            for i in range(4): l.append(f"v_exp_f32 v{r0+i}, v{r0+i}")
            for i in range(4): l.append(f"v_add_f32 v{r0+i}, 1.0, v{r0+i}")
            for i in range(4): l.append(f"v_rcp_f32 v{r0+i}, v{r0+i}")
            for i in range(4): l.append(f"v_mul_f32 v{r0+4+i}, v{r0+4+i}, v{r0+i}")
            l.append(f"v_cvt_pk_bf16_f32 v{o+2*hh}, v{r0+4}, v{r0+5}")
            l.append(f"v_cvt_pk_bf16_f32 v{o+2*hh+1}, v{r0+6}, v{r0+7}")
        if sg < 4: l.append((f"ds_write_b128 v{VHW}, {v(o,4)} offset:{(4*sg+a_)*4096 + b*1024}", ("hw", 0)))
        else: l.append((f"ds_write_b128 v{VHWH}, {v(o,4)} offset:{b*1024}", ("hw", 0)))
        return l
    psel = [0]
    def epi2(dc):
        buf = dc & 1; l = []
        g0 = col_of_chunk[dc]//4
        for a_ in range(chunks[dc]):
            for q in range(4):
                l.append(f"s_add_u32 s26, s25, {(g0 + 8*a_ + 2*q)*16384}")
                for b in range(2):
                    r = ACC2(buf, a_, b) + 4*q
                    o = TMP + 2*(psel[0] & 3); psel[0] += 1
                    l.append(f"v_cvt_pk_bf16_f32 v{o}, v{r}, v{r+1}")
                    l.append(f"v_cvt_pk_bf16_f32 v{o+1}, v{r+2}, v{r+3}")
                    off = f" offset:{256*b}" if b else ""
                    l.append((f"buffer_store_dwordx2 {v(o,2)}, v{VP}, s[16:19], s26 offen{off} {store_flags}".rstrip(), ("st", 0)))
        return l
    emit_list(pop_dma(4*pending_init))
    GX = 96; GW = 106; GT = 112
    def gate_loads():
        l = []
        l.append("v_lshlrev_b32 v72, 2, v0")
        l.append("s_lshl_b32 s55, s46, 4"); l.append("s_add_u32 s55, s55, s48"); l.append("s_lshl_b32 s55, s55, 2"); l.append("s_add_u32 s55, s55, s20")
        l.append("s_lshl_b32 s26, s55, 1")
        l.append("s_lshl_b32 s3, s26, 3"); l.append(f"s_add_u32 s3, s3, {WS_G}")
        l.append("s_mul_i32 s29, s26, 1152")
        l.append("s_mov_b32 s8, s32"); l.append("s_and_b32 s9, s33, 0xffff"); l.append(f"s_mov_b32 s10, {2048*1152}")
        l.append("s_mov_b32 s12, s100"); l.append("s_and_b32 s13, s101, 0xffff"); l.append("s_mov_b32 s14, 1152")
        for t in range(2):
            for i in range(5):
                l.append((f"buffer_load_dword v{GX+5*t+i}, v72, s[8:11], s29 offen offset:{1152*t + 256*i}", "gl"))
        for i in range(5):
            l.append((f"buffer_load_dword v{GW+i}, v72, s[12:15], 0 offen offset:{256*i}", "gl"))
        return l
    def gate_jobs():
        l = [("WAITVM", "gl")]
        for i in range(5):
            l.append(f"v_lshlrev_b32 v{GT+2*i}, 16, v{GW+i}"); l.append(f"v_and_b32 v{GT+2*i+1}, 0xffff0000, v{GW+i}")
        for t in range(2):
            acc = 76 + t
            for i in range(5):
                x = GX+5*t+i
                l.append(f"v_lshlrev_b32 v74, 16, v{x}"); l.append(f"v_and_b32 v75, 0xffff0000, v{x}")
                l.append(f"v_mul_f32 v74, v74, v{GT+2*i}"); l.append(f"v_mul_f32 v75, v75, v{GT+2*i+1}")
                l.append(f"v_cvt_pk_bf16_f32 v73, v74, v75")
                l.append(f"v_lshlrev_b32 v74, 16, v73"); l.append(f"v_and_b32 v75, 0xffff0000, v73")
                if i == 0: l.append(f"v_add_f32 v{acc}, v74, v75")
                else:
                    l.append(f"v_add_f32 v{acc}, v{acc}, v74"); l.append(f"v_add_f32 v{acc}, v{acc}, v75")
        for sh in (1, 2, 4, 8):
            for t in range(2): l.append(f"v_add_f32_dpp v{76+t}, v{76+t}, v{76+t} row_shr:{sh} row_mask:0xf bank_mask:0xf bound_ctrl:0")
        for t in range(2): l.append(f"v_add_f32_dpp v{76+t}, v{76+t}, v{76+t} row_bcast:15 row_mask:0xa bank_mask:0xf")
        for t in range(2): l.append(f"v_add_f32_dpp v{76+t}, v{76+t}, v{76+t} row_bcast:31 row_mask:0xc bank_mask:0xf")
        for t in range(2):
            r = 76+t; o = 80+2*t
            l.append(f"v_readlane_b32 s55, v{r}, 63"); l.append(f"v_mov_b32 v{r}, s55")
            l.append(f"v_cvt_pk_bf16_f32 v{r}, v{r}, v{r}"); l.append(f"v_lshlrev_b32 v{r}, 16, v{r}")
            l.append(f"v_mul_f32 v{r}, {fimm(-LOG2E)}, v{r}"); l.append(f"v_exp_f32 v{r}, v{r}"); l.append(f"v_add_f32 v{r}, 1.0, v{r}"); l.append(f"v_rcp_f32 v{r}, v{r}")
            l.append(f"v_cvt_pk_bf16_f32 v{o}, v{r}, v{r}"); l.append(f"v_lshlrev_b32 v{o}, 16, v{o}")
            l.append(f"v_sub_f32 v{o+1}, 1.0, v{o}"); l.append(f"v_cvt_pk_bf16_f32 v{o+1}, v{o+1}, v{o+1}"); l.append(f"v_lshlrev_b32 v{o+1}, 16, v{o+1}")
        l.append("v_mov_b32 v74, s3")
        l.append((f"buffer_store_dwordx4 v[80:83], v74, s[16:19], 0 offen {side_flags}".rstrip(), ("st", 0)))
        return l
    XTA = 192
    e("v_lshrrev_b32 v156, 4, v0"); e("v_bfe_u32 v157, v0, 2, 2"); e("v_and_b32 v158, 3, v0")
    for t in range(2):
        e(f"v_lshl_add_u32 v159, v156, 3, v157")
        if t: e("v_add_u32 v159, 4, v159")
        e("v_bfe_u32 v160, v159, 1, 3")
        e("v_lshrrev_b32 v161, 1, v158"); e("v_xor_b32 v160, v160, v161")
        e("v_lshlrev_b32 v159, 7, v159"); e("v_lshl_add_u32 v159, v160, 4, v159")
        e("v_and_b32 v161, 1, v158"); e("v_lshl_add_u32 v159, v161, 3, v159")
        e(f"v_add_u32 v{XTA+4*t}, s30, v159")
        for cb in range(1, 4): e(f"v_xor_b32 v{XTA+4*t+cb}, {32*cb}, v{XTA+4*t}")
    e("s_and_b32 s26, s48, 3"); e("s_lshl_b32 s26, s26, 5")
    for t in range(2): e(f"v_xor_b32 v{XTA+9+t}, s26, v{XTA+4*t}")
    e("v_and_b32 v159, 15, v0"); e("v_lshlrev_b32 v159, 12, v159"); e(f"v_lshl_add_u32 v{XTA+8}, v156, 4, v159")
    def xt_jobs(lam):
        l = []
        sl = slot_of[2*lam]
        assert sl + 0 < 65536
        if lam == 1:
            for cb in range(4):
                for t in range(2): l.append((f"ds_read_b64_tr_b16 {v(XTA+12+4*cb+2*t,2)}, v{XTA+4*t+cb} offset:{sl}", ("xtr", lam)))
            l.append(f"s_sub_u32 s26, s{SX+1}, s{SX}"); l.append("s_lshl_b32 s26, s26, 11")
        else:
            for t in range(2): l.append((f"ds_read_b64_tr_b16 {v(XTA+28+2*t,2)}, v{XTA+9+t} offset:{sl}", ("xtr", lam)))
            l.append("s_and_b32 s26, s48, 3"); l.append("s_lshl_b32 s26, s26, 16")
        l.append("s_lshl_b32 s55, s46, 8"); l.append("s_add_u32 s26, s26, s55"); l.append("s_lshl_b32 s55, s20, 6"); l.append("s_add_u32 s26, s26, s55")
        l.append(f"s_add_u32 s26, s26, {WS_UT}")
        l.append(("WAITDS", ("xtr", lam)))
        if lam == 1:
            for cb in range(4):
                l.append((f"buffer_store_dwordx4 {v(XTA+12+4*cb,4)}, v{XTA+8}, s[16:19], s26 offen {side_flags}".rstrip(), ("st", 0)))
                if cb < 3: l.append(f"s_add_u32 s26, s26, {16*4096}")
        else:
            l.append((f"buffer_store_dwordx4 {v(XTA+28,4)}, v{XTA+8}, s[16:19], s26 offen {side_flags}".rstrip(), ("st", 0)))
        return l
    epi_q = []
    if profile and fine < 0: stamp()
    barrier_for(0)
    if profile and fine < 0: stamp()
    for si in (0, 1):
        for t_, tag in reads_for(si): e(t_, tag=tag)
    nsteps = len(steps)
    gapctr = 0
    now_q = []
    dma_credit = [0.0]
    def cost(it):
        t = it[0] if isinstance(it, tuple) else it
        op = t.split()[0]
        if op.startswith(("v_exp", "v_rcp")): return 2
        if op.startswith("buffer_"): return 2
        if op.startswith("ds_write"): return 2
        return 1
    for si in range(nsteps):
        pi, q, sg, ks = steps[si]
        if profile and fine >= 0 and sg == fine and q == 0 and len(stamps) < 11: stamp()
        if sg == 0 and ks == 0: now_q += xt_jobs(0)
        if sg == 0 and ks == 3: now_q += xt_jobs(1)
        if sg == 5 and ks == 11: epi_q += gate_jobs()
        if ks == 0 and sg >= 1:
            if profile and fine < 0 and sg in (1, 4, 5, 6): stamp()
            assert not epi_q, f"epilogue not drained at stage {sg}"
            if "noepi" not in abl:
                if sg <= 4:
                    for a_ in range(2):
                        for b in range(2): epi_q += epi_tile((sg-1) & 1, a_, b, sg-1)
                elif sg == 5:
                    epi_q += gate_loads()
                    for b in range(2): epi_q += epi_tile(0, 0, b, 4)
                else:
                    epi_q += epi2(sg-6)
        e.wait(ds=[("rd", si)])
        mf = []
        if sg < 4:
            buf = sg & 1
            for a_ in range(2):
                for b in range(2):
                    c = "0" if ks == 0 else v(ACC(buf,a_,b),16)
                    mf.append(f"v_mfma_f32_32x32x16_bf16 {v(ACC(buf,a_,b),16)}, {v(AF(si%3,a_),4)}, {XF(ks,b)}, {c}")
        elif sg == 4:
            for b in range(2):
                c = "0" if ks == 0 else v(ACC(0,0,b),16)
                mf.append(f"v_mfma_f32_32x32x16_bf16 {v(ACC(0,0,b),16)}, {v(AF(si%3,0),4)}, {XF(ks,b)}, {c}")
        else:
            buf = (sg-5) & 1
            for a_ in range(chunks[sg-5]):
                for b in range(2):
                    c = "0" if ks == 0 else v(ACC2(buf,a_,b),16)
                    mf.append(f"v_mfma_f32_32x32x16_bf16 {v(ACC2(buf,a_,b),16)}, {a(AF2(si%3,a_),4)}, {HF(ks,b)}, {c}")
        ng = len(mf)
        do_bar = si + 2 < nsteps and steps[si+2][1] == 0
        rds = reads_for(si+2) if (si + 2 < nsteps and "nords" not in abl) else []
        nk_stage = 36 if sg <= 4 else 18
        if sg == 5: rem = max(1, 11 - ks) if ks < 11 else max(1, 17 - ks)
        else: rem = max(1, nk_stage - ks - 3)
        want = -(-sum(cost(x) for x in epi_q) // rem) if epi_q else 0
        ev = ev0 if sg == 0 else (ev1 if sg < 4 else (evh if sg == 4 else ev2))
        for gi in range(ng):
            e(mf[gi])
            used = 0
            if gi == ng-1: used += 1
            if gi == 0 and do_bar:
                barrier_for(steps[si+2][0]); used += budget
                gapctr += 1
                if ng > 2: continue
            if now_q and gi >= 1:
                emit_list(now_q); now_q.clear(); used += budget
            left_g = ng - gi
            nrd = min(len(rds), max(rd_per_gap, -(-len(rds) // left_g)))
            if gi == ng-1: nrd = len(rds)
            for it in rds[:nrd]: used += cost(it)
            emit_list(rds[:nrd]); rds = rds[nrd:]
            gapctr += 1
            npend = sum(1 for x in dma_q if is_dma(x))
            evv = ev if npend <= 8 else max(1, ev // 2)
            dma_credit[0] += 1.0 / evv
            if dma_q and dma_credit[0] >= 1.0 and (used + 3 <= budget or dma_credit[0] >= 2.0):
                lst = pop_dma(1); dma_credit[0] -= 1.0
                for it in lst: used += cost(it)
                emit_list(lst)
            if not dma_q: dma_credit[0] = min(dma_credit[0], 1.0)
            while epi_q and want > 0:
                c = cost(epi_q[0])
                must = (gi == ng-1)
                if used + c > budget and not must: break
                used += c; want -= c
                emit_list([epi_q.pop(0)])
        assert not rds
    if profile and fine < 0: stamp()
    assert not dma_q or "nodma" in abl
    emit_list(epi_q)
    if "noepi" not in abl: emit_list(epi2(len(chunks)-1))
    if profile:
        if fine < 0: stamp()
        e("s_waitcnt vmcnt(0)")
        while len(stamps) < 12: stamp()
        e("s_memrealtime s[42:43]"); e("s_waitcnt lgkmcnt(0)")
        if dbg:
            Ls = k.label("nodbg")
            e(f"s_cmp_lg_u32 s2, {dbg-1}"); e(f"s_cbranch_scc1 {Ls}"); e("s_cmp_lg_u32 s20, 0"); e(f"s_cbranch_scc1 {Ls}")
            e("s_load_dwordx2 s[34:35], s[0:1], 104"); e("s_waitcnt lgkmcnt(0)")
            srd(e, 16, 34, 256)
            e("s_mov_b32 s53, 0")
        else:
            e("s_add_u32 s34, s34, 0xC800000"); e("s_addc_u32 s35, s35, 0")
            srd(e, 16, 34, 1<<20)
            e("s_lshl_b32 s53, s2, 2"); e("s_add_u32 s53, s53, s20"); e("s_lshl_b32 s53, s53, 6")
        for i, r in enumerate(stamps[1:]):
            e(f"s_sub_u32 s54, s{r}, s{stamps[0]}")
            e("v_mov_b32 v1, s54"); e(f"v_mov_b32 v2, {4*i}")
            e("buffer_store_dword v1, v2, s[16:19], s53 offen")
        e("s_sub_u32 s54, s42, vcc_lo"); e("v_mov_b32 v1, s54"); e("v_mov_b32 v2, 60")
        e("buffer_store_dword v1, v2, s[16:19], s53 offen")
        e("v_mov_b32 v1, vcc_lo"); e("v_mov_b32 v2, 56")
        e("buffer_store_dword v1, v2, s[16:19], s53 offen")
        if dbg: e.raw(f"{Ls}:")
    e.raw(f"{Lend}:")
    e.raw("s_endpgm")
    print(f"F1: {e.count} instrs, nops inserted {e.nops_inserted}, stamps {len(stamps)}", file=sys.stderr)
    return k

if __name__ == "__main__":
    abl = [x for x in sys.argv[2:] if x.startswith("no")]
    kw = {}
    for x in sys.argv[2:]:
        if "=" in x:
            a_, b_ = x.split("="); kw[a_] = int(b_) if b_.lstrip("-").isdigit() else b_
    k = gen_f1(profile=("prof" in sys.argv[2:]), abl=abl, **kw)
    open(sys.argv[1], "w").write(build([k]))
```

```python
import sys, math
sys.path.insert(0, "gen")
from asmlib import *
from emit import E
LOG2E = 1.4426950408889634
WS_P = 0; WS_UT = 0x2800000; WS_G = 0x2B00000; WS_USED = 0x2C00000
ROWP = 528
TBL = 57*ROWP
CHP = 31616
CP = 4160
UT0 = 4*CHP
UTP = 5120
LDS_BYTES = UT0 + 4*UTP
YP = 9216

def gen_k2(name="k2_kernel", profile=False, prefetch_code=True, nsplit=16, bg_period=280, lag=6, out_flags="", dbg=0):
    k = K(name, (144,1,1), (512,1,1), LDS_BYTES, 256, sgpr=102)
    e0 = E(k)
    NP = 2*nsplit
    PRb = 192; PA = 44
    bg = []
    for i in range(NP + lag):
        grp = []
        if i < NP:
            fs, p = i // 2, i % 2
            grp.append(f"s_add_u32 s38, s37, {fs*144*16384 + p*8192}")
            grp.append((f"buffer_load_dwordx4 {v(PRb+4*(i%8),4)}, v18, s[48:51], s38 offen", ("p", i)))
        j = i - lag
        if j >= 0:
            grp.append(("WAITVM", ("p", j)))
            p = j % 2; r = PRb + 4*(j % 8)
            for d_ in range(4):
                a0 = PA + 8*p + 4*(d_ >> 1) + 2*(d_ & 1)
                grp.append(f"v_dot2c_f32_bf16 v{a0}, s39, v{r+d_}"); grp.append(f"v_dot2c_f32_bf16 v{a0+1}, s40, v{r+d_}")
        bg.append(grp)
    state = {"on": False, "cnt": 0}
    def bg_pop():
        for it in bg.pop(0):
            if isinstance(it, tuple) and it[0] == "WAITVM": e0.wait(vm=[it[1]])
            elif isinstance(it, tuple): e0(it[0], tag=it[1])
            else: e0(it)
    class W:
        def __call__(self, text, tag=None):
            e0(text, tag)
            if state["on"] and bg:
                op = text.split()[0]
                state["cnt"] += 32 if op.startswith("v_mfma") else (8 if op.startswith(("v_exp","v_sin","v_cos","ds_")) else 5)
                if state["cnt"] >= bg_period:
                    state["cnt"] -= bg_period; bg_pop()
        def __getattr__(self, n): return getattr(e0, n)
        def __setattr__(self, n, val): setattr(e0, n, val)
    e = W()
    stamps = []
    def stamp():
        if profile:
            r = 80 + len(stamps); stamps.append(r)
            e0("s_memtime s[78:79]"); e0("s_waitcnt lgkmcnt(0)"); e0(f"s_mov_b32 s{r}, s78")
    Lend = k.label("end")
    e("s_cmp_ge_u32 s2, 144"); e(f"s_cbranch_scc1 {Lend}")
    if profile:
        e("s_memrealtime s[76:77]"); e("s_waitcnt lgkmcnt(0)"); e("s_mov_b32 s90, s76")
    stamp()
    e("s_load_dwordx8 s[8:15], s[0:1], 8")
    e("s_load_dwordx4 s[16:19], s[0:1], 40")
    e("s_load_dwordx2 s[20:21], s[0:1], 96")
    e("s_load_dwordx2 s[22:23], s[0:1], 112")
    if prefetch_code:
        Lpf = k.label("pf")
        e("s_getpc_b64 s[40:41]")
        e.raw(f"{Lpf}:")
        e("v_min_u32 v1, 7, v0"); e("s_lshr_b32 s43, s2, 3"); e("s_lshl_b32 s43, s43, 3"); e("v_add_u32 v1, s43, v1")
        e("v_lshlrev_b32 v1, 7, v1"); e(f"v_min_u32 v1, ({Lend} - {Lpf}), v1")
        e("global_load_dword v127, v1, s[40:41]", tag="pf")
    e("v_mov_b32 v1, v0")
    e("v_lshrrev_b32 v2, 6, v0"); e("v_and_b32 v0, 63, v0")
    e("v_readfirstlane_b32 s24, v2")
    e("s_and_b32 s25, s2, 7"); e("s_mul_i32 s25, s25, 18"); e("s_lshr_b32 s26, s2, 3"); e("s_add_u32 s25, s25, s26")
    e("s_lshr_b32 s27, s24, 1")
    e("s_and_b32 s28, s24, 1")
    e("s_lshl_b32 s29, s25, 2"); e("s_add_u32 s29, s29, s27")
    e(f"s_mul_i32 s30, s27, {CHP}")
    e(f"s_mul_i32 s31, s27, {UTP}"); e(f"s_add_u32 s31, s31, {UT0}")
    e("s_lshl_b32 s32, s28, 6"); e("v_add_u32 v3, s32, v0")
    e("v_lshlrev_b32 v4, 1, v3")
    e("s_lshl_b32 s33, s29, 8")
    e("s_lshl_b32 s34, s29, 1"); e("v_mov_b32 v5, s34")
    e("v_lshrrev_b32 v6, 2, v0"); e("v_and_b32 v7, 3, v0")
    e("v_bfe_u32 v13, v6, 2, 1"); e("v_lshlrev_b32 v13, 1, v13"); e("v_xor_b32 v7, v7, v13")
    e("v_lshlrev_b32 v6, 6, v6"); e("v_lshl_add_u32 v6, v7, 4, v6")
    e("s_lshl_b32 s34, s29, 12"); e("s_lshl_b32 s35, s28, 11"); e("s_add_u32 s34, s34, s35"); e(f"s_add_u32 s34, s34, {WS_UT}")
    e("s_add_u32 s36, s31, 1024"); e("s_add_u32 m0, s36, s35")
    e("v_lshlrev_b32 v18, 4, v1")
    e("s_lshl_b32 s37, s25, 14")
    e("s_mov_b32 s39, 0x00003f80"); e("s_mov_b32 s40, 0x3f800000")
    for i in range(16): e(f"v_mov_b32 v{PA+i}, 0")
    e("v_mov_b32 v14, 0"); e("v_mov_b32 v15, 0"); e("v_mov_b32 v16, 0"); e("v_mov_b32 v17, 0")
    e("v_lshlrev_b32 v13, 4, v0"); e("v_add_u32 v13, s31, v13")
    e("ds_write_b128 v13, v[14:17]", tag="z")
    e("s_waitcnt lgkmcnt(0)")
    def mksrd(dst, base, n):
        e(f"s_mov_b32 s{dst}, s{base}"); e(f"s_and_b32 s{dst+1}, s{base+1}, 0xffff"); e(f"s_mov_b32 s{dst+2}, {n}"); e(f"s_mov_b32 s{dst+3}, 0x00020000")
    for i in range(4):
        mksrd(60+4*i, 8+2*i, 576*256)
    mksrd(44, 16, 1152)
    for i in range(4): e(f"buffer_load_ushort v{8+i}, v4, s[{60+4*i}:{63+4*i}], s33 offen", tag="par")
    e("buffer_load_ushort v12, v5, s[44:47], 0 offen", tag="par")
    mksrd(48, 22, WS_USED)
    e("buffer_load_dwordx4 v6, s[48:51], s34 offen lds", tag="ut")
    e("buffer_load_dwordx4 v6, s[48:51], s34 offen offset:1024 lds", tag="ut")
    mksrd(52, 20, 2048*1152)
    mksrd(56, 18, 1152)
    e(f"s_mov_b32 s38, {WS_G}")
    e("buffer_load_dwordx4 v[112:115], v18, s[48:51], s38 offen", tag="g")
    e(f"s_mov_b32 s38, {WS_G + 8192}")
    e("buffer_load_dwordx4 v[116:119], v18, s[48:51], s38 offen", tag="g")
    e("s_lshl_b32 s38, s25, 3"); e("v_mov_b32 v19, s38")
    e("buffer_load_dwordx2 v[120:121], v19, s[56:59], 0 offen", tag="g")
    for _ in range(3): bg_pop()
    stamp()
    e.wait(vm=["par"])
    state["on"] = True
    for i in range(5): e(f"v_lshlrev_b32 v{8+i}, 16, v{8+i}")
    for r in (12, 8):
        e(f"v_mul_f32 v{r}, {fimm(LOG2E)}, v{r}"); e(f"v_exp_f32 v{r}, v{r}")
        e(f"v_cvt_pk_bf16_f32 v{r}, v{r}, v{r}"); e(f"v_lshlrev_b32 v{r}, 16, v{r}")
    e("v_mul_f32 v8, v8, v12"); e("v_mul_f32 v9, v9, v12")
    e("v_mul_f32 v10, v10, v12"); e("v_mul_f32 v11, v11, v12")
    e("v_add_f32 v20, v10, v10"); e("v_add_f32 v21, v11, v11")
    e(f"v_mul_f32 v8, {fimm(-LOG2E)}, v8")
    e(f"v_mul_f32 v9, {fimm(1.0/(2*math.pi))}, v9")
    EREG = {1: 22, 2: 24, 4: 26, 8: 28, 128: 30, 256: 32, 512: 34, 1024: 36}
    T = 64
    ps = list(EREG)
    for i, p in enumerate(ps):
        lg = int(math.log2(p))
        if lg:
            e(f"v_ldexp_f32 v{T+3*i}, v8, {lg}"); e(f"v_ldexp_f32 v{T+3*i+1}, v9, {lg}")
        else:
            e(f"v_mov_b32 v{T+3*i}, v8"); e(f"v_mov_b32 v{T+3*i+1}, v9")
    for i in range(8): e(f"v_fract_f32 v{T+3*i+1}, v{T+3*i+1}")
    for i in range(8): e(f"v_exp_f32 v{T+3*i}, v{T+3*i}")
    for i in range(8): e(f"v_sin_f32 v{T+3*i+2}, v{T+3*i+1}")
    for i in range(8): e(f"v_cos_f32 v{T+3*i+1}, v{T+3*i+1}")
    for i, p in enumerate(ps):
        e(f"v_mul_f32 v{EREG[p]}, v{T+3*i}, v{T+3*i+1}"); e(f"v_mul_f32 v{EREG[p]+1}, v{T+3*i}, v{T+3*i+2}")
    e("v_lshlrev_b32 v6, 2, v3"); e("v_add_u32 v6, s30, v6")
    def cmul(dst, a_, b_):
        e(f"v_pk_mul_f32 {v(dst,2)}, {v(a_,2)}, {v(b_,2)} op_sel:[0,0] op_sel_hi:[0,1]")
        e(f"v_pk_fma_f32 {v(dst,2)}, {v(a_,2)}, {v(b_,2)}, {v(dst,2)} op_sel:[1,1,0] op_sel_hi:[1,0,1] neg_lo:[0,1,0]")
    wsel = [0]
    def put(row, src, conj=False):
        o = 100 + (wsel[0] & 3); wsel[0] += 1
        e(f"v_cvt_pk_bf16_f32 v{o}, v{src}, {'-' if conj else ''}v{src+1}")
        e(f"ds_write_b32 v6, v{o} offset:{row*ROWP}", tag="uv")
    def chain_seg0():
        cur = 20; regs = [64, 66]
        for i in range(8):
            if i > 0:
                nxt = regs[i & 1]; yield ("c", nxt, cur, EREG[1]); cur = nxt
            yield ("p", i, cur, False)
            yield ("c", 68 + 2*(i & 1), cur, EREG[128]); yield ("p", 8+i, 68 + 2*(i & 1), False)
    def chain_seg12():
        yield ("c", 72, 20, EREG[256]); cur = 72; regs = [74, 76]
        for i in range(4):
            if i > 0:
                nxt = regs[i & 1]; yield ("c", nxt, cur, EREG[2]); cur = nxt
            yield ("p", 16+i, cur, False)
            yield ("c", 78 + 2*(i & 1), cur, EREG[128]); yield ("p", 20+i, 78 + 2*(i & 1), False)
        yield ("c", 72, 20, EREG[512]); yield ("c", 74, 72, EREG[4])
        c0_, c1_ = 72, 74
        for i in range(4):
            yield ("p", 24+2*i, c0_, False); yield ("p", 25+2*i, c1_, False)
            if i < 3:
                n0 = 76 if c0_ != 76 else 72; n1 = 78 if c1_ != 78 else 74
                yield ("c", n0, c0_, EREG[128]); yield ("c", n1, c1_, EREG[128]); c0_, c1_ = n0, n1
    def chain_seg3():
        yield ("c", 82, 20, EREG[1024]); cur = 82
        for i in range(9):
            yield ("p", 32+i, cur, False)
            if i < 8:
                nxt = 84 if cur == 82 else 82; yield ("c", nxt, cur, EREG[128]); cur = nxt
    def chain_v():
        yield ("m", 86); yield ("p", 41, 86, True); yield ("p", 42, EREG[8], True)
        cur = EREG[8]
        for j in range(2, 16):
            nxt = 86 if cur != 86 else 88; yield ("c", nxt, cur, EREG[8]); cur = nxt
            yield ("p", 41+j, cur, True)
    chains = [chain_seg0(), chain_seg12(), chain_seg3(), chain_v()]
    live = list(chains)
    while live:
        for c in list(live):
            try: it = next(c)
            except StopIteration: live.remove(c); continue
            if it[0] == "c": cmul(it[1], it[2], it[3])
            elif it[0] == "p": put(it[1], it[2], it[3])
            else: e(f"v_mov_b32 v{it[1]}, 1.0"); e(f"v_mov_b32 v{it[1]+1}, 0")
    stamp()
    e("v_and_b32 v7, 15, v0"); e("v_lshrrev_b32 v13, 4, v0")
    e(f"v_mul_u32_u24 v22, {ROWP}, v7"); e("v_lshl_add_u32 v22, v13, 4, v22"); e("v_add_u32 v22, s30, v22")
    e.wait_all_ds(); e("s_barrier")
    KB = 64; KA = 96; KD = 24
    KA = 128
    for s_ in range(8): e(f"ds_read_b128 {v(KB+4*s_,4)}, v22 offset:{41*ROWP + 64*s_}", tag="kb")
    for tile in range(2):
        for s_ in range(8): e(f"ds_read_b128 {v(KA+32*tile+4*s_,4)}, v22 offset:{tile*16*ROWP + 64*s_}", tag=("ka", tile))
    def kt(tile, areg):
        e.wait(ds=[("ka", tile), "kb"])
        for s_ in range(8):
            c = "0" if s_ == 0 else v(KD+4*tile,4)
            e(f"v_mfma_f32_16x16x32_bf16 {v(KD+4*tile,4)}, {v(areg+4*s_,4)}, {v(KB+4*s_,4)}, {c}")
    kt(0, KA)
    for s_ in range(8): e(f"ds_read_b128 {v(KA+4*s_,4)}, v22 offset:{2*16*ROWP + 64*s_}", tag=("ka", 2))
    kt(1, KA+32)
    kt(2, KA)
    e("v_lshrrev_b32 v36, 1, v13"); e("v_lshlrev_b32 v36, 8, v36"); e("v_lshl_add_u32 v36, v7, 4, v36")
    e("v_and_b32 v37, 1, v13"); e("v_lshl_add_u32 v36, v37, 3, v36"); e("v_add_u32 v36, s30, v36")
    e("v_cvt_pk_bf16_f32 v38, v24, v25"); e("v_cvt_pk_bf16_f32 v39, v26, v27")
    e(f"ds_write_b64 v36, v[38:39] offset:{TBL}", tag="tb")
    T1 = TBL + 512; T2 = T1 + 256; T3 = T2 + 256
    e("v_lshlrev_b32 v36, 7, v13"); e("v_lshl_add_u32 v37, v7, 3, v36")
    e("v_lshl_add_u32 v36, v7, 2, v36")
    e("v_cmp_gt_u32 vcc, 2, v13")
    e("v_cndmask_b32 v36, v36, v37, vcc")
    e("v_mov_b32 v37, 64"); e("v_cndmask_b32 v37, v37, 4, vcc") if False else None
    e("v_mov_b32 v40, 64"); e("v_mov_b32 v41, 4"); e("v_cndmask_b32 v37, v40, v41, vcc")
    e("v_add_u32 v36, s30, v36"); e("v_add_u32 v37, v36, v37")
    e("v_cvt_pk_bf16_f32 v38, v28, v29"); e("v_cvt_pk_bf16_f32 v39, v30, v31")
    e(f"ds_write_b32 v36, v38 offset:{T1}", tag="tb"); e(f"ds_write_b32 v37, v39 offset:{T1}", tag="tb")
    e("v_lshlrev_b32 v36, 7, v13"); e("v_lshl_add_u32 v36, v7, 1, v36"); e("v_add_u32 v36, s30, v36")
    e("v_cvt_pk_bf16_f32 v38, v32, v33"); e("v_cvt_pk_bf16_f32 v39, v34, v35")
    e("v_min_u32 v37, 2, v13"); e("v_lshlrev_b32 v37, 7, v37"); e("v_lshl_add_u32 v37, v7, 1, v37"); e("v_add_u32 v37, s30, v37")
    e("v_cmp_gt_u32 vcc, 3, v13"); e("s_and_saveexec_b64 s[76:77], vcc") if False else None
    e("v_cmp_eq_u32 vcc, 3, v13"); e("v_add_u32 v40, 0x60, v37"); e("v_cndmask_b32 v41, v36, v40, vcc")
    e(f"ds_write_b16 v41, v38 offset:{T3}", tag="tb")
    e(f"ds_write_b16_d16_hi v37, v38 offset:{T3 + 32}", tag="tb")
    e(f"ds_write_b16 v37, v39 offset:{T3 + 64}", tag="tb")
    e(f"ds_write_b16_d16_hi v37, v39 offset:{T3 + 96}", tag="tb")
    e.wait_all_ds(); e("s_barrier")
    stamp()
    e("s_mov_b32 s41, 0x01000100"); e("s_mov_b32 s42, 0x05040100")
    e("v_lshlrev_b32 v23, 2, v0"); e("v_add_u32 v23, s30, v23")
    for sg_, base in ((1, T1), (2, T2), (3, T3)):
        r0 = 24 + 4*(sg_-1)
        for q in range(3): e(f"ds_read_u16 v{r0+q}, v23 offset:{base+2*q}", tag="x")
    e("v_lshlrev_b32 v27, 3, v0"); e("v_add_u32 v27, s30, v27")
    e(f"ds_read_b64 v[36:37], v27 offset:{TBL}", tag="x")
    e("v_lshlrev_b32 v31, 4, v0"); e("v_add_u32 v31, s30, v31"); e("v_lshlrev_b32 v35, 5, v0"); e("v_add_u32 v35, s30, v35")
    e("v_mov_b32 v38, 0"); e("v_mov_b32 v39, 0"); e("v_min_u32 v40, 7, v0"); e("v_lshlrev_b32 v40, 3, v40"); e("v_add_u32 v40, s30, v40")
    e("ds_write_b64 v40, v[38:39]", tag="c0")
    e.wait(ds=["x"])
    e(f"ds_write_b64 v27, v[36:37] offset:64", tag="c0")
    e("v_perm_b32 v64, v24, v24, s41"); e("v_perm_b32 v65, v26, v25, s42")
    e(f"ds_write_b64 v27, v[64:65] offset:{64 + 512}", tag="c0")
    e("v_perm_b32 v68, v28, v28, s41"); e("v_perm_b32 v69, v29, v28, s42"); e("v_perm_b32 v70, v29, v29, s41"); e("v_perm_b32 v71, v30, v30, s41")
    e(f"ds_write_b128 v31, v[68:71] offset:{64 + 1024}", tag="c0")
    e("v_perm_b32 v72, v32, v32, s41"); e("v_mov_b32 v73, v72"); e("v_perm_b32 v74, v33, v32, s42"); e("v_perm_b32 v75, v33, v33, s41")
    e("v_mov_b32 v76, v75"); e("v_mov_b32 v77, v75"); e("v_perm_b32 v78, v34, v34, s41"); e("v_mov_b32 v79, v78")
    e(f"ds_write_b128 v35, v[72:75] offset:{64 + 2048}", tag="c0"); e(f"ds_write_b128 v35, v[76:79] offset:{64 + 2048 + 16}", tag="c0")
    e.wait_all_ds()
    for ps_ in range(3):
        a_ = 24 + ps_
        e(f"s_mul_i32 s34, s28, 130"); e(f"s_add_u32 s34, s34, {64*ps_}")
        e(f"v_add_u32 v{a_}, s34, v0")
        if ps_ == 2:
            e("s_mul_i32 s35, s28, 130"); e("s_add_u32 s35, s35, 129"); e(f"v_min_u32 v{a_}, s35, v{a_}")
        e(f"v_lshlrev_b32 v{a_}, 4, v{a_}"); e(f"v_add_u32 v{a_}, s30, v{a_}")
        e(f"v_subrev_u32 v27, 8, v{a_}"); e("v_max_i32 v27, 0, v27")
        e(f"ds_read_b128 {v(64+8*ps_+4,4)}, v{a_}", tag=("cr", ps_))
        e(f"ds_read_b64 {v(64+8*ps_+2,2)}, v27", tag=("cr", ps_))
    for ps_ in range(3):
        a_ = 24 + ps_; D = 64 + 8*ps_
        e.wait(ds=[("cr", ps_)])
        o = 128 + 12*ps_
        e(f"v_alignbit_b32 v{o}, v{D+4}, v{D+3}, 16"); e(f"v_alignbit_b32 v{o+1}, v{D+5}, v{D+4}, 16"); e(f"v_alignbit_b32 v{o+2}, v{D+6}, v{D+5}, 16"); e(f"v_alignbit_b32 v{o+3}, v{D+7}, v{D+6}, 16")
        e(f"ds_write_b128 v{a_}, {v(o,4)} offset:{CP}", tag="cw")
        e(f"v_mov_b32 v{o+4}, v{D+3}"); e(f"v_mov_b32 v{o+5}, v{D+4}"); e(f"v_mov_b32 v{o+6}, v{D+5}"); e(f"v_mov_b32 v{o+7}, v{D+6}")
        e(f"ds_write_b128 v{a_}, {v(o+4,4)} offset:{2*CP}", tag="cw")
        e(f"v_alignbit_b32 v{o+8}, v{D+3}, v{D+2}, 16"); e(f"v_mov_b32 v{o+9}, v{o}"); e(f"v_mov_b32 v{o+10}, v{o+1}"); e(f"v_mov_b32 v{o+11}, v{o+2}")
        e(f"ds_write_b128 v{a_}, {v(o+8,4)} offset:{3*CP}", tag="cw")
    e("v_bfe_u32 v23, v0, 2, 2"); e(f"v_mul_u32_u24 v23, {CP}, v23")
    e("v_and_b32 v24, 3, v0"); e("v_lshl_add_u32 v23, v24, 3, v23")
    e("v_lshlrev_b32 v24, 4, v13"); e("v_sub_u32 v23, v23, v24")
    e("s_lshl_b32 s34, s28, 9"); e("s_add_u32 s34, s34, s30"); e(f"s_add_u32 s34, s34, {64 - 8}"); e("v_add_u32 v23, s34, v23")
    VA = 23
    e.wait(vm=["ut"])
    e.wait_all_ds(); e("s_barrier")
    stamp()
    ACCc = 64
    AFr = lambda st, j, rt: (128 if st == 0 else 160) + (j*2+rt)*4
    BF = lambda st, m: (96 + 4*m) if st == 0 else (24 + 4*m)
    def conv_reads(d0):
        s2 = d0 & 1; rl = []
        rl.append(f"s_lshl_b32 s35, s28, 3"); rl.append(f"s_sub_u32 s35, {16 - d0}, s35")
        rl.append("v_add_u32 v62, s35, v7"); rl.append("v_bfe_u32 v63, v62, 2, 1"); rl.append("v_lshlrev_b32 v63, 1, v63"); rl.append("v_xor_b32 v63, v63, v13")
        rl.append("v_lshlrev_b32 v62, 6, v62"); rl.append("v_lshl_add_u32 v62, v63, 4, v62"); rl.append("v_add_u32 v62, s31, v62")
        rl.append((f"ds_read_b128 {v(BF(s2,0),4)}, v62", ("cv", d0)))
        for j in range(4):
            for rt in range(2):
                for t in range(2):
                    rl.append((f"ds_read_b64_tr_b16 {v(AFr(s2,j,rt)+2*t,2)}, v{VA} offset:{64*d0 + 1024*j + 32*rt - 8*t + 8}", ("cv", d0)))
            if j < 3: rl.append((f"ds_read_b128 {v(BF(s2,j+1),4)}, v62 offset:{1024*(j+1)}", ("cv", d0)))
        return rl
    def em(it):
        if isinstance(it, tuple): e(it[0], tag=it[1])
        else: e(it)
    for it in conv_reads(0): em(it)
    first = set()
    for i in range(8):
        st = i & 1
        e.wait(ds=[("cv", i)])
        mf = []
        for j in range(4):
            for ct in range(j, 4):
                for rt in range(2):
                    acc = ACCc + (ct*2+rt)*4
                    c = v(acc,4) if (ct, rt) in first else "0"
                    first.add((ct, rt))
                    mf.append(f"v_mfma_f32_16x16x32_bf16 {v(acc,4)}, {v(AFr(st,j,rt),4)}, {v(BF(st,ct-j),4)}, {c}")
        rl = conv_reads(i+1) if i + 1 < 8 else []
        idx = 0
        for m_ in mf:
            e(m_)
            for _ in range(2):
                if idx < len(rl): em(rl[idx]); idx += 1
        while idx < len(rl): em(rl[idx]); idx += 1
    stamp()
    state["on"] = False
    e("s_barrier")
    e("s_lshl_b32 s34, s28, 2"); e("s_add_u32 s34, s34, s27"); e(f"s_mul_i32 s34, s34, {YP}")
    e("v_mul_u32_u24 v62, 144, v7"); e("v_lshl_add_u32 v62, v13, 4, v62"); e("v_add_u32 v62, s34, v62")
    for ct in range(4):
        for rt in range(2):
            e(f"ds_write_b128 v62, {v(ACCc+(ct*2+rt)*4,4)} offset:{ct*16*144 + rt*64}", tag="y")
    while bg: bg_pop()
    e("v_lshrrev_b32 v62, 4, v1"); e("v_mul_u32_u24 v62, 144, v62"); e("v_and_b32 v63, 15, v1"); e("v_lshl_add_u32 v62, v63, 3, v62")
    e("v_lshrrev_b32 v24, 4, v1")
    e("v_bfe_u32 v25, v24, 2, 1"); e("v_lshlrev_b32 v25, 1, v25"); e("v_bfe_u32 v26, v1, 2, 2"); e("v_xor_b32 v25, v25, v26")
    e("v_lshlrev_b32 v24, 6, v24"); e("v_lshl_add_u32 v24, v25, 4, v24"); e("v_and_b32 v25, 3, v1"); e("v_lshl_add_u32 v24, v25, 2, v24")
    e(f"v_add_u32 v24, {UT0 + 1024}, v24")
    e(f"v_add_u32 v63, {32*144}, v62")
    e("v_lshlrev_b32 v26, 1, v1"); e("s_movk_i32 s34, 1152"); e("v_mul_lo_u32 v26, v26, s34"); e("s_lshl_b32 s35, s25, 3")
    e.wait(vm=["g"])
    e("v_lshlrev_b32 v122, 16, v120"); e("v_and_b32 v123, 0xffff0000, v120"); e("v_lshlrev_b32 v124, 16, v121"); e("v_and_b32 v125, 0xffff0000, v121")
    UR = 160
    for p in range(2):
        for ch in range(4): e(f"ds_read_b32 v{UR + 4*p + ch}, v24 offset:{ch*UTP + p*2048}", tag="ur")
    e.wait(ds=["y"]); e("s_barrier")
    stamp()
    YR = 128
    for p in range(2):
        for ch in range(4):
            for h in range(2):
                e(f"ds_read_b64 {v(YR + 16*p + 4*ch + 2*h, 2)}, v{62+p} offset:{(h*4+ch)*YP}", tag=("yr", p))
    for p in range(2):
        e.wait(ds=[("yr", p), "ur"])
        for tk in range(2):
            g_ = 112 + 4*p + 2*tk
            for ch in range(4):
                y0 = YR + 16*p + 4*ch + tk; y1 = y0 + 2
                t0 = 28 + ch; ur = UR + 4*p + ch
                if tk == 0: e(f"v_lshlrev_b32 v{32+ch}, 16, v{ur}")
                else: e(f"v_and_b32 v{32+ch}, 0xffff0000, v{ur}")
            for ch in range(4): e(f"v_fma_f32 v{32+ch}, v{32+ch}, v{122+ch}, v{YR + 16*p + 4*ch + tk}")
            for ch in range(4): e(f"v_add_f32 v{32+ch}, v{32+ch}, v{YR + 16*p + 4*ch + tk + 2}")
            for ch in range(4): e(f"v_mul_f32 v{28+ch}, v{g_+1}, v{PA + 8*p + 4*tk + ch}")
            for ch in range(4): e(f"v_fma_f32 v{28+ch}, v{g_}, v{32+ch}, v{28+ch}")
            o = 36 + 2*(2*p+tk)
            e(f"v_cvt_pk_bf16_f32 v{o}, v28, v29"); e(f"v_cvt_pk_bf16_f32 v{o+1}, v30, v31")
            e(f"s_add_u32 s36, s35, {(1024*p + tk)*1152}")
            e(f"buffer_store_dwordx2 {v(o,2)}, v26, s[52:55], s36 offen {out_flags}".rstrip(), tag="o")
    if profile:
        stamp(); e("s_waitcnt vmcnt(0)"); stamp()
        e("s_memrealtime s[76:77]"); e("s_waitcnt lgkmcnt(0)")
        if dbg:
            Ls = k.label("nodbg")
            e("s_cmp_lg_u32 s2, 0"); e(f"s_cbranch_scc1 {Ls}"); e("s_cmp_lg_u32 s24, 0"); e(f"s_cbranch_scc1 {Ls}")
            e("s_add_u32 s22, s22, 0xC800000"); e("s_addc_u32 s23, s23, 0")
            e("s_load_dwordx16 s[44:59], s[22:23], 0")
            e("s_load_dwordx2 s[22:23], s[0:1], 104"); e("s_waitcnt lgkmcnt(0)")
            mksrd(60, 22, 256)
            for i in range(11):
                e(f"v_mov_b32 v1, s{44+i}"); e(f"v_mov_b32 v2, {4*i}"); e("buffer_store_dword v1, v2, s[60:63], 0 offen")
            e("v_mov_b32 v1, s59"); e("v_mov_b32 v2, 44"); e("buffer_store_dword v1, v2, s[60:63], 0 offen")
            e("s_sub_u32 s35, s90, s58"); e("v_mov_b32 v1, s35"); e("v_mov_b32 v2, 48"); e("buffer_store_dword v1, v2, s[60:63], 0 offen")
            e("s_sub_u32 s35, s76, s90"); e("v_mov_b32 v1, s35"); e("v_mov_b32 v2, 52"); e("buffer_store_dword v1, v2, s[60:63], 0 offen")
            e(f"s_sub_u32 s35, s{stamps[-1]}, s{stamps[0]}"); e("v_mov_b32 v1, s35"); e("v_mov_b32 v2, 56"); e("buffer_store_dword v1, v2, s[60:63], 0 offen")
            e.raw(f"{Ls}:")
        else:
            e("s_add_u32 s22, s22, 0xC900000"); e("s_addc_u32 s23, s23, 0")
            mksrd(48, 22, 1<<20)
            e("s_lshl_b32 s34, s2, 3"); e("s_add_u32 s34, s34, s24"); e("s_lshl_b32 s34, s34, 6")
            for i, r in enumerate(stamps[1:]):
                e(f"s_sub_u32 s35, s{r}, s{stamps[0]}"); e("v_mov_b32 v1, s35"); e(f"v_mov_b32 v2, {4*i}")
                e("buffer_store_dword v1, v2, s[48:51], s34 offen")
            e("s_sub_u32 s35, s76, s90"); e("v_mov_b32 v1, s35"); e("v_mov_b32 v2, 60"); e("buffer_store_dword v1, v2, s[48:51], s34 offen")
            e("v_mov_b32 v1, s90"); e("v_mov_b32 v2, 56"); e("buffer_store_dword v1, v2, s[48:51], s34 offen")
    e.raw(f"{Lend}:")
    e.raw("s_endpgm")
    print(f"K2: {e0.count} instrs, nops inserted {e0.nops_inserted}, bg left {len(bg)}, stamps {len(stamps)}", file=sys.stderr)
    return k

if __name__ == "__main__":
    k = gen_k2(profile=("prof" in sys.argv[2:]))
    open(sys.argv[1], "w").write(build([k]))
```

```python
import sys, math
sys.path.insert(0, "gen")
from asmlib import *
from emit import E
LOG2E = 1.4426950408889634
WS_P = 0
P_BYTES = 16*144*2048*8
WS_UT = 0x2800000
WS_G = 0x2B00000
WS_KX = 0x2C00000
KXP = 5120
WS_USED = 0x3000000
SLOT = 16384
HREG = 5*SLOT
LDS_BYTES = 10*SLOT

ACC = lambda buf, a, b: 128 + buf*64 + (a*2+b)*16
ACC2 = lambda buf, a, b: (160 if buf == 0 else 64) + (a*2+b)*16
def XF(ks, b):
    return a((ks*2+b)*4, 4) if ks < 32 else v(96 + (ks-32)*8 + b*4, 4)
HF = lambda ks, b: a((ks*2+b)*4, 4)
AF = lambda st, a_: 72 + st*8 + a_*4
AF2 = lambda st, a_: 144 + st*12 + a_*4
OUT = lambda i: 64 + 4*i
TMP = 56
SX = 56; SW = 65; SD = 74
SU = 83
VW = 4; VTR = 8; VHW = 14; VK0 = 15; VWH = 16; VTRH = 18; VX = 21; VXR = 25; VXA = 29
VHWH = 33; VD = 34; VT2 = 37; VP = 46; VHR = 47; VHA = 48
STAMP0 = 92

def gen_f1(name="f1_kernel", store_flags="sc1", prefetch_code=True, profile=False, abl=(), init_units=4,
           ev0=2, ev1=4, evh=4, ev2=3, rot=1, chunks=(3,3,3), budget=5, rd_per_gap=2, fine=-1, side_flags="", dbg=0, kgen=0, budget0=9, pgm=1):
    k = K(name, (256,1,1), (256,1,1), LDS_BYTES, 256, agpr=256, sgpr=102)
    e = E(k)
    stamps = []
    def stamp():
        if profile:
            r = ([92,93,94,95,96,97,24,23,50,52,51,49])[len(stamps)]; stamps.append(r)
            e(f"s_memtime s[40:41]"); e("s_waitcnt lgkmcnt(0)"); e(f"s_mov_b32 s{r}, s40")
    Lend = k.label("end")
    e("s_cmp_ge_u32 s2, 256")
    e(f"s_cbranch_scc1 {Lend}")
    if profile:
        e("s_memrealtime s[42:43]"); e("s_waitcnt lgkmcnt(0)"); e("s_mov_b32 s99, s42")
    stamp()
    e("s_load_dwordx2 s[32:33], s[0:1], 0")
    e("s_load_dwordx4 s[36:39], s[0:1], 64")
    e("s_load_dwordx2 s[44:45], s[0:1], 80")
    e("s_load_dwordx2 s[34:35], s[0:1], 112")
    e("s_load_dwordx2 s[100:101], s[0:1], 88")
    if kgen:
        e("s_load_dwordx8 s[76:83], s[0:1], 8")
        e("s_load_dwordx2 s[84:85], s[0:1], 40")
    if prefetch_code:
        Lpf = k.label("pf")
        e("s_getpc_b64 s[40:41]")
        e.raw(f"{Lpf}:")
        e("v_min_u32 v1, 15, v0")
        e("s_lshr_b32 s43, s2, 3")
        e("s_lshl_b32 s43, s43, 4")
        e("v_add_u32 v1, s43, v1")
        e("v_lshlrev_b32 v1, 7, v1")
        e(f"v_min_u32 v1, ({Lend} - {Lpf}), v1")
        e("global_load_dword v63, v1, s[40:41]", tag="pf")
    e("v_lshrrev_b32 v1, 6, v0")
    e("v_and_b32 v0, 63, v0")
    e("v_readfirstlane_b32 s20, v1")
    e("s_and_b32 s42, s2, 7")
    e("s_lshr_b32 s43, s2, 3")
    e("s_and_b32 s46, s42, 1"); e("s_lshl_b32 s46, s46, 3"); e("s_and_b32 s47, s43, 7"); e("s_add_u32 s46, s46, s47")
    e("s_lshr_b32 s48, s42, 1"); e("s_lshl_b32 s48, s48, 2"); e("s_lshr_b32 s49, s43, 3"); e("s_add_u32 s48, s48, s49")
    e("s_lshr_b32 s21, s20, 1")
    e("s_and_b32 s22, s20, 1")
    e("s_mul_i32 s50, s48, 576")
    e("s_and_b32 s51, s48, 1")
    e("s_lshl_b32 s52, s51, 6"); e("s_add_u32 s52, s52, s50")
    e("s_xor_b32 s53, s51, 1"); e("s_lshl_b32 s53, s53, 9"); e("s_add_u32 s53, s53, s50")
    e("s_lshl_b32 s24, s46, 2"); e("s_add_u32 s24, s24, s20"); e(f"s_mul_i32 s24, s24, {32*1152}")
    e(f"s_mul_i32 s23, s20, {16*9216}")
    e(f"s_mov_b32 s{SX}, s24"); e(f"s_mov_b32 s{SW}, s23")
    e("s_lshl_b32 s54, s49, 1"); e("s_add_u32 s54, s54, s47"); e("s_bfe_u32 s55, s42, 0x10001"); e("s_add_u32 s54, s54, s55"); e("s_and_b32 s54, s54, 7")
    if not rot: e("s_mov_b32 s54, 0")
    for l in range(1, 9):
        e("s_add_u32 s55, s54, 1")
        e(f"s_lshl_b32 s29, s55, 7"); e(f"s_add_u32 s{SX+l}, s24, s29")
        e(f"s_mul_i32 s29, s55, {64*9216}"); e(f"s_add_u32 s{SW+l}, s23, s29")
        if l < 8:
            e("s_add_u32 s54, s54, 1"); e("s_and_b32 s54, s54, 7")
    e("s_lshl_b32 s30, s20, 12")
    e("s_lshl_b32 s31, s20, 11")
    c0 = -2.0*math.sqrt(2.0/math.pi)*LOG2E; c1 = c0*0.044715
    e(f"s_mov_b32 s27, {fimm(c1)}")
    e(f"v_mov_b32 v{VK0}, {fimm(c0)}")
    e("v_lshrrev_b32 v1, 3, v0"); e("v_and_b32 v2, 7, v0"); e("v_bfe_u32 v3, v0, 4, 1")
    e("s_movk_i32 s55, 9216"); e("v_mul_lo_u32 v1, v1, s55")
    for q in range(4):
        m = q >> 1
        e(f"v_or_b32 v{VW+q}, {m<<1}, v3")
        e(f"v_lshlrev_b32 v{VW+q}, 1, v{VW+q}")
        e(f"v_xor_b32 v{VW+q}, v{VW+q}, v2")
        e(f"v_lshl_add_u32 v{VW+q}, v{VW+q}, 4, v1")
        add = (8*9216 if q & 1 else 0) - 1024*q + (2048 if m else 0)
        if add: e(f"v_add_u32 v{VW+q}, {add}, v{VW+q}")
    e("v_lshrrev_b32 v1, 3, v0"); e("s_movk_i32 s55, 1152"); e("v_mul_lo_u32 v1, v1, s55"); e("v_lshrrev_b32 v3, 4, v0")
    for i in range(4):
        e(f"v_add_u32 v{VX+i}, {4*i}, v3")
        e(f"v_and_b32 v{VX+i}, 7, v{VX+i}")
        e(f"v_xor_b32 v{VX+i}, v{VX+i}, v2")
        e(f"v_lshl_add_u32 v{VX+i}, v{VX+i}, 4, v1")
        add = 8*i*1152 - 1024*i
        if add: e(f"v_add_u32 v{VX+i}, {add}, v{VX+i}")
    if profile and fine < 0: stamp()
    e("s_waitcnt lgkmcnt(0)")
    srd(e, 4, 32, 2048*1152)
    e("s_sub_u32 s38, s38, 2048"); e("s_subb_u32 s39, s39, 0")
    e("s_add_u32 s8, s36, s52"); e("s_addc_u32 s9, s37, 0"); e("s_and_b32 s9, s9, 0xffff")
    e(f"s_mov_b32 s10, {576*9216}"); e("s_mov_b32 s11, 0x00020000")
    e("s_add_u32 s12, s38, s52"); e("s_addc_u32 s13, s39, 0"); e("s_and_b32 s13, s13, 0xffff")
    e(f"s_mov_b32 s14, {576*9216 + 2048}"); e("s_mov_b32 s15, 0x00020000")
    units = []
    for c in range(9):
        units.append(("X", 0, c)); units.append(("W", 0, c))
    for s_ in range(1, 4):
        for c in range(9): units.append(("W", s_, c))
    for c in range(5): units.append(("HF", 4, c))
    for dc in range(len(chunks)):
        for c in range(9): units.append(("D", dc, c))
    phases = []
    n = 0
    for c in range(9): phases.append(([n, n+1], 0, 4*c, 4)); n += 2
    for s_ in range(1, 4):
        for c in range(9): phases.append(([n], s_, 4*c, 4)); n += 1
    for c in range(5): phases.append(([n], 4, 8*c, 8 if c < 4 else 4)); n += 1
    for dc in range(len(chunks)):
        for c in range(9): phases.append(([n], 5+dc, 2*c, 2)); n += 1
    unit_phase = {}
    for pi, ph in enumerate(phases):
        for u in ph[0]: unit_phase[u] = pi
    first_g2 = next(pi for pi, ph in enumerate(phases) if ph[1] == 5)
    first_g2c1 = next(pi for pi, ph in enumerate(phases) if ph[1] == 6)
    free_after = {i*SLOT: -1 for i in range(5)}
    slot_of = {}; issue_after = {}
    last = -1
    g2_ready = False
    for u in range(len(units)):
        if units[u][0] == "D" and not g2_ready:
            g2_ready = True
            old_fa = dict(free_after)
            free_after = {}
            US = 12288
            for i in range(6):
                lo, hi = i*US, (i+1)*US
                free_after[lo] = max(fa for s_, fa in old_fa.items() if s_ < hi and s_ + SLOT > lo)
            for i in range(6):
                free_after[HREG + i*US] = first_g2c1
        sl = min(free_after, key=lambda s_: (max(free_after[s_], last), s_))
        ia = max(free_after[sl], last)
        slot_of[u] = sl; issue_after[u] = ia; last = ia
        free_after[sl] = unit_phase[u] + 1
    col_of_chunk = [sum(chunks[:i])*64 for i in range(len(chunks))]
    def dma_unit(n):
        kind, g, c = units[n]
        slot = slot_of[n]
        out = []
        if kind == "X":
            out.append(f"s_add_u32 m0, s30, {slot}")
            for i in range(4):
                off = f" offset:{1024*i}" if i else ""
                out.append((f"buffer_load_dwordx4 v{VX+i}, s[4:7], s{SX+c} offen{off} lds", ("dma", n)))
        elif kind == "W":
            if c == 0 and g > 0:
                out.append("s_add_u32 s8, s8, 128"); out.append("s_addc_u32 s9, s9, 0")
                out.append("s_add_u32 s12, s12, 128"); out.append("s_addc_u32 s13, s13, 0")
            out.append(f"s_add_u32 m0, s30, {slot}")
            for q in range(4):
                srd_ = "s[8:11]" if q < 2 else "s[12:15]"
                off = f" offset:{1024*q}" if q else ""
                out.append((f"buffer_load_dwordx4 v{VW+q}, {srd_}, s{SW+c} offen{off} lds", ("dma", n)))
        elif kind == "HF":
            if c == 0:
                out.append("s_add_u32 s8, s36, s53"); out.append("s_addc_u32 s9, s37, 0"); out.append("s_and_b32 s9, s9, 0xffff")
                out.append("s_add_u32 s12, s38, s53"); out.append("s_addc_u32 s13, s39, 0"); out.append("s_and_b32 s13, s13, 0xffff")
            nk = 2 if c < 4 else 1
            for ee in range(nk):
                out.append(f"s_add_u32 m0, s31, {slot + ee*8192}")
                out.append((f"buffer_load_dwordx4 v{VWH}, s[8:11], s{SW+2*c+ee} offen lds", ("dma", n)))
                out.append((f"buffer_load_dwordx4 v{VWH+1}, s[12:15], s{SW+2*c+ee} offen offset:1024 lds", ("dma", n)))
        else:
            nt = chunks[g]
            assert nt == 3
            if c == 0 and g > 0:
                out.append(f"s_add_u32 s4, s4, {chunks[g-1]*128}"); out.append("s_addc_u32 s5, s5, 0")
            out.append(f"s_add_u32 m0, s28, {slot}")
            for i in range(3):
                off = f" offset:{1024*i}" if i else ""
                out.append((f"buffer_load_dwordx4 v{VD+i}, s[4:7], s{SD+c} offen{off} lds", ("dma", n)))
        return out
    def emit_list(lst):
        for it in lst:
            if isinstance(it, tuple) and it[0] == "WAITDS": e.wait(ds=[it[1]])
            elif isinstance(it, tuple) and it[0] == "WAITVM": e.wait(vm=[it[1]])
            elif isinstance(it, tuple): e(it[0], tag=it[1])
            else: e(it)
    next_dma = 0
    dma_q = []
    def release(bar):
        nonlocal next_dma
        while next_dma < len(units) and issue_after[next_dma] <= bar:
            if units[next_dma][0] == "D" and units[next_dma][1] == 0 and units[next_dma][2] == 0:
                dma_q.extend(g2_setup())
            if "nodma" in abl and next_dma >= init_units: pass
            else: dma_q.extend(dma_unit(next_dma))
            next_dma += 1
    def is_dma(it): return isinstance(it, tuple) and it[1] is not None and it[1][0] == "dma"
    def pop_dma(n):
        out = []
        while dma_q and n > 0:
            it = dma_q.pop(0); out.append(it)
            if is_dma(it): n -= 1
        return out
    def g2_setup():
        l = []
        l.append("s_mov_b32 s4, s44"); l.append("s_and_b32 s5, s45, 0xffff"); l.append(f"s_mov_b32 s6, {4608*1152}")
        return l
    release(-1)
    u0 = pop_dma(4); u1 = pop_dma(4)
    La = k.label("ord"); Lb = k.label("ordd")
    e("s_add_u32 s55, s47, s49"); e("s_and_b32 s55, s55, 1"); e("s_cmp_eq_u32 s55, 0")
    e(f"s_cbranch_scc1 {La}")
    vm_save = list(e.vm)
    emit_list(u1); emit_list(u0)
    e(f"s_branch {Lb}")
    e.raw(f"{La}:")
    e.vm = list(vm_save)
    emit_list(u0); emit_list(u1)
    e.raw(f"{Lb}:")
    e.m0_w = -100
    pending_init = init_units - 2
    if profile and fine < 0: stamp()
    if kgen:
        e("s_lshl_b32 s55, s2, 2"); e("s_add_u32 s55, s55, s20"); e("s_sub_u32 s26, s55, 576"); e("s_cmp_ge_u32 s55, 576"); e("s_cselect_b32 s91, s26, s55")
        e("s_lshl_b32 s55, s91, 8")
        e("v_lshlrev_b32 v233, 1, v0")
        for i in range(4):
            e(f"s_mov_b32 s40, s{76+2*i}"); e(f"s_and_b32 s41, s{77+2*i}, 0xffff"); e(f"s_mov_b32 s42, {576*256}"); e("s_mov_b32 s43, 0x00020000")
            e(f"buffer_load_ushort v{224+i}, v233, s[40:43], s55 offen", tag="kp")
            e(f"buffer_load_ushort v{228+i}, v233, s[40:43], s55 offen offset:128", tag="kp")
        e("s_mov_b32 s40, s84"); e("s_and_b32 s41, s85, 0xffff"); e("s_mov_b32 s42, 1152")
        e("s_lshl_b32 s55, s91, 1"); e("v_mov_b32 v233, s55")
        e("buffer_load_ushort v232, v233, s[40:43], 0 offen", tag="kp")
        e(f"s_mul_i32 s29, s91, {KXP}"); e(f"s_add_u32 s29, s29, {WS_KX}")
    srd(e, 16, 34, WS_USED)
    e("s_mul_i32 s24, s48, 288"); e("s_lshl_b32 s55, s20, 3"); e("s_add_u32 s24, s24, s55"); e("s_mul_i32 s24, s24, 1152")
    for l in range(9):
        if l < 8:
            if rot: e(f"s_add_u32 s54, s47, {l}"); e("s_and_b32 s54, s54, 7")
            else: e(f"s_mov_b32 s54, {l}")
            e("s_add_u32 s54, s54, s51")
        else:
            e("s_xor_b32 s54, s51, 1"); e("s_lshl_b32 s54, s54, 3")
        e(f"s_lshl_b32 s{SU+l}, s54, 13")
        e(f"s_mul_i32 s55, s54, {32*1152}"); e(f"s_add_u32 s{SD+l}, s24, s55")
    e("s_mul_i32 s28, s20, 3072")
    GST = 16*16384 if pgm else 16384
    if pgm:
        e("s_mul_i32 s25, s22, 24"); e("s_lshl_b32 s25, s25, 4"); e("s_add_u32 s25, s25, s48"); e("s_lshl_b32 s25, s25, 14")
    else:
        e("s_mul_i32 s25, s48, 144"); e("s_mul_i32 s55, s22, 24"); e("s_add_u32 s25, s25, s55"); e("s_lshl_b32 s25, s25, 14")
    e("s_lshl_b32 s55, s46, 1"); e("s_add_u32 s55, s55, s21"); e("s_lshl_b32 s55, s55, 9"); e("s_add_u32 s25, s25, s55")
    e("v_lshrrev_b32 v1, 4, v0"); e("v_bfe_u32 v2, v0, 2, 2"); e("v_and_b32 v3, 3, v0")
    T0, T1, T2, T3 = 56, 57, 58, 59
    e(f"v_lshrrev_b32 v{T0}, 1, v3")
    e(f"v_lshrrev_b32 v{T1}, 1, v1")
    e(f"v_lshl_add_u32 v{T1}, v{T1}, 3, v2")
    e(f"v_lshrrev_b32 v{T2}, 1, v2")
    e(f"v_lshl_or_b32 v60, v{T0}, 1, v{T2}")
    e(f"v_and_b32 v{T3}, 1, v1")
    e(f"v_lshlrev_b32 v61, 4, v{T3}")
    e("v_and_b32 v62, 1, v3")
    e("v_lshl_add_u32 v61, v62, 3, v61")
    e(f"v_lshlrev_b32 v62, 11, v{T0}")
    e(f"v_lshl_add_u32 v62, v{T1}, 7, v62")
    e("v_add_u32 v62, v62, v61")
    for a_ in range(2):
        e("s_lshl_b32 s55, s22, 1")
        if a_: e("s_add_u32 s55, s55, 1")
        e(f"v_xor_b32 v{VTR+1}, s55, v60")
        e(f"v_lshl_add_u32 v{VTR+3*a_}, v{VTR+1}, 5, v62") if a_ == 1 else None
        if a_ == 0:
            e(f"v_lshl_add_u32 v{VTR}, v{VTR+1}, 5, v62")
    e(f"v_add_u32 v{VTR+1}, 0x10000, v{VTR}")
    e(f"v_add_u32 v{VTR+4}, 0x10000, v{VTR+3}")
    e(f"v_lshlrev_b32 v62, 10, v{T0}")
    e(f"v_lshl_add_u32 v62, v{T1}, 6, v62")
    e("v_add_u32 v62, v62, v61")
    e(f"v_xor_b32 v60, s22, v{T0}")
    e(f"v_lshl_add_u32 v{VTRH}, v60, 5, v62")
    e(f"v_add_u32 v{VTRH+1}, 0x10000, v{VTRH}")
    e("v_lshrrev_b32 v60, 1, v1"); e("v_lshl_add_u32 v60, v60, 2, v2")
    e("s_movk_i32 s55, 384"); e("v_mul_lo_u32 v60, v60, s55")
    e(f"v_lshl_add_u32 v60, v{T3}, 5, v60"); e("v_lshl_add_u32 v60, v3, 3, v60")
    for a_ in range(3):
        e("s_mul_i32 s55, s22, 3"); e(f"s_add_u32 s55, s55, {a_}")
        e(f"v_xor_b32 v61, s55, v{T2}")
        e(f"v_lshl_add_u32 v{VT2+3*a_}, v61, 6, v60")
        e(f"v_add_u32 v{VT2+3*a_+1}, 0x10000, v{VT2+3*a_}")
        e(f"v_add_u32 v{VT2+3*a_+2}, 0x20000, v{VT2+3*a_}")
    for i in range(3):
        e(f"v_add_u32 v60, {64*i}, v0")
        e("v_mul_u32_u24 v61, 2731, v60"); e("v_lshrrev_b32 v61, 16, v61")
        e("v_mul_u32_u24 v62, 24, v61"); e("v_sub_u32 v62, v60, v62")
        e("v_bfe_u32 v60, v61, 1, 1"); e("v_lshlrev_b32 v60, 2, v60")
        e("v_xor_b32 v62, v62, v60")
        e("v_mul_u32_u24 v61, 1152, v61")
        e(f"v_lshl_add_u32 v{VD+i}, v62, 4, v61")
        if i: e(f"v_subrev_u32 v{VD+i}, {1024*i}, v{VD+i}")
    e("v_lshrrev_b32 v1, 2, v0"); e("s_movk_i32 s55, 9216"); e("v_mul_lo_u32 v1, v1, s55"); e("v_and_b32 v2, 3, v0")
    e(f"v_lshl_add_u32 v{VWH}, v2, 4, v1"); e("v_xor_b32 v2, 2, v2")
    e(f"v_lshl_add_u32 v{VWH+1}, v2, 4, v1"); e(f"v_add_u32 v{VWH+1}, 1024, v{VWH+1}")
    e("v_and_b32 v1, 31, v0"); e("s_lshl_b32 s55, s21, 6"); e("v_add_u32 v1, s55, v1"); e("v_lshlrev_b32 v1, 7, v1")
    e("v_lshrrev_b32 v2, 5, v0"); e("v_bfe_u32 v3, v0, 1, 3"); e("v_xor_b32 v3, v2, v3")
    e(f"v_lshl_add_u32 v{VXR}, v3, 4, v1")
    for ks in range(1, 4): e(f"v_xor_b32 v{VXR+ks}, {ks*32}, v{VXR}")
    e("v_and_b32 v1, 31, v0"); e("v_lshlrev_b32 v1, 3, v1"); e(f"v_lshl_add_u32 v{VP}, v2, {18 if pgm else 14}, v1")
    e("v_lshlrev_b32 v1, 4, v0"); e("s_lshl_b32 s55, s21, 11"); e(f"s_add_u32 s55, s55, {HREG}"); e(f"v_add_u32 v{VHR}, s55, v1")
    e("s_add_u32 s55, s51, s22"); e("s_lshl_b32 s55, s55, 13"); e(f"v_add_u32 v{VHW}, s55, v{VHR}")
    e("s_xor_b32 s55, s51, 1"); e("s_lshl_b32 s55, s55, 4"); e("s_add_u32 s55, s55, s22"); e("s_lshl_b32 s55, s55, 12")
    e(f"v_add_u32 v{VHWH}, s55, v{VHR}")
    steps = []
    for pi, (us, sg, k0, nks) in enumerate(phases):
        for q in range(nks): steps.append((pi, q, sg, k0+q))
    def reads_for(si):
        pi, q, sg, ks = steps[si]
        us = phases[pi][0]
        out = []; st = si % 3
        if sg == 0:
            xs = slot_of[us[0]]
            if q == 0:
                for kk in range(4): out.append((f"v_add_u32 v{VXA+kk}, {xs}, v{VXR+kk}", None))
            for b in range(2):
                off = f" offset:{4096*b}" if b else ""
                out.append((f"ds_read_b128 {XF(ks,b)}, v{VXA+q}{off}", ("rd", si)))
        ws = slot_of[us[-1]]
        if sg < 4:
            for a_ in range(2):
                for t in range(2):
                    off = ws + q*4096 + t*512
                    out.append((f"ds_read_b64_tr_b16 {v(AF(st,a_)+2*t,2)}, v{VTR+3*a_+(off>>16)} offset:{off & 0xffff}", ("rd", si)))
        elif sg == 4:
            for t in range(2):
                off = ws + q*2048 + t*256
                out.append((f"ds_read_b64_tr_b16 {v(AF(st,0)+2*t,2)}, v{VTRH+(off>>16)} offset:{off & 0xffff}", ("rd", si)))
        else:
            if sg == 5:
                if q == 0: out.append((f"v_add_u32 v{VHA}, s{SU+ks//2}, v{VHR}", None))
                for b in range(2):
                    out.append((f"ds_read_b128 {HF(ks,b)}, v{VHA} offset:{q*4096 + b*1024}", ("rd", si)))
            for a_ in range(chunks[sg-5]):
                for t in range(2):
                    off = ws + q*16*384 + t*8*384
                    out.append((f"ds_read_b64_tr_b16 {a(AF2(st,a_)+2*t,2)}, v{VT2+3*a_+(off>>16)} offset:{off & 0xffff}", ("rd", si)))
        return out
    def barrier_for(pi):
        if "nodma" not in abl:
            for u in phases[pi][0]:
                assert u < next_dma and not any(isinstance(x, tuple) and x[1] == ("dma", u) for x in dma_q), f"DMA for unit {u} not issued before its barrier"
        e.wait(vm=[("dma", u) for u in phases[pi][0]])
        e.wait_all_ds()
        if "nobar" not in abl or pi == 0: e("s_barrier")
        release(pi)
    outsel = [0]
    def epi_tile(buf, a_, b, sg):
        A0 = ACC(buf, a_, b)
        o = OUT(outsel[0]); outsel[0] ^= 1
        l = []
        for hh in range(2):
            r0 = A0 + 8*hh; t = TMP + 4*hh
            for i in range(4): l.append(f"v_mul_f32 v{t+i}, v{r0+i}, v{r0+i}")
            for i in range(4): l.append(f"v_mul_f32 v{r0+4+i}, v{r0+i}, v{r0+4+i}")
            for i in range(4): l.append(f"v_fma_f32 v{t+i}, v{t+i}, s27, v{VK0}")
            for i in range(4): l.append(f"v_mul_f32 v{r0+i}, v{t+i}, v{r0+i}")
            for i in range(4): l.append(f"v_exp_f32 v{r0+i}, v{r0+i}")
            for i in range(4): l.append(f"v_add_f32 v{r0+i}, 1.0, v{r0+i}")
            for i in range(4): l.append(f"v_rcp_f32 v{r0+i}, v{r0+i}")
            for i in range(4): l.append(f"v_mul_f32 v{r0+4+i}, v{r0+4+i}, v{r0+i}")
            l.append(f"v_cvt_pk_bf16_f32 v{o+2*hh}, v{r0+4}, v{r0+5}")
            l.append(f"v_cvt_pk_bf16_f32 v{o+2*hh+1}, v{r0+6}, v{r0+7}")
        if sg < 4: l.append((f"ds_write_b128 v{VHW}, {v(o,4)} offset:{(4*sg+a_)*4096 + b*1024}", ("hw", 0)))
        else: l.append((f"ds_write_b128 v{VHWH}, {v(o,4)} offset:{b*1024}", ("hw", 0)))
        return l
    psel = [0]
    def epi2(dc):
        buf = dc & 1; l = []
        g0 = col_of_chunk[dc]//4
        for a_ in range(chunks[dc]):
            for q in range(4):
                l.append(f"s_add_u32 s26, s25, {(g0 + 8*a_ + 2*q)*GST}")
                for b in range(2):
                    r = ACC2(buf, a_, b) + 4*q
                    o = TMP + 2*(psel[0] & 3); psel[0] += 1
                    l.append(f"v_cvt_pk_bf16_f32 v{o}, v{r}, v{r+1}")
                    l.append(f"v_cvt_pk_bf16_f32 v{o+1}, v{r+2}, v{r+3}")
                    off = f" offset:{256*b}" if b else ""
                    l.append((f"buffer_store_dwordx2 {v(o,2)}, v{VP}, s[16:19], s26 offen{off} {store_flags}".rstrip(), ("st", 0)))
        return l
    emit_list(pop_dma(4*pending_init))
    GX = 96; GW = 106; GT = 112
    def gate_loads():
        l = []
        l.append("v_lshlrev_b32 v72, 2, v0")
        l.append("s_lshl_b32 s55, s46, 4"); l.append("s_add_u32 s55, s55, s48"); l.append("s_lshl_b32 s55, s55, 2"); l.append("s_add_u32 s55, s55, s20")
        l.append("s_lshl_b32 s26, s55, 1")
        l.append("s_lshl_b32 s3, s26, 3"); l.append(f"s_add_u32 s3, s3, {WS_G}")
        l.append("s_mul_i32 s29, s26, 1152")
        l.append("s_mov_b32 s8, s32"); l.append("s_and_b32 s9, s33, 0xffff"); l.append(f"s_mov_b32 s10, {2048*1152}")
        l.append("s_mov_b32 s12, s100"); l.append("s_and_b32 s13, s101, 0xffff"); l.append("s_mov_b32 s14, 1152")
        for t in range(2):
            for i in range(5):
                l.append((f"buffer_load_dword v{GX+5*t+i}, v72, s[8:11], s29 offen offset:{1152*t + 256*i}", "gl"))
        for i in range(5):
            l.append((f"buffer_load_dword v{GW+i}, v72, s[12:15], 0 offen offset:{256*i}", "gl"))
        return l
    def gate_jobs():
        l = [("WAITVM", "gl")]
        for i in range(5):
            l.append(f"v_lshlrev_b32 v{GT+2*i}, 16, v{GW+i}"); l.append(f"v_and_b32 v{GT+2*i+1}, 0xffff0000, v{GW+i}")
        for t in range(2):
            acc = 76 + t
            for i in range(5):
                x = GX+5*t+i
                l.append(f"v_lshlrev_b32 v74, 16, v{x}"); l.append(f"v_and_b32 v75, 0xffff0000, v{x}")
                l.append(f"v_mul_f32 v74, v74, v{GT+2*i}"); l.append(f"v_mul_f32 v75, v75, v{GT+2*i+1}")
                l.append(f"v_cvt_pk_bf16_f32 v73, v74, v75")
                l.append(f"v_lshlrev_b32 v74, 16, v73"); l.append(f"v_and_b32 v75, 0xffff0000, v73")
                if i == 0: l.append(f"v_add_f32 v{acc}, v74, v75")
                else:
                    l.append(f"v_add_f32 v{acc}, v{acc}, v74"); l.append(f"v_add_f32 v{acc}, v{acc}, v75")
        for sh in (1, 2, 4, 8):
            for t in range(2): l.append(f"v_add_f32_dpp v{76+t}, v{76+t}, v{76+t} row_shr:{sh} row_mask:0xf bank_mask:0xf bound_ctrl:0")
        for t in range(2): l.append(f"v_add_f32_dpp v{76+t}, v{76+t}, v{76+t} row_bcast:15 row_mask:0xa bank_mask:0xf")
        for t in range(2): l.append(f"v_add_f32_dpp v{76+t}, v{76+t}, v{76+t} row_bcast:31 row_mask:0xc bank_mask:0xf")
        for t in range(2):
            r = 76+t; o = 80+2*t
            l.append(f"v_readlane_b32 s55, v{r}, 63"); l.append(f"v_mov_b32 v{r}, s55")
            l.append(f"v_cvt_pk_bf16_f32 v{r}, v{r}, v{r}"); l.append(f"v_lshlrev_b32 v{r}, 16, v{r}")
            l.append(f"v_mul_f32 v{r}, {fimm(-LOG2E)}, v{r}"); l.append(f"v_exp_f32 v{r}, v{r}"); l.append(f"v_add_f32 v{r}, 1.0, v{r}"); l.append(f"v_rcp_f32 v{r}, v{r}")
            l.append(f"v_cvt_pk_bf16_f32 v{o}, v{r}, v{r}"); l.append(f"v_lshlrev_b32 v{o}, 16, v{o}")
            l.append(f"v_sub_f32 v{o+1}, 1.0, v{o}"); l.append(f"v_cvt_pk_bf16_f32 v{o+1}, v{o+1}, v{o+1}"); l.append(f"v_lshlrev_b32 v{o+1}, 16, v{o+1}")
        l.append("v_mov_b32 v74, s3")
        l.append((f"buffer_store_dwordx4 v[80:83], v74, s[16:19], 0 offen {side_flags}".rstrip(), ("st", 0)))
        return l
    XTA = 192
    e("v_lshrrev_b32 v156, 4, v0"); e("v_bfe_u32 v157, v0, 2, 2"); e("v_and_b32 v158, 3, v0")
    for t in range(2):
        e(f"v_lshl_add_u32 v159, v156, 3, v157")
        if t: e("v_add_u32 v159, 4, v159")
        e("v_bfe_u32 v160, v159, 1, 3")
        e("v_lshrrev_b32 v161, 1, v158"); e("v_xor_b32 v160, v160, v161")
        e("v_lshlrev_b32 v159, 7, v159"); e("v_lshl_add_u32 v159, v160, 4, v159")
        e("v_and_b32 v161, 1, v158"); e("v_lshl_add_u32 v159, v161, 3, v159")
        e(f"v_add_u32 v{XTA+4*t}, s30, v159")
        for cb in range(1, 4): e(f"v_xor_b32 v{XTA+4*t+cb}, {32*cb}, v{XTA+4*t}")
    e("s_and_b32 s26, s48, 3"); e("s_lshl_b32 s26, s26, 5")
    for t in range(2): e(f"v_xor_b32 v{XTA+9+t}, s26, v{XTA+4*t}")
    e("v_and_b32 v159, 15, v0"); e("v_lshlrev_b32 v159, 12, v159"); e(f"v_lshl_add_u32 v{XTA+8}, v156, 4, v159")
    def xt_jobs(lam):
        l = []
        sl = slot_of[2*lam]
        assert sl + 0 < 65536
        if lam == 1:
            for cb in range(4):
                for t in range(2): l.append((f"ds_read_b64_tr_b16 {v(XTA+12+4*cb+2*t,2)}, v{XTA+4*t+cb} offset:{sl}", ("xtr", lam)))
            l.append(f"s_sub_u32 s26, s{SX+1}, s{SX}"); l.append("s_lshl_b32 s26, s26, 11")
        else:
            for t in range(2): l.append((f"ds_read_b64_tr_b16 {v(XTA+28+2*t,2)}, v{XTA+9+t} offset:{sl}", ("xtr", lam)))
            l.append("s_and_b32 s26, s48, 3"); l.append("s_lshl_b32 s26, s26, 16")
        l.append("s_lshl_b32 s55, s46, 8"); l.append("s_add_u32 s26, s26, s55"); l.append("s_lshl_b32 s55, s20, 6"); l.append("s_add_u32 s26, s26, s55")
        l.append(f"s_add_u32 s26, s26, {WS_UT}")
        l.append(("WAITDS", ("xtr", lam)))
        if lam == 1:
            for cb in range(4):
                l.append((f"buffer_store_dwordx4 {v(XTA+12+4*cb,4)}, v{XTA+8}, s[16:19], s26 offen {side_flags}".rstrip(), ("st", 0)))
                if cb < 3: l.append(f"s_add_u32 s26, s26, {16*4096}")
        else:
            l.append((f"buffer_store_dwordx4 {v(XTA+28,4)}, v{XTA+8}, s[16:19], s26 offen {side_flags}".rstrip(), ("st", 0)))
        return l
    def kgen_jobs():
        l = []
        ROWP = 272
        def A(x): l.append(x)
        A(("WAITVM", "kp"))
        for i in range(9): A(f"v_lshlrev_b32 v{224+i}, 16, v{224+i}")
        for r in (232, 224, 228):
            A(f"v_mul_f32 v{r}, {fimm(LOG2E)}, v{r}"); A(f"v_exp_f32 v{r}, v{r}")
            A(f"v_cvt_pk_bf16_f32 v{r}, v{r}, v{r}"); A(f"v_lshlrev_b32 v{r}, 16, v{r}")
        for b in (224, 228):
            for i in range(4): A(f"v_mul_f32 v{b+i}, v{b+i}, v232")
            A(f"v_add_f32 v{b+2}, v{b+2}, v{b+2}"); A(f"v_add_f32 v{b+3}, v{b+3}, v{b+3}")
            A(f"v_mul_f32 v{b}, {fimm(-LOG2E)}, v{b}"); A(f"v_mul_f32 v{b+1}, {fimm(1.0/(2*math.pi))}, v{b+1}")
        A(f"s_lshl_b32 s26, s20, 14"); A(f"s_add_u32 s26, s26, {HREG}"); A("s_mov_b32 s28, s26") if False else None
        A("v_lshlrev_b32 v233, 2, v0"); A("v_add_u32 v233, s26, v233")
        A("v_and_b32 v246, 15, v0"); A("v_lshrrev_b32 v247, 4, v0")
        A(f"v_mul_u32_u24 v248, {ROWP}, v246"); A("v_lshl_add_u32 v248, v247, 4, v248"); A("v_add_u32 v248, s26, v248")
        EREG = {1: 192, 2: 194, 4: 196, 8: 198, 128: 200, 256: 202, 512: 204, 1024: 206}
        ps = list(EREG)
        KD = 234
        wsel = [0]
        def cmul(dst, a_, b_):
            A(f"v_pk_mul_f32 {v(dst,2)}, {v(a_,2)}, {v(b_,2)} op_sel:[0,0] op_sel_hi:[0,1]")
            A(f"v_pk_fma_f32 {v(dst,2)}, {v(a_,2)}, {v(b_,2)}, {v(dst,2)} op_sel:[1,1,0] op_sel_hi:[1,0,1] neg_lo:[0,1,0]")
        def put(row, src, conj=False):
            o = 252 + (wsel[0] & 3); wsel[0] += 1
            A(f"v_cvt_pk_bf16_f32 v{o}, v{src}, {'-' if conj else ''}v{src+1}")
            A((f"ds_write_b32 v233, v{o} offset:{row*ROWP}", ("uv", 0)))
        def run(chains):
            live = list(chains)
            while live:
                for c in list(live):
                    try: it = next(c)
                    except StopIteration: live.remove(c); continue
                    if it[0] == "c": cmul(it[1], it[2], it[3])
                    elif it[0] == "p": put(it[1], it[2], it[3])
                    else: A(f"v_mov_b32 v{it[1]}, 1.0"); A(f"v_mov_b32 v{it[1]+1}, 0")
        for pas in range(2):
            zb = 224 + 4*pas; C2 = zb + 2
            for grp in range(2):
                T = 208
                for ii in range(4):
                    i = 4*grp + ii; lg = int(math.log2(ps[i]))
                    if lg:
                        A(f"v_ldexp_f32 v{T+3*ii}, v{zb}, {lg}"); A(f"v_ldexp_f32 v{T+3*ii+1}, v{zb+1}, {lg}")
                    else:
                        A(f"v_mov_b32 v{T+3*ii}, v{zb}"); A(f"v_mov_b32 v{T+3*ii+1}, v{zb+1}")
                for ii in range(4): A(f"v_fract_f32 v{T+3*ii+1}, v{T+3*ii+1}")
                for ii in range(4): A(f"v_exp_f32 v{T+3*ii}, v{T+3*ii}")
                for ii in range(4): A(f"v_sin_f32 v{T+3*ii+2}, v{T+3*ii+1}")
                for ii in range(4): A(f"v_cos_f32 v{T+3*ii+1}, v{T+3*ii+1}")
                for ii in range(4):
                    p = ps[4*grp+ii]
                    A(f"v_mul_f32 v{EREG[p]}, v{T+3*ii}, v{T+3*ii+1}"); A(f"v_mul_f32 v{EREG[p]+1}, v{T+3*ii}, v{T+3*ii+2}")
            def chain_seg0():
                cur = C2; regs = [208, 210]
                for i in range(8):
                    if i > 0:
                        nxt = regs[i & 1]; yield ("c", nxt, cur, EREG[1]); cur = nxt
                    yield ("p", i, cur, False)
                    yield ("c", 212 + 2*(i & 1), cur, EREG[128]); yield ("p", 8+i, 212 + 2*(i & 1), False)
            def chain_v():
                yield ("m", 216); yield ("p", 41, 216, True); yield ("p", 42, EREG[8], True)
                cur = EREG[8]
                for j in range(2, 16):
                    nxt = 216 if cur != 216 else 218; yield ("c", nxt, cur, EREG[8]); cur = nxt
                    yield ("p", 41+j, cur, True)
            def chain_seg12():
                yield ("c", 208, C2, EREG[256]); cur = 208; regs = [210, 212]
                for i in range(4):
                    if i > 0:
                        nxt = regs[i & 1]; yield ("c", nxt, cur, EREG[2]); cur = nxt
                    yield ("p", 16+i, cur, False)
                    yield ("c", 214 + 2*(i & 1), cur, EREG[128]); yield ("p", 20+i, 214 + 2*(i & 1), False)
                yield ("c", 208, C2, EREG[512]); yield ("c", 210, 208, EREG[4])
                c0_, c1_ = 208, 210
                for i in range(4):
                    yield ("p", 24+2*i, c0_, False); yield ("p", 25+2*i, c1_, False)
                    if i < 3:
                        n0 = 212 if c0_ != 212 else 208; n1 = 214 if c1_ != 214 else 210
                        yield ("c", n0, c0_, EREG[128]); yield ("c", n1, c1_, EREG[128]); c0_, c1_ = n0, n1
            def chain_seg3():
                yield ("c", 218, C2, EREG[1024]); cur = 218
                for i in range(9):
                    yield ("p", 32+i, cur, False)
                    if i < 8:
                        nxt = 220 if cur == 218 else 218; yield ("c", nxt, cur, EREG[128]); cur = nxt
            run([chain_seg0(), chain_v()]); run([chain_seg12(), chain_seg3()])
            A(("WAITDS", ("uv", 0)))
            for s_ in range(4): A((f"ds_read_b128 {v(192+4*s_,4)}, v248 offset:{41*ROWP + 64*s_}", ("kb", pas)))
            for tile in range(3):
                for s_ in range(4): A((f"ds_read_b128 {v(208+4*s_,4)}, v248 offset:{tile*16*ROWP + 64*s_}", ("ka", pas, tile)))
                A(("WAITDS", ("ka", pas, tile)))
                for s_ in range(4):
                    c = "0" if (s_ == 0 and pas == 0) else v(KD+4*tile,4)
                    A(f"v_mfma_f32_16x16x32_bf16 {v(KD+4*tile,4)}, {v(208+4*s_,4)}, {v(192+4*s_,4)}, {c}")
        TB = 8192; T1 = TB + 512; T2 = T1 + 256; T3 = T2 + 256
        j_, g_ = 246, 247
        A(f"v_lshrrev_b32 v192, 1, v{g_}"); A("v_lshlrev_b32 v192, 8, v192"); A(f"v_lshl_add_u32 v192, v{j_}, 4, v192")
        A(f"v_and_b32 v193, 1, v{g_}"); A("v_lshl_add_u32 v192, v193, 3, v192"); A("v_add_u32 v192, s26, v192")
        A(f"v_cvt_pk_bf16_f32 v194, v{KD}, v{KD+1}"); A(f"v_cvt_pk_bf16_f32 v195, v{KD+2}, v{KD+3}")
        A((f"ds_write_b64 v192, v[194:195] offset:{TB}", ("tb", 0)))
        A(f"v_lshlrev_b32 v196, 7, v{g_}"); A(f"v_lshl_add_u32 v197, v{j_}, 3, v196"); A(f"v_lshl_add_u32 v196, v{j_}, 2, v196")
        A(f"v_cmp_gt_u32 vcc, 2, v{g_}"); A("v_cndmask_b32 v196, v196, v197, vcc")
        A("v_mov_b32 v198, 64"); A("v_mov_b32 v199, 4"); A("v_cndmask_b32 v197, v198, v199, vcc")
        A("v_add_u32 v196, s26, v196"); A("v_add_u32 v197, v196, v197")
        A(f"v_cvt_pk_bf16_f32 v198, v{KD+4}, v{KD+5}"); A(f"v_cvt_pk_bf16_f32 v199, v{KD+6}, v{KD+7}")
        A((f"ds_write_b32 v196, v198 offset:{T1}", ("tb", 0))); A((f"ds_write_b32 v197, v199 offset:{T1}", ("tb", 0)))
        A(f"v_lshlrev_b32 v200, 7, v{g_}"); A(f"v_lshl_add_u32 v200, v{j_}, 1, v200"); A("v_add_u32 v200, s26, v200")
        A(f"v_min_u32 v201, 2, v{g_}"); A("v_lshlrev_b32 v201, 7, v201"); A(f"v_lshl_add_u32 v201, v{j_}, 1, v201"); A("v_add_u32 v201, s26, v201")
        A(f"v_cmp_eq_u32 vcc, 3, v{g_}"); A("v_add_u32 v202, 0x60, v201"); A("v_cndmask_b32 v202, v200, v202, vcc")
        A(f"v_cvt_pk_bf16_f32 v204, v{KD+8}, v{KD+9}"); A(f"v_cvt_pk_bf16_f32 v205, v{KD+10}, v{KD+11}")
        A((f"ds_write_b16 v202, v204 offset:{T3}", ("tb", 0))); A((f"ds_write_b16_d16_hi v201, v204 offset:{T3+32}", ("tb", 0)))
        A((f"ds_write_b16 v201, v205 offset:{T3+64}", ("tb", 0))); A((f"ds_write_b16_d16_hi v201, v205 offset:{T3+96}", ("tb", 0)))
        A("s_mov_b32 s42, 0x01000100"); A("s_mov_b32 s43, 0x05040100")
        A("v_lshlrev_b32 v206, 2, v0"); A("v_add_u32 v206, s26, v206")
        A("v_lshlrev_b32 v207, 3, v0"); A("v_add_u32 v207, s26, v207")
        A(("WAITDS", ("tb", 0)))
        for sg_, base in ((1, T1), (2, T2), (3, T3)):
            r0 = 208 + 4*(sg_-1)
            for q in range(3): A((f"ds_read_u16 v{r0+q}, v206 offset:{base+2*q}", ("x", 0)))
        A((f"ds_read_b64 v[220:221], v207 offset:{TB}", ("x", 0)))
        A("v_lshlrev_b32 v222, 4, v0"); A("v_add_u32 v222, s26, v222"); A("v_lshlrev_b32 v223, 5, v0"); A("v_add_u32 v223, s26, v223")
        A("v_mov_b32 v234, 0"); A("v_mov_b32 v235, 0"); A("v_min_u32 v236, 7, v0"); A("v_lshlrev_b32 v236, 3, v236"); A("v_add_u32 v236, s26, v236")
        A(("ds_write_b64 v236, v[234:235]", ("c0", 0)))
        A(("WAITDS", ("x", 0)))
        A((f"ds_write_b64 v207, v[220:221] offset:64", ("c0", 0)))
        A("v_perm_b32 v238, v208, v208, s42"); A("v_perm_b32 v239, v210, v209, s43")
        A((f"ds_write_b64 v207, v[238:239] offset:{64+512}", ("c0", 0)))
        A("v_perm_b32 v240, v212, v212, s42"); A("v_perm_b32 v241, v213, v212, s43"); A("v_perm_b32 v242, v213, v213, s42"); A("v_perm_b32 v243, v214, v214, s42")
        A((f"ds_write_b128 v222, v[240:243] offset:{64+1024}", ("c0", 0)))
        A("v_perm_b32 v192, v216, v216, s42"); A("v_mov_b32 v193, v192"); A("v_perm_b32 v194, v217, v216, s43"); A("v_perm_b32 v195, v217, v217, s42")
        A("v_mov_b32 v196, v195"); A("v_mov_b32 v197, v195"); A("v_perm_b32 v198, v218, v218, s42"); A("v_mov_b32 v199, v198")
        A((f"ds_write_b128 v223, v[192:195] offset:{64+2048}", ("c0", 0))); A((f"ds_write_b128 v223, v[196:199] offset:{64+2048+16}", ("c0", 0)))
        A(("WAITDS", ("c0", 0)))
        for i in range(5): A((f"ds_read_b128 {v(200+4*i,4)}, v222 offset:{1024*i}", ("ko", 0)))
        A("v_lshlrev_b32 v236, 4, v0")
        A(("WAITDS", ("ko", 0)))
        for i in range(5):
            if i == 4: A("s_add_u32 s29, s29, 4096")
            off = f" offset:{1024*i}" if 0 < i < 4 else ""
            A((f"buffer_store_dwordx4 {v(200+4*i,4)}, v236, s[16:19], s29 offen{off} {side_flags}".rstrip(), ("st", 0)))
        return [x for x in l if x is not None]
    epi_q = []
    if profile and fine < 0: stamp()
    barrier_for(0)
    if profile and fine < 0: stamp()
    for si in (0, 1):
        for t_, tag in reads_for(si): e(t_, tag=tag)
    nsteps = len(steps)
    gapctr = 0
    budget_n = budget
    now_q = []
    dma_credit = [0.0]
    def cost(it):
        t = it[0] if isinstance(it, tuple) else it
        op = t.split()[0]
        if op.startswith(("v_exp", "v_rcp")): return 2
        if op.startswith("buffer_"): return 2
        if op.startswith("ds_write"): return 2
        return 1
    for si in range(nsteps):
        pi, q, sg, ks = steps[si]
        if profile and fine >= 0 and sg == fine and q == 0 and len(stamps) < 11: stamp()
        if sg == 0 and ks == 0: now_q += xt_jobs(0)
        if sg == 0 and ks == 3: now_q += xt_jobs(1)
        if sg == 0 and ks == 5 and kgen: epi_q += kgen_jobs()
        if sg == 5 and ks == 11: epi_q += gate_jobs()
        if ks == 0 and sg >= 1:
            if profile and fine < 0 and sg in (1, 4, 5, 6): stamp()
            assert not epi_q, f"epilogue not drained at stage {sg}"
            if "noepi" not in abl:
                if sg <= 4:
                    for a_ in range(2):
                        for b in range(2): epi_q += epi_tile((sg-1) & 1, a_, b, sg-1)
                elif sg == 5:
                    epi_q += gate_loads()
                    for b in range(2): epi_q += epi_tile(0, 0, b, 4)
                else:
                    epi_q += epi2(sg-6)
        e.wait(ds=[("rd", si)])
        mf = []
        if sg < 4:
            buf = sg & 1
            for a_ in range(2):
                for b in range(2):
                    c = "0" if ks == 0 else v(ACC(buf,a_,b),16)
                    mf.append(f"v_mfma_f32_32x32x16_bf16 {v(ACC(buf,a_,b),16)}, {v(AF(si%3,a_),4)}, {XF(ks,b)}, {c}")
        elif sg == 4:
            for b in range(2):
                c = "0" if ks == 0 else v(ACC(0,0,b),16)
                mf.append(f"v_mfma_f32_32x32x16_bf16 {v(ACC(0,0,b),16)}, {v(AF(si%3,0),4)}, {XF(ks,b)}, {c}")
        else:
            buf = (sg-5) & 1
            for a_ in range(chunks[sg-5]):
                for b in range(2):
                    c = "0" if ks == 0 else v(ACC2(buf,a_,b),16)
                    mf.append(f"v_mfma_f32_32x32x16_bf16 {v(ACC2(buf,a_,b),16)}, {a(AF2(si%3,a_),4)}, {HF(ks,b)}, {c}")
        ng = len(mf)
        do_bar = si + 2 < nsteps and steps[si+2][1] == 0
        rds = reads_for(si+2) if (si + 2 < nsteps and "nords" not in abl) else []
        nk_stage = 36 if sg <= 4 else 18
        if sg == 5: rem = max(1, 11 - ks) if ks < 11 else max(1, 17 - ks)
        else: rem = max(1, nk_stage - ks - 3)
        want = -(-sum(cost(x) for x in epi_q) // rem) if epi_q else 0
        ev = ev0 if sg == 0 else (ev1 if sg < 4 else (evh if sg == 4 else ev2))
        budget = budget0 if sg == 0 else budget_n
        for gi in range(ng):
            e(mf[gi])
            used = 0
            if gi == ng-1: used += 1
            if gi == 0 and do_bar:
                barrier_for(steps[si+2][0]); used += budget
                gapctr += 1
                if ng > 2: continue
            if now_q and gi >= 1:
                emit_list(now_q); now_q.clear(); used += budget
            left_g = ng - gi
            nrd = min(len(rds), max(rd_per_gap, -(-len(rds) // left_g)))
            if gi == ng-1: nrd = len(rds)
            for it in rds[:nrd]: used += cost(it)
            emit_list(rds[:nrd]); rds = rds[nrd:]
            gapctr += 1
            npend = sum(1 for x in dma_q if is_dma(x))
            evv = ev if npend <= 8 else max(1, ev // 2)
            dma_credit[0] += 1.0 / evv
            if dma_q and dma_credit[0] >= 1.0 and (used + 3 <= budget or dma_credit[0] >= 2.0):
                lst = pop_dma(1); dma_credit[0] -= 1.0
                for it in lst: used += cost(it)
                emit_list(lst)
            if not dma_q: dma_credit[0] = min(dma_credit[0], 1.0)
            while epi_q and want > 0:
                c = cost(epi_q[0])
                must = (gi == ng-1)
                if used + c > budget and not must: break
                used += c; want -= c
                emit_list([epi_q.pop(0)])
        assert not rds
    if profile and fine < 0: stamp()
    assert not dma_q or "nodma" in abl
    emit_list(epi_q)
    if "noepi" not in abl: emit_list(epi2(len(chunks)-1))
    if profile:
        if fine < 0: stamp()
        e("s_waitcnt vmcnt(0)")
        while len(stamps) < 12: stamp()
        e("s_memrealtime s[42:43]"); e("s_waitcnt lgkmcnt(0)")
        if dbg:
            Ls = k.label("nodbg")
            e(f"s_cmp_lg_u32 s2, {dbg-1}"); e(f"s_cbranch_scc1 {Ls}"); e("s_cmp_lg_u32 s20, 0"); e(f"s_cbranch_scc1 {Ls}")
            e("s_load_dwordx2 s[34:35], s[0:1], 104"); e("s_waitcnt lgkmcnt(0)")
            srd(e, 16, 34, 256)
            e("s_mov_b32 s53, 0")
        else:
            e("s_add_u32 s34, s34, 0xC800000"); e("s_addc_u32 s35, s35, 0")
            srd(e, 16, 34, 1<<20)
            e("s_lshl_b32 s53, s2, 2"); e("s_add_u32 s53, s53, s20"); e("s_lshl_b32 s53, s53, 6")
        for i, r in enumerate(stamps[1:]):
            e(f"s_sub_u32 s54, s{r}, s{stamps[0]}")
            e("v_mov_b32 v1, s54"); e(f"v_mov_b32 v2, {4*i}")
            e("buffer_store_dword v1, v2, s[16:19], s53 offen")
        e("s_sub_u32 s54, s42, s99"); e("v_mov_b32 v1, s54"); e("v_mov_b32 v2, 60")
        e("buffer_store_dword v1, v2, s[16:19], s53 offen")
        e("v_mov_b32 v1, s99"); e("v_mov_b32 v2, 56")
        e("buffer_store_dword v1, v2, s[16:19], s53 offen")
        if dbg: e.raw(f"{Ls}:")
    e.raw(f"{Lend}:")
    e.raw("s_endpgm")
    print(f"F1: {e.count} instrs, nops inserted {e.nops_inserted}, stamps {len(stamps)}", file=sys.stderr)
    return k

if __name__ == "__main__":
    abl = [x for x in sys.argv[2:] if x.startswith("no")]
    kw = {}
    for x in sys.argv[2:]:
        if "=" in x:
            a_, b_ = x.split("="); kw[a_] = int(b_) if b_.lstrip("-").isdigit() else b_
    k = gen_f1(profile=("prof" in sys.argv[2:]), abl=abl, **kw)
    open(sys.argv[1], "w").write(build([k]))
```

```python
import sys, math
sys.path.insert(0, "gen")
from asmlib import *
from emit import E
LOG2E = 1.4426950408889634
WS_P = 0; WS_UT = 0x2800000; WS_G = 0x2B00000; WS_USED = 0x3000000
CP = 4160
ROWP = 528
CHP = 31616
TB = 30096
YOFF = 16640
UTP = 5120
UT0 = 4*CHP
BASE0 = UT0 + 4*UTP
LDS_BYTES = BASE0 + 4*4096

def gen_k2(name="k2_kernel", profile=False, prefetch_code=True, nsplit=16, out_flags="", dbg=0, pdepth=24, pgm=1):
    k = K(name, (144,1,1), (512,1,1), LDS_BYTES, 256, sgpr=102)
    e = E(k)
    def stamp_to(r):
        if profile:
            e("s_memtime s[78:79]"); e("s_waitcnt lgkmcnt(0)"); e(f"s_mov_b32 s{r}, s78")
    Lend = k.label("end"); Lp = k.label("pw"); Lfin = k.label("fin"); Lnop = k.label("nop")
    e("s_cmp_ge_u32 s2, 144"); e(f"s_cbranch_scc1 {Lend}")
    if profile:
        e("s_memrealtime s[76:77]"); e("s_waitcnt lgkmcnt(0)"); e("s_mov_b32 s90, s76")
        for r in range(80, 90): e(f"s_mov_b32 s{r}, 0")
    stamp_to(80)
    e("s_load_dwordx8 s[8:15], s[0:1], 8")
    e("s_load_dwordx4 s[16:19], s[0:1], 40")
    e("s_load_dwordx2 s[20:21], s[0:1], 96")
    e("s_load_dwordx2 s[22:23], s[0:1], 112")
    if prefetch_code:
        Lpf = k.label("pf")
        e("s_getpc_b64 s[40:41]")
        e.raw(f"{Lpf}:")
        e("v_min_u32 v1, 7, v0"); e("s_lshr_b32 s43, s2, 3"); e("s_lshl_b32 s43, s43, 3"); e("v_add_u32 v1, s43, v1")
        e("v_lshlrev_b32 v1, 7, v1"); e(f"v_min_u32 v1, ({Lend} - {Lpf}), v1")
        e("global_load_dword v255, v1, s[40:41]", tag="pf")
    e("v_lshrrev_b32 v2, 6, v0"); e("v_and_b32 v1, 255, v0"); e("v_and_b32 v0, 63, v0")
    e("v_readfirstlane_b32 s24, v2")
    e("s_and_b32 s25, s2, 7"); e("s_mul_i32 s25, s25, 18"); e("s_lshr_b32 s26, s2, 3"); e("s_add_u32 s25, s25, s26")
    e("s_and_b32 s27, s24, 3")
    e("s_lshr_b32 s28, s24, 2")
    e("s_lshl_b32 s29, s25, 2"); e("s_add_u32 s29, s29, s27")
    e(f"s_mul_i32 s30, s27, {CHP}")
    e(f"s_mul_i32 s31, s27, {UTP}"); e(f"s_add_u32 s31, s31, {UT0}")
    e("s_lshl_b32 s32, s28, 6"); e("v_add_u32 v3, s32, v0")
    e("v_lshlrev_b32 v4, 1, v3"); e("s_lshl_b32 s33, s29, 8"); e("s_lshl_b32 s34, s29, 1"); e("v_mov_b32 v5, s34")
    e("v_lshrrev_b32 v6, 2, v0"); e("v_and_b32 v7, 3, v0")
    e("v_bfe_u32 v13, v6, 2, 1"); e("v_lshlrev_b32 v13, 1, v13"); e("v_xor_b32 v7, v7, v13")
    e("v_lshlrev_b32 v6, 6, v6"); e("v_lshl_add_u32 v6, v7, 4, v6")
    e("s_lshl_b32 s35, s29, 12"); e("s_lshl_b32 s36, s28, 11"); e("s_add_u32 s35, s35, s36"); e(f"s_add_u32 s35, s35, {WS_UT}")
    e("s_add_u32 s36, s36, s31"); e("s_add_u32 m0, s36, 1024")
    e("v_mov_b32 v14, 0"); e("v_mov_b32 v15, 0"); e("v_mov_b32 v16, 0"); e("v_mov_b32 v17, 0")
    e("v_lshlrev_b32 v13, 4, v0"); e("v_add_u32 v13, s31, v13")
    e("ds_write_b128 v13, v[14:17]", tag="z")
    e("v_lshlrev_b32 v18, 4, v1")
    e(f"s_lshl_b32 s37, s25, {18 if pgm else 14}")
    e("s_waitcnt lgkmcnt(0)")
    def mksrd(dst, base, n):
        e(f"s_mov_b32 s{dst}, s{base}"); e(f"s_and_b32 s{dst+1}, s{base+1}, 0xffff"); e(f"s_mov_b32 s{dst+2}, {n}"); e(f"s_mov_b32 s{dst+3}, 0x00020000")
    for i in range(4): mksrd(60+4*i, 8+2*i, 576*256)
    mksrd(44, 16, 1152)
    for i in range(4): e(f"buffer_load_ushort v{8+i}, v4, s[{60+4*i}:{63+4*i}], s33 offen", tag="par")
    e("buffer_load_ushort v12, v5, s[44:47], 0 offen", tag="par")
    mksrd(48, 22, WS_USED)
    e("buffer_load_dwordx4 v6, s[48:51], s35 offen lds", tag="ut")
    e("buffer_load_dwordx4 v6, s[48:51], s35 offen offset:1024 lds", tag="ut")
    mksrd(52, 20, 2048*1152); mksrd(56, 18, 1152)
    NP = 4*nsplit
    PA = 128; PR = 160; GR = 24; DR = 40; TL = 44
    def pload(i):
        p, fs = i // nsplit, i % nsplit
        e(f"s_add_u32 s38, s37, {(fs*16384 if pgm else fs*144*16384) + p*4096}")
        e(f"buffer_load_dwordx4 {v(PR+4*(i%pdepth),4)}, v18, s[48:51], s38 offen", tag=("p", i))
    stamp_to(81)
    e.wait(vm=["par"])
    e("s_cmp_eq_u32 s28, 0"); e(f"s_cbranch_scc1 {Lnop}")
    vm_before = list(e.vm)
    for i in range(pdepth): pload(i)
    vm_p = list(e.vm)
    e.raw(f"{Lnop}:")
    e.vm = list(vm_before)
    for i in range(5): e(f"v_lshlrev_b32 v{8+i}, 16, v{8+i}")
    for r in (12, 8):
        e(f"v_mul_f32 v{r}, {fimm(LOG2E)}, v{r}"); e(f"v_exp_f32 v{r}, v{r}")
        e(f"v_cvt_pk_bf16_f32 v{r}, v{r}, v{r}"); e(f"v_lshlrev_b32 v{r}, 16, v{r}")
    for i in range(4): e(f"v_mul_f32 v{8+i}, v{8+i}, v12")
    e("v_add_f32 v20, v10, v10"); e("v_add_f32 v21, v11, v11")
    e(f"v_mul_f32 v8, {fimm(-LOG2E)}, v8"); e(f"v_mul_f32 v9, {fimm(1.0/(2*math.pi))}, v9")
    ps = [1, 2, 4, 8, 128, 256, 512, 1024]
    Eg = lambda p: 22 + 2*ps.index(p)
    T = 64
    for i, p in enumerate(ps):
        lg = int(math.log2(p)); t = T + 3*i
        if lg: e(f"v_ldexp_f32 v{t}, v8, {lg}"); e(f"v_ldexp_f32 v{t+1}, v9, {lg}")
        else: e(f"v_mov_b32 v{t}, v8"); e(f"v_mov_b32 v{t+1}, v9")
    for f_, o_, s_ in (("v_fract_f32", 1, 1), ("v_exp_f32", 0, 0), ("v_sin_f32", 2, 1), ("v_cos_f32", 1, 1)):
        for i in range(8): e(f"{f_} v{T+3*i+o_}, v{T+3*i+s_}")
    for i, p in enumerate(ps):
        t = T + 3*i
        e(f"v_mul_f32 v{Eg(p)}, v{t}, v{t+1}"); e(f"v_mul_f32 v{Eg(p)+1}, v{t}, v{t+2}")
    e("v_lshlrev_b32 v6, 2, v3"); e("v_add_u32 v6, s30, v6")
    wsel = [0]
    def cmul_parts(dst, a_, b_):
        return [f"v_pk_mul_f32 {v(dst,2)}, {v(a_,2)}, {v(b_,2)} op_sel:[0,0] op_sel_hi:[0,1]",
                f"v_pk_fma_f32 {v(dst,2)}, {v(a_,2)}, {v(b_,2)}, {v(dst,2)} op_sel:[1,1,0] op_sel_hi:[1,0,1] neg_lo:[0,1,0]"]
    def put_parts(row, src, conj=False):
        o = 100 + (wsel[0] & 7); wsel[0] += 1
        return [f"v_cvt_pk_bf16_f32 v{o}, v{src}, {'-' if conj else ''}v{src+1}", (f"ds_write_b32 v6, v{o} offset:{row*ROWP}", "uv")]
    def expand(ch):
        for it in ch:
            if it[0] == "c":
                for x in cmul_parts(it[1], it[2], it[3]): yield x
            elif it[0] == "p":
                for x in put_parts(it[1], it[2], it[3]): yield x
            else:
                yield f"v_mov_b32 v{it[1]}, 1.0"; yield f"v_mov_b32 v{it[1]+1}, 0"
    C2 = 20
    def chain_seg0a():
        cur = C2
        for i in range(8):
            if i > 0:
                nxt = 64 if cur != 64 else 66; yield ("c", nxt, cur, Eg(1)); cur = nxt
            yield ("p", i, cur, False)
    def chain_seg0b():
        yield ("c", 68, C2, Eg(128)); cur = 68
        for i in range(8):
            if i > 0:
                nxt = 70 if cur == 68 else 68; yield ("c", nxt, cur, Eg(1)); cur = nxt
            yield ("p", 8+i, cur, False)
    def chain_seg1():
        yield ("c", 72, C2, Eg(256)); cur = 72
        for i in range(4):
            if i > 0:
                nxt = 74 if cur == 72 else 72; yield ("c", nxt, cur, Eg(2)); cur = nxt
            yield ("p", 16+i, cur, False)
            yield ("c", 76 + 2*(i & 1), cur, Eg(128)); yield ("p", 20+i, 76 + 2*(i & 1), False)
    def chain_seg2():
        yield ("c", 80, C2, Eg(512)); yield ("c", 82, 80, Eg(4))
        c0_, c1_ = 80, 82
        for i in range(4):
            yield ("p", 24+2*i, c0_, False); yield ("p", 25+2*i, c1_, False)
            if i < 3:
                n0 = 84 if c0_ != 84 else 80; n1 = 86 if c1_ != 86 else 82
                yield ("c", n0, c0_, Eg(128)); yield ("c", n1, c1_, Eg(128)); c0_, c1_ = n0, n1
    def chain_seg3():
        yield ("c", 88, C2, Eg(1024)); cur = 88
        for i in range(9):
            yield ("p", 32+i, cur, False)
            if i < 8:
                nxt = 90 if cur == 88 else 88; yield ("c", nxt, cur, Eg(128)); cur = nxt
    def chain_v():
        yield ("m", 92); yield ("p", 41, 92, True); yield ("p", 42, Eg(8), True)
        cur = Eg(8)
        for j in range(2, 16):
            nxt = 92 if cur != 92 else 94; yield ("c", nxt, cur, Eg(8)); cur = nxt
            yield ("p", 41+j, cur, True)
    live = [expand(c) for c in (chain_v(), chain_seg0a(), chain_seg0b(), chain_seg3(), chain_seg1(), chain_seg2())]
    while live:
        for c in list(live):
            try: it = next(c)
            except StopIteration: live.remove(c); continue
            if isinstance(it, tuple): e(it[0], tag=it[1])
            else: e(it)
    e("v_and_b32 v7, 15, v0"); e("v_lshrrev_b32 v13, 4, v0")
    La = k.label("w0"); Lb = k.label("w1")
    e("s_cmp_eq_u32 s28, 0"); e(f"s_cbranch_scc1 {La}")
    e.raw(f"s_waitcnt vmcnt({pdepth})"); e.raw(f"s_branch {Lb}")
    e.raw(f"{La}:"); e.raw("s_waitcnt vmcnt(0)"); e.raw(f"{Lb}:")
    e.vm = []
    e.wait_all_ds(); e("s_barrier")
    stamp_to(82)
    e("s_cmp_eq_u32 s28, 1"); e(f"s_cbranch_scc1 {Lp}")
    e(f"v_mul_u32_u24 v22, {ROWP}, v7"); e("v_lshl_add_u32 v22, v13, 4, v22"); e("v_add_u32 v22, s30, v22")
    KB = 64; KA = 128; KD = 24
    for s_ in range(8): e(f"ds_read_b128 {v(KB+4*s_,4)}, v22 offset:{41*ROWP + 64*s_}", tag="kb")
    for tile in range(3):
        for s_ in range(8): e(f"ds_read_b128 {v(KA+32*tile+4*s_,4)}, v22 offset:{tile*16*ROWP + 64*s_}", tag=("ka", tile))
    T1 = TB + 512; T2 = T1 + 256; T3 = T2 + 256
    j_, g_ = 7, 13
    e(f"v_lshrrev_b32 v40, 1, v{g_}"); e("v_lshlrev_b32 v40, 8, v40"); e(f"v_lshl_add_u32 v40, v{j_}, 4, v40")
    e(f"v_and_b32 v41, 1, v{g_}"); e("v_lshl_add_u32 v40, v41, 3, v40"); e("v_add_u32 v40, s30, v40")
    e(f"v_lshlrev_b32 v44, 7, v{g_}"); e(f"v_lshl_add_u32 v45, v{j_}, 3, v44"); e(f"v_lshl_add_u32 v44, v{j_}, 2, v44")
    e(f"v_cmp_gt_u32 vcc, 2, v{g_}"); e("v_cndmask_b32 v44, v44, v45, vcc")
    e("v_mov_b32 v46, 64"); e("v_mov_b32 v47, 4"); e("v_cndmask_b32 v45, v46, v47, vcc")
    e("v_add_u32 v44, s30, v44"); e("v_add_u32 v45, v44, v45")
    e(f"v_lshlrev_b32 v48, 7, v{g_}"); e(f"v_lshl_add_u32 v48, v{j_}, 1, v48"); e("v_add_u32 v48, s30, v48")
    e(f"v_min_u32 v49, 2, v{g_}"); e("v_lshlrev_b32 v49, 7, v49"); e(f"v_lshl_add_u32 v49, v{j_}, 1, v49"); e("v_add_u32 v49, s30, v49")
    e(f"v_cmp_eq_u32 vcc, 3, v{g_}"); e("v_add_u32 v50, 0x60, v49"); e("v_cndmask_b32 v50, v48, v50, vcc")
    e("s_mov_b32 s41, 0x01000100"); e("s_mov_b32 s42, 0x05040100")
    e("v_lshlrev_b32 v52, 2, v0"); e("v_add_u32 v52, s30, v52")
    e("v_lshlrev_b32 v53, 3, v0"); e("v_add_u32 v53, s30, v53")
    e("v_lshlrev_b32 v54, 4, v0"); e("v_add_u32 v54, s30, v54"); e("v_lshlrev_b32 v55, 5, v0"); e("v_add_u32 v55, s30, v55")
    e.wait(ds=[("ka", 2)])
    for s_ in range(8):
        for tile in range(3):
            c = "0" if s_ == 0 else v(KD+4*tile,4)
            e(f"v_mfma_f32_16x16x32_bf16 {v(KD+4*tile,4)}, {v(KA+32*tile+4*s_,4)}, {v(KB+4*s_,4)}, {c}")
    e("v_mov_b32 v56, 0"); e("v_mov_b32 v57, 0"); e("v_min_u32 v58, 7, v0"); e("v_lshlrev_b32 v58, 3, v58"); e("v_add_u32 v58, s30, v58")
    e("ds_write_b64 v58, v[56:57]", tag="c0")
    e(f"v_cvt_pk_bf16_f32 v42, v{KD}, v{KD+1}"); e(f"v_cvt_pk_bf16_f32 v43, v{KD+2}, v{KD+3}")
    e(f"ds_write_b64 v40, v[42:43] offset:64", tag="c0")
    e(f"v_cvt_pk_bf16_f32 v46, v{KD+4}, v{KD+5}"); e(f"v_cvt_pk_bf16_f32 v47, v{KD+6}, v{KD+7}")
    e(f"ds_write_b32 v44, v46 offset:{T1}", tag="tb"); e(f"ds_write_b32 v45, v47 offset:{T1}", tag="tb")
    e(f"v_cvt_pk_bf16_f32 v60, v{KD+8}, v{KD+9}"); e(f"v_cvt_pk_bf16_f32 v61, v{KD+10}, v{KD+11}")
    e(f"ds_write_b16 v50, v60 offset:{T3}", tag="tb"); e(f"ds_write_b16_d16_hi v49, v60 offset:{T3+32}", tag="tb")
    e(f"ds_write_b16 v49, v61 offset:{T3+64}", tag="tb"); e(f"ds_write_b16_d16_hi v49, v61 offset:{T3+96}", tag="tb")
    e.wait(ds=["tb"])
    for sg_, base in ((1, T1), (2, T2), (3, T3)):
        r0 = 64 + 4*(sg_-1)
        for q in range(3): e(f"ds_read_u16 v{r0+q}, v52 offset:{base+2*q}", tag="x")
    for ps_ in range(5):
        a_ = 20 + ps_
        e(f"v_add_u32 v{a_}, {64*ps_}, v0")
        if ps_ == 4: e(f"v_min_u32 v{a_}, 259, v{a_}")
        e(f"v_lshlrev_b32 v{a_}, 4, v{a_}"); e(f"v_add_u32 v{a_}, s30, v{a_}")
        e(f"v_subrev_u32 v{26+ps_}, 8, v{a_}"); e(f"v_max_i32 v{26+ps_}, 0, v{26+ps_}")
    e.wait(ds=["x"])
    e("v_perm_b32 v78, v64, v64, s41"); e("v_perm_b32 v79, v66, v65, s42")
    e(f"ds_write_b64 v53, v[78:79] offset:{64+512}", tag="c0")
    e("v_perm_b32 v80, v68, v68, s41"); e("v_perm_b32 v81, v69, v68, s42"); e("v_perm_b32 v82, v69, v69, s41"); e("v_perm_b32 v83, v70, v70, s41")
    e(f"ds_write_b128 v54, v[80:83] offset:{64+1024}", tag="c0")
    e("v_perm_b32 v84, v72, v72, s41"); e("v_mov_b32 v85, v84"); e("v_perm_b32 v86, v73, v72, s42"); e("v_perm_b32 v87, v73, v73, s41")
    e("v_mov_b32 v88, v87"); e("v_mov_b32 v89, v87"); e("v_perm_b32 v90, v74, v74, s41"); e("v_mov_b32 v91, v90")
    e(f"ds_write_b128 v55, v[84:87] offset:{64+2048}", tag="c0"); e(f"ds_write_b128 v55, v[88:91] offset:{64+2048+16}", tag="c0")
    e("v_bfe_u32 v32, v0, 2, 2"); e(f"v_mul_u32_u24 v32, {CP}, v32")
    e("v_and_b32 v33, 3, v0"); e("v_lshl_add_u32 v32, v33, 3, v32")
    e("v_lshlrev_b32 v33, 4, v13"); e("v_sub_u32 v32, v32, v33")
    e(f"s_add_u32 s34, s30, {64 - 8}"); e("v_add_u32 v32, s34, v32")
    VA = 32
    e.wait(ds=["c0"])
    for ps_ in range(5):
        e(f"ds_read_b128 {v(64+8*ps_+4,4)}, v{20+ps_}", tag=("cr", ps_))
        e(f"ds_read_b64 {v(64+8*ps_+2,2)}, v{26+ps_}", tag=("cr", ps_))
    VB = 40
    for d0 in range(8):
        e(f"v_add_u32 v34, {16 - d0}, v7"); e("v_bfe_u32 v35, v34, 2, 1"); e("v_lshlrev_b32 v35, 1, v35"); e("v_xor_b32 v35, v35, v13")
        e("v_lshlrev_b32 v34, 6, v34"); e("v_lshl_add_u32 v34, v35, 4, v34")
        e(f"s_sub_u32 s34, s31, 512"); e(f"v_add_u32 v{VB+d0}, s34, v34")
    for ps_ in range(5):
        a_ = 20 + ps_; D = 64 + 8*ps_; o = 128 + 12*ps_
        e.wait(ds=[("cr", ps_)])
        e(f"v_alignbit_b32 v{o}, v{D+4}, v{D+3}, 16"); e(f"v_alignbit_b32 v{o+1}, v{D+5}, v{D+4}, 16"); e(f"v_alignbit_b32 v{o+2}, v{D+6}, v{D+5}, 16"); e(f"v_alignbit_b32 v{o+3}, v{D+7}, v{D+6}, 16")
        e(f"ds_write_b128 v{a_}, {v(o,4)} offset:{CP}", tag="cw")
        e(f"v_mov_b32 v{o+4}, v{D+3}"); e(f"v_mov_b32 v{o+5}, v{D+4}"); e(f"v_mov_b32 v{o+6}, v{D+5}"); e(f"v_mov_b32 v{o+7}, v{D+6}")
        e(f"ds_write_b128 v{a_}, {v(o+4,4)} offset:{2*CP}", tag="cw")
        e(f"v_alignbit_b32 v{o+8}, v{D+3}, v{D+2}, 16"); e(f"v_mov_b32 v{o+9}, v{o}"); e(f"v_mov_b32 v{o+10}, v{o+1}"); e(f"v_mov_b32 v{o+11}, v{o+2}")
        e(f"ds_write_b128 v{a_}, {v(o+8,4)} offset:{3*CP}", tag="cw")
    e(f"s_add_u32 s34, s30, {YOFF}")
    e("v_mul_u32_u24 v48, 144, v7"); e("v_lshl_add_u32 v48, v13, 4, v48"); e("v_add_u32 v48, s34, v48")
    e.wait_all_ds()
    stamp_to(83)
    ACCc = 64
    its = [(hf, d0) for hf in range(2) for d0 in range(16)]
    AFr = lambda st, jj, rt: 128 + 16*st + 8*jj + 4*rt
    BF = lambda st, m: 160 + 16*st + 4*m
    def conv_reads(n):
        hf, d0 = its[n]; s2 = n % 2; rl = []
        vb = VB + (d0 & 7); bo = 512 if d0 < 8 else 0
        nb = 4 if hf == 0 else 2
        rl.append((f"ds_read_b128 {v(BF(s2,0),4)}, v{vb} offset:{bo}", ("cv", n)))
        for jj in range(2):
            j = 2*hf + jj
            for rt in range(2):
                for t in range(2):
                    rl.append((f"ds_read_b64_tr_b16 {v(AFr(s2,jj,rt)+2*t,2)}, v{VA} offset:{64*d0 + 1024*j + 32*rt - 8*t + 8}", ("cv", n)))
            for m in range(1 + jj*((nb-1)//2 + 0), nb):
                pass
        for m in range(1, nb):
            rl.insert(min(len(rl), 1 + 3*m), (f"ds_read_b128 {v(BF(s2,m),4)}, v{vb} offset:{bo + 1024*m}", ("cv", n)))
        return rl
    e("v_lshrrev_b32 v49, 1, v13"); e("v_and_b32 v50, 1, v13")
    e("v_lshlrev_b32 v51, 5, v49"); e("v_lshl_add_u32 v51, v7, 1, v51"); e("v_add_u32 v51, v51, v50"); e("s_lshl_b32 s34, s27, 7"); e("v_add_u32 v51, s34, v51")
    e("v_lshlrev_b32 v55, 3, v51")
    for p in range(4):
        for h in range(2):
            e(f"s_mov_b32 s34, {WS_G + p*4096 + h*512}")
            e(f"buffer_load_dword v{236+2*p+h}, v55, s[48:51], s34 offen", tag="sg")
    e("s_movk_i32 s34, 1152"); e("v_mul_lo_u32 v51, v51, s34")
    e("s_lshl_b32 s34, s27, 2"); e("v_add_u32 v49, s34, v49")
    e("v_mul_u32_u24 v52, 144, v49"); e("v_lshl_add_u32 v52, v7, 3, v52"); e("v_lshl_add_u32 v52, v50, 2, v52"); e(f"v_add_u32 v52, {YOFF}, v52")
    e(f"v_add_u32 v53, {2*CHP}, v52")
    e("s_lshl_b32 s34, s27, 12"); e(f"s_add_u32 s34, s34, {BASE0}"); e("v_lshlrev_b32 v54, 4, v0"); e("v_add_u32 v54, s34, v54")
    BASE1_OFF = 25856
    e(f"s_add_u32 s34, s30, {BASE1_OFF}"); e("v_lshlrev_b32 v55, 4, v0"); e("v_add_u32 v55, s34, v55")
    e("s_lshl_b32 s35, s25, 3")
    mksrd(52, 20, 2048*1152)
    fin_q = []
    def emit_it(it):
        if isinstance(it, tuple) and it[0] == "WAITDS": e.wait(ds=[it[1]])
        elif isinstance(it, tuple) and it[0] == "WAITVM": e.wait(vm=[it[1]])
        elif isinstance(it, tuple): e(it[0], tag=it[1])
        else: e(it)
    def final_jobs(p):
        l = []; bo = (p & 1)*2048; vb_ = 54 if p < 2 else 55
        for h in range(2):
            l.append((f"ds_read_b128 {v(208+4*h,4)}, v{vb_} offset:{bo + h*1024}", ("fb", p)))
            for ch in range(4):
                l.append((f"ds_read_b32 v{220+4*h+ch}, v{52 if ch < 2 else 53} offset:{(ch & 1)*CHP + p*16*144 + h*2*144}", ("fb", p)))
        l.append(("WAITDS", ("fb", p)))
        if p == 0: l.append(("WAITVM", "sg"))
        for h in range(2):
            for ch in range(4): l.append(f"v_fma_f32 v{208+4*h+ch}, v{236+2*p+h}, v{220+4*h+ch}, v{208+4*h+ch}")
            o = 228 + 2*((2*p+h) & 3)
            l.append(f"v_cvt_pk_bf16_f32 v{o}, v{208+4*h}, v{209+4*h}"); l.append(f"v_cvt_pk_bf16_f32 v{o+1}, v{210+4*h}, v{211+4*h}")
            l.append(f"s_add_u32 s36, s35, {(512*p + 64*h)*1152}")
            l.append((f"buffer_store_dwordx2 {v(o,2)}, v51, s[52:55], s36 offen {out_flags}".rstrip(), "o"))
        return l
    for t_, tag in conv_reads(0): e(t_, tag=tag)
    first = set()
    for n, (hf, d0) in enumerate(its):
        st = n % 2
        e.wait(ds=[("cv", n)])
        mf = []
        for jj in range(2):
            j = 2*hf + jj
            for ct in range(j, 4):
                for rt in range(2):
                    acc = ACCc + (ct*2+rt)*4
                    c = v(acc,4) if (ct, rt) in first else "0"
                    first.add((ct, rt))
                    mf.append(f"v_mfma_f32_16x16x32_bf16 {v(acc,4)}, {v(AFr(st,jj,rt),4)}, {v(BF(st,ct-j),4)}, {c}")
        rl = conv_reads(n+1) if n + 1 < len(its) else []
        idx = 0
        per = -(-len(rl) // len(mf)) if rl else 0
        for m_ in mf:
            e(m_)
            for _ in range(per):
                if idx < len(rl): e(rl[idx][0], tag=rl[idx][1]); idx += 1
            if fin_q and d0 >= 1 and idx >= len(rl): emit_it(fin_q.pop(0))
        if d0 == 15:
            while fin_q: emit_it(fin_q.pop(0))
            for ct in (2*hf, 2*hf+1):
                for rt in range(2):
                    e(f"ds_write_b128 v48, {v(ACCc+(ct*2+rt)*4,4)} offset:{ct*16*144 + rt*64}", tag=("y", hf))
            e.wait(ds=[("y", hf)])
            e("s_barrier")
            stamp_to((84, 85)[hf])
            fin_q += final_jobs(2*hf) + final_jobs(2*hf+1)
    while fin_q: emit_it(fin_q.pop(0))
    e(f"s_branch {Lfin}")
    e.raw(f"{Lp}:")
    e.reset_state(); e.vm = [t for t in vm_p if isinstance(t, tuple)]
    e("v_and_b32 v14, 15, v0"); e("v_lshrrev_b32 v15, 4, v0")
    e("v_lshrrev_b32 v16, 1, v15"); e("v_lshlrev_b32 v16, 5, v16"); e("v_lshl_add_u32 v16, v14, 1, v16"); e("v_and_b32 v17, 1, v15"); e("v_add_u32 v16, v16, v17")
    e("s_lshl_b32 s38, s27, 7"); e(f"v_add_u32 v{TL}, s38, v16")
    e(f"v_lshlrev_b32 v17, 3, v{TL}")
    for p in range(4):
        for h in range(2):
            e(f"s_mov_b32 s38, {WS_G + p*4096 + h*512}")
            e(f"buffer_load_dwordx2 {v(GR+4*p+2*h,2)}, v17, s[48:51], s38 offen", tag="g")
    e("s_lshl_b32 s38, s25, 3"); e("v_mov_b32 v19, s38")
    e("buffer_load_dwordx2 v[48:49], v19, s[56:59], 0 offen", tag="g")
    I1 = 104; I2 = 108
    e("v_and_b32 v5, 15, v0"); e("v_lshrrev_b32 v6, 4, v0")
    e("v_lshlrev_b32 v7, 3, v6"); e("v_sub_u32 v7, v5, v7")
    e("v_add_u32 v8, 16, v7")
    for base, jr in ((I1, 7), (I2, 8)):
        for d_ in range(4):
            e(f"v_mov_b32 v{base+d_}, 0")
            e(f"v_cmp_eq_u32 vcc, {2*d_}, v{jr}"); e(f"v_mov_b32 v9, 0x3f80"); e(f"v_cndmask_b32 v{base+d_}, v{base+d_}, v9, vcc")
            e(f"v_cmp_eq_u32 vcc, {2*d_+1}, v{jr}"); e(f"v_mov_b32 v9, 0x3f800000"); e(f"v_cndmask_b32 v{base+d_}, v{base+d_}, v9, vcc")
    e("v_lshrrev_b32 v9, 1, v6"); e("s_lshl_b32 s34, s27, 2"); e("v_add_u32 v9, s34, v9")
    e("v_lshrrev_b32 v10, 2, v5"); e("s_and_b32 s34, s27, 1"); e("s_lshl_b32 s34, s34, 1"); e("v_xor_b32 v10, s34, v10")
    e("v_lshlrev_b32 v11, 6, v9"); e("v_lshl_add_u32 v11, v10, 4, v11"); e("v_and_b32 v10, 3, v5"); e("v_lshl_add_u32 v11, v10, 2, v11")
    e("v_and_b32 v10, 1, v6"); e("v_lshl_add_u32 v11, v10, 1, v11"); e(f"v_add_u32 v11, {UT0 + 1024}, v11")
    e("s_lshl_b32 s34, s27, 12"); e(f"s_add_u32 s34, s34, {BASE0}"); e("v_lshlrev_b32 v12, 4, v0"); e("v_add_u32 v12, s34, v12")
    e("s_add_u32 s34, s30, 25856"); e("v_lshlrev_b32 v13, 4, v0"); e("v_add_u32 v13, s34, v13")
    UR = 64; YR = 96
    for i in range(32): e(f"v_mov_b32 v{UR+i}, 0")
    for p in range(4):
        for h in range(2):
            for ch in range(4): e(f"ds_read_u16_d16_hi v{UR + 8*p + 4*h + ch}, v11 offset:{ch*UTP + p*1024 + h*128}", tag="ur")
    nextload = pdepth
    stamp_to(83)
    for p in range(4):
        for i in range(p*nsplit, (p+1)*nsplit):
            e.wait(vm=[("p", i)])
            r = PR + 4*(i % pdepth)
            for h in range(2):
                acc = PA + 8*p + 4*h
                c = "0" if i == p*nsplit else v(acc,4)
                e(f"v_mfma_f32_16x16x32_bf16 {v(acc,4)}, {v((I1,I2)[h],4)}, {v(r,4)}, {c}")
            if nextload < NP: pload(nextload); nextload += 1
        stamp_to((84, 85, 87, 88)[p])
        if p == 0:
            e.wait(ds=["ur"])
            e.wait(vm=["g"])
            e(f"v_lshlrev_b32 v{DR}, 16, v48"); e(f"v_and_b32 v{DR+1}, 0xffff0000, v48"); e(f"v_lshlrev_b32 v{DR+2}, 16, v49"); e(f"v_and_b32 v{DR+3}, 0xffff0000, v49")
        for h in range(2):
            g_ = GR + 4*p + 2*h
            for ch in range(4): e(f"v_mul_f32 v{UR+8*p+4*h+ch}, v{UR+8*p+4*h+ch}, v{DR+ch}")
            for ch in range(4): e(f"v_mul_f32 v{PA+8*p+4*h+ch}, v{g_+1}, v{PA+8*p+4*h+ch}")
            for ch in range(4): e(f"v_fma_f32 v{PA+8*p+4*h+ch}, v{g_}, v{UR+8*p+4*h+ch}, v{PA+8*p+4*h+ch}")
        bo = (p & 1)*2048
        for h in range(2):
            e(f"ds_write_b128 v{12 if p < 2 else 13}, {v(PA+8*p+4*h,4)} offset:{bo + h*1024}", tag=("bw", p))
        if p == 1:
            e.wait(ds=[("bw", p)]); e("s_barrier")
        if p == 3:
            e.wait(ds=[("bw", p)]); e("s_barrier")
    e.raw(f"{Lfin}:")
    e.reset_state()
    if profile:
        e("s_waitcnt vmcnt(0)"); stamp_to(86)
        e("s_memrealtime s[76:77]"); e("s_waitcnt lgkmcnt(0)")
        e("s_load_dwordx2 s[22:23], s[0:1], 112"); e("s_waitcnt lgkmcnt(0)")
        e("s_add_u32 s22, s22, 0xC900000"); e("s_addc_u32 s23, s23, 0")
        mksrd(48, 22, 1<<20)
        e("s_lshl_b32 s34, s2, 3"); e("s_add_u32 s34, s34, s24"); e("s_lshl_b32 s34, s34, 6")
        for i, r in enumerate((81, 82, 83, 84, 85, 87, 88, 86)):
            e(f"s_sub_u32 s35, s{r}, s80"); e("v_mov_b32 v1, s35"); e(f"v_mov_b32 v2, {4*i}")
            e("buffer_store_dword v1, v2, s[48:51], s34 offen")
        e("s_sub_u32 s35, s76, s90"); e("v_mov_b32 v1, s35"); e("v_mov_b32 v2, 60"); e("buffer_store_dword v1, v2, s[48:51], s34 offen")
        e("v_mov_b32 v1, s90"); e("v_mov_b32 v2, 56"); e("buffer_store_dword v1, v2, s[48:51], s34 offen")
    e.raw(f"{Lend}:")
    e.raw("s_endpgm")
    print(f"K2: {e.count} instrs, nops inserted {e.nops_inserted}", file=sys.stderr)
    return k

if __name__ == "__main__":
    k = gen_k2(profile=("prof" in sys.argv[2:]))
    open(sys.argv[1], "w").write(build([k]))
```

```python
import sys, math
sys.path.insert(0, "gen")
from asmlib import *
from emit import E
LOG2E = 1.4426950408889634
WS_P = 0
P_BYTES = 16*144*2048*8
WS_UT = 0x2800000
WS_G = 0x2B00000
WS_KX = 0x2C00000
KXP = 5120
WS_USED = 0x3000000
SLOT = 16384
HREG = 5*SLOT
LDS_BYTES = 10*SLOT

ACC = lambda buf, a, b: 128 + buf*64 + (a*2+b)*16
ACC2 = lambda buf, a, b: (160 if buf == 0 else 64) + (a*2+b)*16
def XF(ks, b):
    return a((ks*2+b)*4, 4) if ks < 32 else v(96 + (ks-32)*8 + b*4, 4)
HF = lambda ks, b: a((ks*2+b)*4, 4)
AF = lambda st, a_: 72 + st*8 + a_*4
AF2 = lambda st, a_: 144 + st*12 + a_*4
OUT = lambda i: 64 + 4*i
TMP = 56
SX = 56; SW = 65; SD = 74
SU = 83
VW = 4; VTR = 8; VHW = 14; VK0 = 15; VWH = 16; VTRH = 18; VX = 21; VXR = 25; VXA = 29
VHWH = 33; VD = 34; VT2 = 37; VP = 46; VHR = 47; VHA = 48
STAMP0 = 92

def gen_f1(name="f1_kernel", store_flags="sc1", prefetch_code=True, profile=False, abl=(), init_units=4,
           ev0=2, ev1=4, evh=4, ev2=3, rot=1, chunks=(3,3,3), budget=5, rd_per_gap=2, fine=-1, side_flags="", dbg=0, kgen=0, budget0=5, pgm=1, xt_at=8):
    k = K(name, (256,1,1), (256,1,1), LDS_BYTES, 256, agpr=256, sgpr=102)
    e = E(k)
    stamps = []
    def stamp():
        if profile:
            r = ([92,93,94,95,96,97,24,23,50,52,51,49])[len(stamps)]; stamps.append(r)
            e(f"s_memtime s[40:41]"); e("s_waitcnt lgkmcnt(0)"); e(f"s_mov_b32 s{r}, s40")
    Lend = k.label("end")
    e(f"s_cmp_ge_u32 s2, {192 if 'no64' in abl else 256}")
    e(f"s_cbranch_scc1 {Lend}")
    if profile:
        e("s_memrealtime s[42:43]"); e("s_waitcnt lgkmcnt(0)"); e("s_mov_b32 s99, s42")
    stamp()
    e("s_load_dwordx2 s[32:33], s[0:1], 0")
    e("s_load_dwordx4 s[36:39], s[0:1], 64")
    e("s_load_dwordx2 s[44:45], s[0:1], 80")
    e("s_load_dwordx2 s[34:35], s[0:1], 112")
    e("s_load_dwordx2 s[100:101], s[0:1], 88")
    if kgen:
        e("s_load_dwordx8 s[76:83], s[0:1], 8")
        e("s_load_dwordx2 s[84:85], s[0:1], 40")
    if prefetch_code:
        Lpf = k.label("pf")
        e("s_getpc_b64 s[40:41]")
        e.raw(f"{Lpf}:")
        e("v_min_u32 v1, 15, v0")
        e("s_lshr_b32 s43, s2, 3")
        e("s_lshl_b32 s43, s43, 4")
        e("v_add_u32 v1, s43, v1")
        e("v_lshlrev_b32 v1, 7, v1")
        e(f"v_min_u32 v1, ({Lend} - {Lpf}), v1")
        e("global_load_dword v63, v1, s[40:41]", tag="pf")
    e("v_lshrrev_b32 v1, 6, v0")
    e("v_and_b32 v0, 63, v0")
    e("v_readfirstlane_b32 s20, v1")
    e("s_and_b32 s42, s2, 7")
    e("s_lshr_b32 s43, s2, 3")
    e("s_and_b32 s46, s42, 1"); e("s_lshl_b32 s46, s46, 3"); e("s_and_b32 s47, s43, 7"); e("s_add_u32 s46, s46, s47")
    e("s_lshr_b32 s48, s42, 1"); e("s_lshl_b32 s48, s48, 2"); e("s_lshr_b32 s49, s43, 3"); e("s_add_u32 s48, s48, s49")
    e("s_lshr_b32 s21, s20, 1")
    e("s_and_b32 s22, s20, 1")
    e("s_mul_i32 s50, s48, 576")
    e("s_and_b32 s51, s48, 1")
    e("s_lshl_b32 s52, s51, 6"); e("s_add_u32 s52, s52, s50")
    e("s_xor_b32 s53, s51, 1"); e("s_lshl_b32 s53, s53, 9"); e("s_add_u32 s53, s53, s50")
    e("s_lshl_b32 s24, s46, 2"); e("s_add_u32 s24, s24, s20"); e(f"s_mul_i32 s24, s24, {32*1152}")
    e(f"s_mul_i32 s23, s20, {16*9216}")
    e(f"s_mov_b32 s{SX}, s24"); e(f"s_mov_b32 s{SW}, s23")
    e("s_lshl_b32 s54, s49, 1"); e("s_add_u32 s54, s54, s47"); e("s_bfe_u32 s55, s42, 0x10001"); e("s_add_u32 s54, s54, s55"); e("s_and_b32 s54, s54, 7")
    if not rot: e("s_mov_b32 s54, 0")
    for l in range(1, 9):
        e("s_add_u32 s55, s54, 1")
        e(f"s_lshl_b32 s29, s55, 7"); e(f"s_add_u32 s{SX+l}, s24, s29")
        e(f"s_mul_i32 s29, s55, {64*9216}"); e(f"s_add_u32 s{SW+l}, s23, s29")
        if l < 8:
            e("s_add_u32 s54, s54, 1"); e("s_and_b32 s54, s54, 7")
    e("s_lshl_b32 s30, s20, 12")
    e("s_lshl_b32 s31, s20, 11")
    c0 = -2.0*math.sqrt(2.0/math.pi)*LOG2E; c1 = c0*0.044715
    e(f"s_mov_b32 s27, {fimm(c1)}")
    e(f"v_mov_b32 v{VK0}, {fimm(c0)}")
    e("v_lshrrev_b32 v1, 3, v0"); e("v_and_b32 v2, 7, v0"); e("v_bfe_u32 v3, v0, 4, 1")
    e("s_movk_i32 s55, 9216"); e("v_mul_lo_u32 v1, v1, s55")
    for q in range(4):
        m = q >> 1
        e(f"v_or_b32 v{VW+q}, {m<<1}, v3")
        e(f"v_lshlrev_b32 v{VW+q}, 1, v{VW+q}")
        e(f"v_xor_b32 v{VW+q}, v{VW+q}, v2")
        e(f"v_lshl_add_u32 v{VW+q}, v{VW+q}, 4, v1")
        add = (8*9216 if q & 1 else 0) - 1024*q + (2048 if m else 0)
        if add: e(f"v_add_u32 v{VW+q}, {add}, v{VW+q}")
    e("v_lshrrev_b32 v1, 3, v0"); e("s_movk_i32 s55, 1152"); e("v_mul_lo_u32 v1, v1, s55"); e("v_lshrrev_b32 v3, 4, v0")
    for i in range(4):
        e(f"v_add_u32 v{VX+i}, {4*i}, v3")
        e(f"v_and_b32 v{VX+i}, 7, v{VX+i}")
        e(f"v_xor_b32 v{VX+i}, v{VX+i}, v2")
        e(f"v_lshl_add_u32 v{VX+i}, v{VX+i}, 4, v1")
        add = 8*i*1152 - 1024*i
        if add: e(f"v_add_u32 v{VX+i}, {add}, v{VX+i}")
    if profile and fine < 0: stamp()
    e("s_waitcnt lgkmcnt(0)")
    srd(e, 4, 32, 2048*1152)
    e("s_sub_u32 s38, s38, 2048"); e("s_subb_u32 s39, s39, 0")
    e("s_add_u32 s8, s36, s52"); e("s_addc_u32 s9, s37, 0"); e("s_and_b32 s9, s9, 0xffff")
    e(f"s_mov_b32 s10, {576*9216}"); e("s_mov_b32 s11, 0x00020000")
    e("s_add_u32 s12, s38, s52"); e("s_addc_u32 s13, s39, 0"); e("s_and_b32 s13, s13, 0xffff")
    e(f"s_mov_b32 s14, {576*9216 + 2048}"); e("s_mov_b32 s15, 0x00020000")
    units = []
    for c in range(9):
        units.append(("X", 0, c)); units.append(("W", 0, c))
    for s_ in range(1, 4):
        for c in range(9): units.append(("W", s_, c))
    for c in range(5): units.append(("HF", 4, c))
    for dc in range(len(chunks)):
        for c in range(9): units.append(("D", dc, c))
    phases = []
    n = 0
    for c in range(9): phases.append(([n, n+1], 0, 4*c, 4)); n += 2
    for s_ in range(1, 4):
        for c in range(9): phases.append(([n], s_, 4*c, 4)); n += 1
    for c in range(5): phases.append(([n], 4, 8*c, 8 if c < 4 else 4)); n += 1
    for dc in range(len(chunks)):
        for c in range(9): phases.append(([n], 5+dc, 2*c, 2)); n += 1
    unit_phase = {}
    for pi, ph in enumerate(phases):
        for u in ph[0]: unit_phase[u] = pi
    first_g2 = next(pi for pi, ph in enumerate(phases) if ph[1] == 5)
    first_g2c1 = next(pi for pi, ph in enumerate(phases) if ph[1] == 6)
    free_after = {i*SLOT: -1 for i in range(5)}
    slot_of = {}; issue_after = {}
    last = -1
    g2_ready = False
    for u in range(len(units)):
        if units[u][0] == "D" and not g2_ready:
            g2_ready = True
            old_fa = dict(free_after)
            free_after = {}
            US = 12288
            for i in range(6):
                lo, hi = i*US, (i+1)*US
                free_after[lo] = max(fa for s_, fa in old_fa.items() if s_ < hi and s_ + SLOT > lo)
            for i in range(6):
                free_after[HREG + i*US] = first_g2c1
        sl = min(free_after, key=lambda s_: (max(free_after[s_], last), s_))
        ia = max(free_after[sl], last)
        slot_of[u] = sl; issue_after[u] = ia; last = ia
        free_after[sl] = unit_phase[u] + 1
    col_of_chunk = [sum(chunks[:i])*64 for i in range(len(chunks))]
    def dma_unit(n):
        kind, g, c = units[n]
        slot = slot_of[n]
        out = []
        if kind == "X":
            out.append(f"s_add_u32 m0, s30, {slot}")
            for i in range(4):
                off = f" offset:{1024*i}" if i else ""
                out.append((f"buffer_load_dwordx4 v{VX+i}, s[4:7], s{SX+c} offen{off} lds", ("dma", n)))
        elif kind == "W":
            if c == 0 and g > 0:
                out.append("s_add_u32 s8, s8, 128"); out.append("s_addc_u32 s9, s9, 0")
                out.append("s_add_u32 s12, s12, 128"); out.append("s_addc_u32 s13, s13, 0")
            out.append(f"s_add_u32 m0, s30, {slot}")
            for q in range(4):
                srd_ = "s[8:11]" if q < 2 else "s[12:15]"
                off = f" offset:{1024*q}" if q else ""
                out.append((f"buffer_load_dwordx4 v{VW+q}, {srd_}, s{SW+c} offen{off} lds", ("dma", n)))
        elif kind == "HF":
            if c == 0:
                out.append("s_add_u32 s8, s36, s53"); out.append("s_addc_u32 s9, s37, 0"); out.append("s_and_b32 s9, s9, 0xffff")
                out.append("s_add_u32 s12, s38, s53"); out.append("s_addc_u32 s13, s39, 0"); out.append("s_and_b32 s13, s13, 0xffff")
            nk = 2 if c < 4 else 1
            for ee in range(nk):
                out.append(f"s_add_u32 m0, s31, {slot + ee*8192}")
                out.append((f"buffer_load_dwordx4 v{VWH}, s[8:11], s{SW+2*c+ee} offen lds", ("dma", n)))
                out.append((f"buffer_load_dwordx4 v{VWH+1}, s[12:15], s{SW+2*c+ee} offen offset:1024 lds", ("dma", n)))
        else:
            nt = chunks[g]
            assert nt == 3
            if c == 0 and g > 0:
                out.append(f"s_add_u32 s4, s4, {chunks[g-1]*128}"); out.append("s_addc_u32 s5, s5, 0")
            out.append(f"s_add_u32 m0, s28, {slot}")
            for i in range(3):
                off = f" offset:{1024*i}" if i else ""
                out.append((f"buffer_load_dwordx4 v{VD+i}, s[4:7], s{SD+c} offen{off} lds", ("dma", n)))
        return out
    def emit_list(lst):
        for it in lst:
            if isinstance(it, tuple) and it[0] == "WAITDS": e.wait(ds=[it[1]])
            elif isinstance(it, tuple) and it[0] == "WAITVM": e.wait(vm=[it[1]])
            elif isinstance(it, tuple): e(it[0], tag=it[1])
            else: e(it)
    next_dma = 0
    dma_q = []
    def release(bar):
        nonlocal next_dma
        while next_dma < len(units) and issue_after[next_dma] <= bar:
            if units[next_dma][0] == "D" and units[next_dma][1] == 0 and units[next_dma][2] == 0:
                dma_q.extend(g2_setup())
            if "nodma" in abl and next_dma >= init_units: pass
            else: dma_q.extend(dma_unit(next_dma))
            next_dma += 1
    def is_dma(it): return isinstance(it, tuple) and it[1] is not None and it[1][0] == "dma"
    def pop_dma(n):
        out = []
        while dma_q and n > 0:
            it = dma_q.pop(0); out.append(it)
            if is_dma(it): n -= 1
        return out
    def g2_setup():
        l = []
        l.append("s_mov_b32 s4, s44"); l.append("s_and_b32 s5, s45, 0xffff"); l.append(f"s_mov_b32 s6, {4608*1152}")
        return l
    release(-1)
    u0 = pop_dma(4); u1 = pop_dma(4)
    La = k.label("ord"); Lb = k.label("ordd")
    e("s_add_u32 s55, s47, s49"); e("s_and_b32 s55, s55, 1"); e("s_cmp_eq_u32 s55, 0")
    e(f"s_cbranch_scc1 {La}")
    vm_save = list(e.vm)
    emit_list(u1); emit_list(u0)
    e(f"s_branch {Lb}")
    e.raw(f"{La}:")
    e.vm = list(vm_save)
    emit_list(u0); emit_list(u1)
    e.raw(f"{Lb}:")
    e.m0_w = -100
    pending_init = init_units - 2
    if profile and fine < 0: stamp()
    if kgen:
        e("s_lshl_b32 s55, s2, 2"); e("s_add_u32 s55, s55, s20"); e("s_sub_u32 s26, s55, 576"); e("s_cmp_ge_u32 s55, 576"); e("s_cselect_b32 s91, s26, s55")
        e("s_lshl_b32 s55, s91, 8")
        e("v_lshlrev_b32 v233, 1, v0")
        for i in range(4):
            e(f"s_mov_b32 s40, s{76+2*i}"); e(f"s_and_b32 s41, s{77+2*i}, 0xffff"); e(f"s_mov_b32 s42, {576*256}"); e("s_mov_b32 s43, 0x00020000")
            e(f"buffer_load_ushort v{224+i}, v233, s[40:43], s55 offen", tag="kp")
            e(f"buffer_load_ushort v{228+i}, v233, s[40:43], s55 offen offset:128", tag="kp")
        e("s_mov_b32 s40, s84"); e("s_and_b32 s41, s85, 0xffff"); e("s_mov_b32 s42, 1152")
        e("s_lshl_b32 s55, s91, 1"); e("v_mov_b32 v233, s55")
        e("buffer_load_ushort v232, v233, s[40:43], 0 offen", tag="kp")
        e(f"s_mul_i32 s29, s91, {KXP}"); e(f"s_add_u32 s29, s29, {WS_KX}")
    srd(e, 16, 34, WS_USED)
    e("s_mul_i32 s24, s48, 288"); e("s_lshl_b32 s55, s20, 3"); e("s_add_u32 s24, s24, s55"); e("s_mul_i32 s24, s24, 1152")
    for l in range(9):
        if l < 8:
            if rot: e(f"s_add_u32 s54, s47, {l}"); e("s_and_b32 s54, s54, 7")
            else: e(f"s_mov_b32 s54, {l}")
            e("s_add_u32 s54, s54, s51")
        else:
            e("s_xor_b32 s54, s51, 1"); e("s_lshl_b32 s54, s54, 3")
        e(f"s_lshl_b32 s{SU+l}, s54, 13")
        e(f"s_mul_i32 s55, s54, {32*1152}"); e(f"s_add_u32 s{SD+l}, s24, s55")
    e("s_mul_i32 s28, s20, 3072")
    GST = 16*16384 if pgm else 16384
    if pgm:
        e("s_mul_i32 s25, s22, 24"); e("s_lshl_b32 s25, s25, 4"); e("s_add_u32 s25, s25, s48"); e("s_lshl_b32 s25, s25, 14")
    else:
        e("s_mul_i32 s25, s48, 144"); e("s_mul_i32 s55, s22, 24"); e("s_add_u32 s25, s25, s55"); e("s_lshl_b32 s25, s25, 14")
    e("s_lshl_b32 s55, s46, 1"); e("s_add_u32 s55, s55, s21"); e("s_lshl_b32 s55, s55, 9"); e("s_add_u32 s25, s25, s55")
    e("v_lshrrev_b32 v1, 4, v0"); e("v_bfe_u32 v2, v0, 2, 2"); e("v_and_b32 v3, 3, v0")
    T0, T1, T2, T3 = 56, 57, 58, 59
    e(f"v_lshrrev_b32 v{T0}, 1, v3")
    e(f"v_lshrrev_b32 v{T1}, 1, v1")
    e(f"v_lshl_add_u32 v{T1}, v{T1}, 3, v2")
    e(f"v_lshrrev_b32 v{T2}, 1, v2")
    e(f"v_lshl_or_b32 v60, v{T0}, 1, v{T2}")
    e(f"v_and_b32 v{T3}, 1, v1")
    e(f"v_lshlrev_b32 v61, 4, v{T3}")
    e("v_and_b32 v62, 1, v3")
    e("v_lshl_add_u32 v61, v62, 3, v61")
    e(f"v_lshlrev_b32 v62, 11, v{T0}")
    e(f"v_lshl_add_u32 v62, v{T1}, 7, v62")
    e("v_add_u32 v62, v62, v61")
    for a_ in range(2):
        e("s_lshl_b32 s55, s22, 1")
        if a_: e("s_add_u32 s55, s55, 1")
        e(f"v_xor_b32 v{VTR+1}, s55, v60")
        e(f"v_lshl_add_u32 v{VTR+3*a_}, v{VTR+1}, 5, v62") if a_ == 1 else None
        if a_ == 0:
            e(f"v_lshl_add_u32 v{VTR}, v{VTR+1}, 5, v62")
    e(f"v_add_u32 v{VTR+1}, 0x10000, v{VTR}")
    e(f"v_add_u32 v{VTR+4}, 0x10000, v{VTR+3}")
    e(f"v_lshlrev_b32 v62, 10, v{T0}")
    e(f"v_lshl_add_u32 v62, v{T1}, 6, v62")
    e("v_add_u32 v62, v62, v61")
    e(f"v_xor_b32 v60, s22, v{T0}")
    e(f"v_lshl_add_u32 v{VTRH}, v60, 5, v62")
    e(f"v_add_u32 v{VTRH+1}, 0x10000, v{VTRH}")
    e("v_lshrrev_b32 v60, 1, v1"); e("v_lshl_add_u32 v60, v60, 2, v2")
    e("s_movk_i32 s55, 384"); e("v_mul_lo_u32 v60, v60, s55")
    e(f"v_lshl_add_u32 v60, v{T3}, 5, v60"); e("v_lshl_add_u32 v60, v3, 3, v60")
    for a_ in range(3):
        e("s_mul_i32 s55, s22, 3"); e(f"s_add_u32 s55, s55, {a_}")
        e(f"v_xor_b32 v61, s55, v{T2}")
        e(f"v_lshl_add_u32 v{VT2+3*a_}, v61, 6, v60")
        e(f"v_add_u32 v{VT2+3*a_+1}, 0x10000, v{VT2+3*a_}")
        e(f"v_add_u32 v{VT2+3*a_+2}, 0x20000, v{VT2+3*a_}")
    for i in range(3):
        e(f"v_add_u32 v60, {64*i}, v0")
        e("v_mul_u32_u24 v61, 2731, v60"); e("v_lshrrev_b32 v61, 16, v61")
        e("v_mul_u32_u24 v62, 24, v61"); e("v_sub_u32 v62, v60, v62")
        e("v_bfe_u32 v60, v61, 1, 1"); e("v_lshlrev_b32 v60, 2, v60")
        e("v_xor_b32 v62, v62, v60")
        e("v_mul_u32_u24 v61, 1152, v61")
        e(f"v_lshl_add_u32 v{VD+i}, v62, 4, v61")
        if i: e(f"v_subrev_u32 v{VD+i}, {1024*i}, v{VD+i}")
    e("v_lshrrev_b32 v1, 2, v0"); e("s_movk_i32 s55, 9216"); e("v_mul_lo_u32 v1, v1, s55"); e("v_and_b32 v2, 3, v0")
    e(f"v_lshl_add_u32 v{VWH}, v2, 4, v1"); e("v_xor_b32 v2, 2, v2")
    e(f"v_lshl_add_u32 v{VWH+1}, v2, 4, v1"); e(f"v_add_u32 v{VWH+1}, 1024, v{VWH+1}")
    e("v_and_b32 v1, 31, v0"); e("s_lshl_b32 s55, s21, 6"); e("v_add_u32 v1, s55, v1"); e("v_lshlrev_b32 v1, 7, v1")
    e("v_lshrrev_b32 v2, 5, v0"); e("v_bfe_u32 v3, v0, 1, 3"); e("v_xor_b32 v3, v2, v3")
    e(f"v_lshl_add_u32 v{VXR}, v3, 4, v1")
    for ks in range(1, 4): e(f"v_xor_b32 v{VXR+ks}, {ks*32}, v{VXR}")
    e("v_and_b32 v1, 31, v0"); e("v_lshlrev_b32 v1, 3, v1"); e(f"v_lshl_add_u32 v{VP}, v2, {18 if pgm else 14}, v1")
    e("v_lshlrev_b32 v1, 4, v0"); e("s_lshl_b32 s55, s21, 11"); e(f"s_add_u32 s55, s55, {HREG}"); e(f"v_add_u32 v{VHR}, s55, v1")
    e("s_add_u32 s55, s51, s22"); e("s_lshl_b32 s55, s55, 13"); e(f"v_add_u32 v{VHW}, s55, v{VHR}")
    e("s_xor_b32 s55, s51, 1"); e("s_lshl_b32 s55, s55, 4"); e("s_add_u32 s55, s55, s22"); e("s_lshl_b32 s55, s55, 12")
    e(f"v_add_u32 v{VHWH}, s55, v{VHR}")
    steps = []
    for pi, (us, sg, k0, nks) in enumerate(phases):
        for q in range(nks): steps.append((pi, q, sg, k0+q))
    def reads_for(si):
        pi, q, sg, ks = steps[si]
        us = phases[pi][0]
        out = []; st = si % 3
        if sg == 0:
            xs = slot_of[us[0]]
            if q == 0:
                for kk in range(4): out.append((f"v_add_u32 v{VXA+kk}, {xs}, v{VXR+kk}", None))
            for b in range(2):
                off = f" offset:{4096*b}" if b else ""
                out.append((f"ds_read_b128 {XF(ks,b)}, v{VXA+q}{off}", ("rd", si)))
        ws = slot_of[us[-1]]
        if sg < 4:
            for a_ in range(2):
                for t in range(2):
                    off = ws + q*4096 + t*512
                    out.append((f"ds_read_b64_tr_b16 {v(AF(st,a_)+2*t,2)}, v{VTR+3*a_+(off>>16)} offset:{off & 0xffff}", ("rd", si)))
        elif sg == 4:
            for t in range(2):
                off = ws + q*2048 + t*256
                out.append((f"ds_read_b64_tr_b16 {v(AF(st,0)+2*t,2)}, v{VTRH+(off>>16)} offset:{off & 0xffff}", ("rd", si)))
        else:
            if sg == 5:
                if q == 0: out.append((f"v_add_u32 v{VHA}, s{SU+ks//2}, v{VHR}", None))
                for b in range(2):
                    out.append((f"ds_read_b128 {HF(ks,b)}, v{VHA} offset:{q*4096 + b*1024}", ("rd", si)))
            for a_ in range(chunks[sg-5]):
                for t in range(2):
                    off = ws + q*16*384 + t*8*384
                    out.append((f"ds_read_b64_tr_b16 {a(AF2(st,a_)+2*t,2)}, v{VT2+3*a_+(off>>16)} offset:{off & 0xffff}", ("rd", si)))
        return out
    def barrier_for(pi):
        if "nodma" not in abl:
            for u in phases[pi][0]:
                assert u < next_dma and not any(isinstance(x, tuple) and x[1] == ("dma", u) for x in dma_q), f"DMA for unit {u} not issued before its barrier"
        if not ("novm" in abl and phases[pi][1] >= 6): e.wait(vm=[("dma", u) for u in phases[pi][0]])
        e.wait_all_ds()
        if "nobar" not in abl or pi == 0: e("s_barrier")
        release(pi)
    outsel = [0]
    def epi_tile(buf, a_, b, sg):
        A0 = ACC(buf, a_, b)
        o = OUT(outsel[0]); outsel[0] ^= 1
        l = []
        for hh in range(2):
            r0 = A0 + 8*hh; t = TMP + 4*hh
            for i in range(4): l.append(f"v_mul_f32 v{t+i}, v{r0+i}, v{r0+i}")
            for i in range(4): l.append(f"v_mul_f32 v{r0+4+i}, v{r0+i}, v{r0+4+i}")
            for i in range(4): l.append(f"v_fma_f32 v{t+i}, v{t+i}, s27, v{VK0}")
            for i in range(4): l.append(f"v_mul_f32 v{r0+i}, v{t+i}, v{r0+i}")
            for i in range(4): l.append(f"v_exp_f32 v{r0+i}, v{r0+i}")
            for i in range(4): l.append(f"v_add_f32 v{r0+i}, 1.0, v{r0+i}")
            for i in range(4): l.append(f"v_rcp_f32 v{r0+i}, v{r0+i}")
            for i in range(4): l.append(f"v_mul_f32 v{r0+4+i}, v{r0+4+i}, v{r0+i}")
            l.append(f"v_cvt_pk_bf16_f32 v{o+2*hh}, v{r0+4}, v{r0+5}")
            l.append(f"v_cvt_pk_bf16_f32 v{o+2*hh+1}, v{r0+6}, v{r0+7}")
        if sg < 4: l.append((f"ds_write_b128 v{VHW}, {v(o,4)} offset:{(4*sg+a_)*4096 + b*1024}", ("hw", 0)))
        else: l.append((f"ds_write_b128 v{VHWH}, {v(o,4)} offset:{b*1024}", ("hw", 0)))
        return l
    psel = [0]
    def epi2(dc):
        buf = dc & 1; l = []
        g0 = col_of_chunk[dc]//4
        for a_ in range(chunks[dc]):
            for q in range(4):
                l.append(f"s_add_u32 s26, s25, {(g0 + 8*a_ + 2*q)*GST}")
                for b in range(2):
                    r = ACC2(buf, a_, b) + 4*q
                    o = TMP + 2*(psel[0] & 3); psel[0] += 1
                    l.append(f"v_cvt_pk_bf16_f32 v{o}, v{r}, v{r+1}")
                    l.append(f"v_cvt_pk_bf16_f32 v{o+1}, v{r+2}, v{r+3}")
                    off = f" offset:{256*b}" if b else ""
                    l.append((f"buffer_store_dwordx2 {v(o,2)}, v{VP}, s[16:19], s26 offen{off} {store_flags}".rstrip(), ("st", 0)))
        return l
    emit_list(pop_dma(4*pending_init))
    GX = 96; GW = 106; GT = 112
    def gate_loads():
        l = []
        l.append("v_lshlrev_b32 v72, 2, v0")
        l.append("s_lshl_b32 s55, s46, 4"); l.append("s_add_u32 s55, s55, s48"); l.append("s_lshl_b32 s55, s55, 2"); l.append("s_add_u32 s55, s55, s20")
        l.append("s_lshl_b32 s26, s55, 1")
        l.append("s_lshl_b32 s3, s26, 3"); l.append(f"s_add_u32 s3, s3, {WS_G}")
        l.append("s_mul_i32 s29, s26, 1152")
        l.append("s_mov_b32 s8, s32"); l.append("s_and_b32 s9, s33, 0xffff"); l.append(f"s_mov_b32 s10, {2048*1152}")
        l.append("s_mov_b32 s12, s100"); l.append("s_and_b32 s13, s101, 0xffff"); l.append("s_mov_b32 s14, 1152")
        for t in range(2):
            for i in range(5):
                l.append((f"buffer_load_dword v{GX+5*t+i}, v72, s[8:11], s29 offen offset:{1152*t + 256*i}", "gl"))
        for i in range(5):
            l.append((f"buffer_load_dword v{GW+i}, v72, s[12:15], 0 offen offset:{256*i}", "gl"))
        return l
    def gate_jobs():
        l = [("WAITVM", "gl")]
        for i in range(5):
            l.append(f"v_lshlrev_b32 v{GT+2*i}, 16, v{GW+i}"); l.append(f"v_and_b32 v{GT+2*i+1}, 0xffff0000, v{GW+i}")
        for t in range(2):
            acc = 76 + t
            for i in range(5):
                x = GX+5*t+i
                l.append(f"v_lshlrev_b32 v74, 16, v{x}"); l.append(f"v_and_b32 v75, 0xffff0000, v{x}")
                l.append(f"v_mul_f32 v74, v74, v{GT+2*i}"); l.append(f"v_mul_f32 v75, v75, v{GT+2*i+1}")
                l.append(f"v_cvt_pk_bf16_f32 v73, v74, v75")
                l.append(f"v_lshlrev_b32 v74, 16, v73"); l.append(f"v_and_b32 v75, 0xffff0000, v73")
                if i == 0: l.append(f"v_add_f32 v{acc}, v74, v75")
                else:
                    l.append(f"v_add_f32 v{acc}, v{acc}, v74"); l.append(f"v_add_f32 v{acc}, v{acc}, v75")
        for sh in (1, 2, 4, 8):
            for t in range(2): l.append(f"v_add_f32_dpp v{76+t}, v{76+t}, v{76+t} row_shr:{sh} row_mask:0xf bank_mask:0xf bound_ctrl:0")
        for t in range(2): l.append(f"v_add_f32_dpp v{76+t}, v{76+t}, v{76+t} row_bcast:15 row_mask:0xa bank_mask:0xf")
        for t in range(2): l.append(f"v_add_f32_dpp v{76+t}, v{76+t}, v{76+t} row_bcast:31 row_mask:0xc bank_mask:0xf")
        for t in range(2):
            r = 76+t; o = 80+2*t
            l.append(f"v_readlane_b32 s55, v{r}, 63"); l.append(f"v_mov_b32 v{r}, s55")
            l.append(f"v_cvt_pk_bf16_f32 v{r}, v{r}, v{r}"); l.append(f"v_lshlrev_b32 v{r}, 16, v{r}")
            l.append(f"v_mul_f32 v{r}, {fimm(-LOG2E)}, v{r}"); l.append(f"v_exp_f32 v{r}, v{r}"); l.append(f"v_add_f32 v{r}, 1.0, v{r}"); l.append(f"v_rcp_f32 v{r}, v{r}")
            l.append(f"v_cvt_pk_bf16_f32 v{o}, v{r}, v{r}"); l.append(f"v_lshlrev_b32 v{o}, 16, v{o}")
            l.append(f"v_sub_f32 v{o+1}, 1.0, v{o}"); l.append(f"v_cvt_pk_bf16_f32 v{o+1}, v{o+1}, v{o+1}"); l.append(f"v_lshlrev_b32 v{o+1}, 16, v{o+1}")
        l.append("v_mov_b32 v74, s3")
        l.append((f"buffer_store_dwordx4 v[80:83], v74, s[16:19], 0 offen {side_flags}".rstrip(), ("st", 0)))
        return l
    XTA = 192
    e("v_lshrrev_b32 v156, 4, v0"); e("v_bfe_u32 v157, v0, 2, 2"); e("v_and_b32 v158, 3, v0")
    for t in range(2):
        e(f"v_lshl_add_u32 v159, v156, 3, v157")
        if t: e("v_add_u32 v159, 4, v159")
        e("v_bfe_u32 v160, v159, 1, 3")
        e("v_lshrrev_b32 v161, 1, v158"); e("v_xor_b32 v160, v160, v161")
        e("v_lshlrev_b32 v159, 7, v159"); e("v_lshl_add_u32 v159, v160, 4, v159")
        e("v_and_b32 v161, 1, v158"); e("v_lshl_add_u32 v159, v161, 3, v159")
        e(f"v_add_u32 v{XTA+4*t}, s30, v159")
        for cb in range(1, 4): e(f"v_xor_b32 v{XTA+4*t+cb}, {32*cb}, v{XTA+4*t}")
    e("s_and_b32 s26, s48, 3"); e("s_lshl_b32 s26, s26, 5")
    for t in range(2): e(f"v_xor_b32 v{XTA+9+t}, s26, v{XTA+4*t}")
    e("v_and_b32 v159, 15, v0"); e("v_lshlrev_b32 v159, 12, v159"); e(f"v_lshl_add_u32 v{XTA+8}, v156, 4, v159")
    def xt_jobs(lam):
        l = []
        sl = slot_of[2*lam]
        assert sl + 0 < 65536
        if lam == 1:
            for cb in range(4):
                for t in range(2): l.append((f"ds_read_b64_tr_b16 {v(XTA+12+4*cb+2*t,2)}, v{XTA+4*t+cb} offset:{sl}", ("xtr", lam)))
            l.append(f"s_sub_u32 s26, s{SX+1}, s{SX}"); l.append("s_lshl_b32 s26, s26, 11")
        else:
            for t in range(2): l.append((f"ds_read_b64_tr_b16 {v(XTA+28+2*t,2)}, v{XTA+9+t} offset:{sl}", ("xtr", lam)))
            l.append("s_and_b32 s26, s48, 3"); l.append("s_lshl_b32 s26, s26, 16")
        l.append("s_lshl_b32 s55, s46, 8"); l.append("s_add_u32 s26, s26, s55"); l.append("s_lshl_b32 s55, s20, 6"); l.append("s_add_u32 s26, s26, s55")
        l.append(f"s_add_u32 s26, s26, {WS_UT}")
        l.append(("WAITDS", ("xtr", lam)))
        if lam == 1:
            for cb in range(4):
                l.append((f"buffer_store_dwordx4 {v(XTA+12+4*cb,4)}, v{XTA+8}, s[16:19], s26 offen {side_flags}".rstrip(), ("st", 0)))
                if cb < 3: l.append(f"s_add_u32 s26, s26, {16*4096}")
        else:
            l.append((f"buffer_store_dwordx4 {v(XTA+28,4)}, v{XTA+8}, s[16:19], s26 offen {side_flags}".rstrip(), ("st", 0)))
        return l
    def kgen_jobs():
        l = []
        ROWP = 272
        def A(x): l.append(x)
        A(("WAITVM", "kp"))
        for i in range(9): A(f"v_lshlrev_b32 v{224+i}, 16, v{224+i}")
        for r in (232, 224, 228):
            A(f"v_mul_f32 v{r}, {fimm(LOG2E)}, v{r}"); A(f"v_exp_f32 v{r}, v{r}")
            A(f"v_cvt_pk_bf16_f32 v{r}, v{r}, v{r}"); A(f"v_lshlrev_b32 v{r}, 16, v{r}")
        for b in (224, 228):
            for i in range(4): A(f"v_mul_f32 v{b+i}, v{b+i}, v232")
            A(f"v_add_f32 v{b+2}, v{b+2}, v{b+2}"); A(f"v_add_f32 v{b+3}, v{b+3}, v{b+3}")
            A(f"v_mul_f32 v{b}, {fimm(-LOG2E)}, v{b}"); A(f"v_mul_f32 v{b+1}, {fimm(1.0/(2*math.pi))}, v{b+1}")
        A(f"s_lshl_b32 s26, s20, 14"); A(f"s_add_u32 s26, s26, {HREG}"); A("s_mov_b32 s28, s26") if False else None
        A("v_lshlrev_b32 v233, 2, v0"); A("v_add_u32 v233, s26, v233")
        A("v_and_b32 v246, 15, v0"); A("v_lshrrev_b32 v247, 4, v0")
        A(f"v_mul_u32_u24 v248, {ROWP}, v246"); A("v_lshl_add_u32 v248, v247, 4, v248"); A("v_add_u32 v248, s26, v248")
        EREG = {1: 192, 2: 194, 4: 196, 8: 198, 128: 200, 256: 202, 512: 204, 1024: 206}
        ps = list(EREG)
        KD = 234
        wsel = [0]
        def cmul(dst, a_, b_):
            A(f"v_pk_mul_f32 {v(dst,2)}, {v(a_,2)}, {v(b_,2)} op_sel:[0,0] op_sel_hi:[0,1]")
            A(f"v_pk_fma_f32 {v(dst,2)}, {v(a_,2)}, {v(b_,2)}, {v(dst,2)} op_sel:[1,1,0] op_sel_hi:[1,0,1] neg_lo:[0,1,0]")
        def put(row, src, conj=False):
            o = 252 + (wsel[0] & 3); wsel[0] += 1
            A(f"v_cvt_pk_bf16_f32 v{o}, v{src}, {'-' if conj else ''}v{src+1}")
            A((f"ds_write_b32 v233, v{o} offset:{row*ROWP}", ("uv", 0)))
        def run(chains):
            live = list(chains)
            while live:
                for c in list(live):
                    try: it = next(c)
                    except StopIteration: live.remove(c); continue
                    if it[0] == "c": cmul(it[1], it[2], it[3])
                    elif it[0] == "p": put(it[1], it[2], it[3])
                    else: A(f"v_mov_b32 v{it[1]}, 1.0"); A(f"v_mov_b32 v{it[1]+1}, 0")
        for pas in range(2):
            zb = 224 + 4*pas; C2 = zb + 2
            for grp in range(2):
                T = 208
                for ii in range(4):
                    i = 4*grp + ii; lg = int(math.log2(ps[i]))
                    if lg:
                        A(f"v_ldexp_f32 v{T+3*ii}, v{zb}, {lg}"); A(f"v_ldexp_f32 v{T+3*ii+1}, v{zb+1}, {lg}")
                    else:
                        A(f"v_mov_b32 v{T+3*ii}, v{zb}"); A(f"v_mov_b32 v{T+3*ii+1}, v{zb+1}")
                for ii in range(4): A(f"v_fract_f32 v{T+3*ii+1}, v{T+3*ii+1}")
                for ii in range(4): A(f"v_exp_f32 v{T+3*ii}, v{T+3*ii}")
                for ii in range(4): A(f"v_sin_f32 v{T+3*ii+2}, v{T+3*ii+1}")
                for ii in range(4): A(f"v_cos_f32 v{T+3*ii+1}, v{T+3*ii+1}")
                for ii in range(4):
                    p = ps[4*grp+ii]
                    A(f"v_mul_f32 v{EREG[p]}, v{T+3*ii}, v{T+3*ii+1}"); A(f"v_mul_f32 v{EREG[p]+1}, v{T+3*ii}, v{T+3*ii+2}")
            def chain_seg0():
                cur = C2; regs = [208, 210]
                for i in range(8):
                    if i > 0:
                        nxt = regs[i & 1]; yield ("c", nxt, cur, EREG[1]); cur = nxt
                    yield ("p", i, cur, False)
                    yield ("c", 212 + 2*(i & 1), cur, EREG[128]); yield ("p", 8+i, 212 + 2*(i & 1), False)
            def chain_v():
                yield ("m", 216); yield ("p", 41, 216, True); yield ("p", 42, EREG[8], True)
                cur = EREG[8]
                for j in range(2, 16):
                    nxt = 216 if cur != 216 else 218; yield ("c", nxt, cur, EREG[8]); cur = nxt
                    yield ("p", 41+j, cur, True)
            def chain_seg12():
                yield ("c", 208, C2, EREG[256]); cur = 208; regs = [210, 212]
                for i in range(4):
                    if i > 0:
                        nxt = regs[i & 1]; yield ("c", nxt, cur, EREG[2]); cur = nxt
                    yield ("p", 16+i, cur, False)
                    yield ("c", 214 + 2*(i & 1), cur, EREG[128]); yield ("p", 20+i, 214 + 2*(i & 1), False)
                yield ("c", 208, C2, EREG[512]); yield ("c", 210, 208, EREG[4])
                c0_, c1_ = 208, 210
                for i in range(4):
                    yield ("p", 24+2*i, c0_, False); yield ("p", 25+2*i, c1_, False)
                    if i < 3:
                        n0 = 212 if c0_ != 212 else 208; n1 = 214 if c1_ != 214 else 210
                        yield ("c", n0, c0_, EREG[128]); yield ("c", n1, c1_, EREG[128]); c0_, c1_ = n0, n1
            def chain_seg3():
                yield ("c", 218, C2, EREG[1024]); cur = 218
                for i in range(9):
                    yield ("p", 32+i, cur, False)
                    if i < 8:
                        nxt = 220 if cur == 218 else 218; yield ("c", nxt, cur, EREG[128]); cur = nxt
            run([chain_seg0(), chain_v()]); run([chain_seg12(), chain_seg3()])
            A(("WAITDS", ("uv", 0)))
            for s_ in range(4): A((f"ds_read_b128 {v(192+4*s_,4)}, v248 offset:{41*ROWP + 64*s_}", ("kb", pas)))
            for tile in range(3):
                for s_ in range(4): A((f"ds_read_b128 {v(208+4*s_,4)}, v248 offset:{tile*16*ROWP + 64*s_}", ("ka", pas, tile)))
                A(("WAITDS", ("ka", pas, tile)))
                for s_ in range(4):
                    c = "0" if (s_ == 0 and pas == 0) else v(KD+4*tile,4)
                    A(f"v_mfma_f32_16x16x32_bf16 {v(KD+4*tile,4)}, {v(208+4*s_,4)}, {v(192+4*s_,4)}, {c}")
        TB = 8192; T1 = TB + 512; T2 = T1 + 256; T3 = T2 + 256
        j_, g_ = 246, 247
        A(f"v_lshrrev_b32 v192, 1, v{g_}"); A("v_lshlrev_b32 v192, 8, v192"); A(f"v_lshl_add_u32 v192, v{j_}, 4, v192")
        A(f"v_and_b32 v193, 1, v{g_}"); A("v_lshl_add_u32 v192, v193, 3, v192"); A("v_add_u32 v192, s26, v192")
        A(f"v_cvt_pk_bf16_f32 v194, v{KD}, v{KD+1}"); A(f"v_cvt_pk_bf16_f32 v195, v{KD+2}, v{KD+3}")
        A((f"ds_write_b64 v192, v[194:195] offset:{TB}", ("tb", 0)))
        A(f"v_lshlrev_b32 v196, 7, v{g_}"); A(f"v_lshl_add_u32 v197, v{j_}, 3, v196"); A(f"v_lshl_add_u32 v196, v{j_}, 2, v196")
        A(f"v_cmp_gt_u32 vcc, 2, v{g_}"); A("v_cndmask_b32 v196, v196, v197, vcc")
        A("v_mov_b32 v198, 64"); A("v_mov_b32 v199, 4"); A("v_cndmask_b32 v197, v198, v199, vcc")
        A("v_add_u32 v196, s26, v196"); A("v_add_u32 v197, v196, v197")
        A(f"v_cvt_pk_bf16_f32 v198, v{KD+4}, v{KD+5}"); A(f"v_cvt_pk_bf16_f32 v199, v{KD+6}, v{KD+7}")
        A((f"ds_write_b32 v196, v198 offset:{T1}", ("tb", 0))); A((f"ds_write_b32 v197, v199 offset:{T1}", ("tb", 0)))
        A(f"v_lshlrev_b32 v200, 7, v{g_}"); A(f"v_lshl_add_u32 v200, v{j_}, 1, v200"); A("v_add_u32 v200, s26, v200")
        A(f"v_min_u32 v201, 2, v{g_}"); A("v_lshlrev_b32 v201, 7, v201"); A(f"v_lshl_add_u32 v201, v{j_}, 1, v201"); A("v_add_u32 v201, s26, v201")
        A(f"v_cmp_eq_u32 vcc, 3, v{g_}"); A("v_add_u32 v202, 0x60, v201"); A("v_cndmask_b32 v202, v200, v202, vcc")
        A(f"v_cvt_pk_bf16_f32 v204, v{KD+8}, v{KD+9}"); A(f"v_cvt_pk_bf16_f32 v205, v{KD+10}, v{KD+11}")
        A((f"ds_write_b16 v202, v204 offset:{T3}", ("tb", 0))); A((f"ds_write_b16_d16_hi v201, v204 offset:{T3+32}", ("tb", 0)))
        A((f"ds_write_b16 v201, v205 offset:{T3+64}", ("tb", 0))); A((f"ds_write_b16_d16_hi v201, v205 offset:{T3+96}", ("tb", 0)))
        A("s_mov_b32 s42, 0x01000100"); A("s_mov_b32 s43, 0x05040100")
        A("v_lshlrev_b32 v206, 2, v0"); A("v_add_u32 v206, s26, v206")
        A("v_lshlrev_b32 v207, 3, v0"); A("v_add_u32 v207, s26, v207")
        A(("WAITDS", ("tb", 0)))
        for sg_, base in ((1, T1), (2, T2), (3, T3)):
            r0 = 208 + 4*(sg_-1)
            for q in range(3): A((f"ds_read_u16 v{r0+q}, v206 offset:{base+2*q}", ("x", 0)))
        A((f"ds_read_b64 v[220:221], v207 offset:{TB}", ("x", 0)))
        A("v_lshlrev_b32 v222, 4, v0"); A("v_add_u32 v222, s26, v222"); A("v_lshlrev_b32 v223, 5, v0"); A("v_add_u32 v223, s26, v223")
        A("v_mov_b32 v234, 0"); A("v_mov_b32 v235, 0"); A("v_min_u32 v236, 7, v0"); A("v_lshlrev_b32 v236, 3, v236"); A("v_add_u32 v236, s26, v236")
        A(("ds_write_b64 v236, v[234:235]", ("c0", 0)))
        A(("WAITDS", ("x", 0)))
        A((f"ds_write_b64 v207, v[220:221] offset:64", ("c0", 0)))
        A("v_perm_b32 v238, v208, v208, s42"); A("v_perm_b32 v239, v210, v209, s43")
        A((f"ds_write_b64 v207, v[238:239] offset:{64+512}", ("c0", 0)))
        A("v_perm_b32 v240, v212, v212, s42"); A("v_perm_b32 v241, v213, v212, s43"); A("v_perm_b32 v242, v213, v213, s42"); A("v_perm_b32 v243, v214, v214, s42")
        A((f"ds_write_b128 v222, v[240:243] offset:{64+1024}", ("c0", 0)))
        A("v_perm_b32 v192, v216, v216, s42"); A("v_mov_b32 v193, v192"); A("v_perm_b32 v194, v217, v216, s43"); A("v_perm_b32 v195, v217, v217, s42")
        A("v_mov_b32 v196, v195"); A("v_mov_b32 v197, v195"); A("v_perm_b32 v198, v218, v218, s42"); A("v_mov_b32 v199, v198")
        A((f"ds_write_b128 v223, v[192:195] offset:{64+2048}", ("c0", 0))); A((f"ds_write_b128 v223, v[196:199] offset:{64+2048+16}", ("c0", 0)))
        A(("WAITDS", ("c0", 0)))
        for i in range(5): A((f"ds_read_b128 {v(200+4*i,4)}, v222 offset:{1024*i}", ("ko", 0)))
        A("v_lshlrev_b32 v236, 4, v0")
        A(("WAITDS", ("ko", 0)))
        for i in range(5):
            if i == 4: A("s_add_u32 s29, s29, 4096")
            off = f" offset:{1024*i}" if 0 < i < 4 else ""
            A((f"buffer_store_dwordx4 {v(200+4*i,4)}, v236, s[16:19], s29 offen{off} {side_flags}".rstrip(), ("st", 0)))
        return [x for x in l if x is not None]
    epi_q = []
    if profile and fine < 0: stamp()
    barrier_for(0)
    if profile and fine < 0: stamp()
    for si in (0, 1):
        for t_, tag in reads_for(si): e(t_, tag=tag)
    nsteps = len(steps)
    gapctr = 0
    budget_n = budget
    now_q = []
    xt_late = []
    dma_credit = [0.0]
    def cost(it):
        t = it[0] if isinstance(it, tuple) else it
        op = t.split()[0]
        if op.startswith(("v_exp", "v_rcp")): return 2
        if op.startswith("buffer_"): return 2
        if op.startswith("ds_write"): return 2
        return 1
    for si in range(nsteps):
        pi, q, sg, ks = steps[si]
        if profile and fine >= 0 and sg == fine and q == 0 and len(stamps) < 11: stamp()
        if sg == 0 and ks == 0:
            j_ = xt_jobs(0); nr_ = sum(1 for x in j_ if isinstance(x, tuple) and x[0].startswith("ds_read")); now_q += j_[:nr_]; xt_late += j_[nr_:]
        if sg == 0 and ks == 3:
            j_ = xt_jobs(1); nr_ = sum(1 for x in j_ if isinstance(x, tuple) and x[0].startswith("ds_read")); now_q += j_[:nr_]; xt_late += j_[nr_:]
        if sg == 0 and ks == xt_at: epi_q += xt_late
        if sg == 0 and ks == 5 and kgen: epi_q += kgen_jobs()
        if sg == 5 and ks == 11: epi_q += gate_jobs()
        if ks == 0 and sg >= 1:
            if profile and fine < 0 and sg in (1, 4, 5, 6): stamp()
            assert not epi_q, f"epilogue not drained at stage {sg}"
            if "noepi" not in abl:
                if sg <= 4:
                    for a_ in range(2):
                        for b in range(2): epi_q += epi_tile((sg-1) & 1, a_, b, sg-1)
                elif sg == 5:
                    epi_q += gate_loads()
                    for b in range(2): epi_q += epi_tile(0, 0, b, 4)
                else:
                    epi_q += epi2(sg-6)
        e.wait(ds=[("rd", si)])
        mf = []
        if sg < 4:
            buf = sg & 1
            for a_ in range(2):
                for b in range(2):
                    c = "0" if ks == 0 else v(ACC(buf,a_,b),16)
                    mf.append(f"v_mfma_f32_32x32x16_bf16 {v(ACC(buf,a_,b),16)}, {v(AF(si%3,a_),4)}, {XF(ks,b)}, {c}")
        elif sg == 4:
            for b in range(2):
                c = "0" if ks == 0 else v(ACC(0,0,b),16)
                mf.append(f"v_mfma_f32_32x32x16_bf16 {v(ACC(0,0,b),16)}, {v(AF(si%3,0),4)}, {XF(ks,b)}, {c}")
        else:
            buf = (sg-5) & 1
            for a_ in range(chunks[sg-5]):
                for b in range(2):
                    c = "0" if ks == 0 else v(ACC2(buf,a_,b),16)
                    mf.append(f"v_mfma_f32_32x32x16_bf16 {v(ACC2(buf,a_,b),16)}, {a(AF2(si%3,a_),4)}, {HF(ks,b)}, {c}")
        ng = len(mf)
        do_bar = si + 2 < nsteps and steps[si+2][1] == 0
        rds = reads_for(si+2) if (si + 2 < nsteps and "nords" not in abl) else []
        nk_stage = 36 if sg <= 4 else 18
        if sg == 5: rem = max(1, 11 - ks) if ks < 11 else max(1, 17 - ks)
        else: rem = max(1, nk_stage - ks - 3)
        want = -(-sum(cost(x) for x in epi_q) // rem) if epi_q else 0
        ev = ev0 if sg == 0 else (ev1 if sg < 4 else (evh if sg == 4 else ev2))
        budget = budget0 if sg == 0 else budget_n
        for gi in range(ng):
            e(mf[gi])
            used = 0
            if gi == ng-1: used += 1
            if gi == 0 and do_bar:
                barrier_for(steps[si+2][0]); used += budget
                gapctr += 1
                if ng > 2: continue
            if now_q and gi >= 1:
                emit_list(now_q); now_q.clear(); used += budget
            left_g = ng - gi
            nrd = min(len(rds), max(rd_per_gap, -(-len(rds) // left_g)))
            if gi == ng-1: nrd = len(rds)
            for it in rds[:nrd]: used += cost(it)
            emit_list(rds[:nrd]); rds = rds[nrd:]
            gapctr += 1
            npend = sum(1 for x in dma_q if is_dma(x))
            evv = ev if npend <= 8 else max(1, ev // 2)
            dma_credit[0] += 1.0 / evv
            if dma_q and dma_credit[0] >= 1.0 and (used + 3 <= budget or dma_credit[0] >= 2.0):
                lst = pop_dma(1); dma_credit[0] -= 1.0
                for it in lst: used += cost(it)
                emit_list(lst)
            if not dma_q: dma_credit[0] = min(dma_credit[0], 1.0)
            while epi_q and want > 0:
                c = cost(epi_q[0])
                must = (gi == ng-1)
                if used + c > budget and not must: break
                used += c; want -= c
                emit_list([epi_q.pop(0)])
        assert not rds
    if profile and fine < 0: stamp()
    assert not dma_q or "nodma" in abl
    emit_list(epi_q)
    if "noepi" not in abl: emit_list(epi2(len(chunks)-1))
    if profile:
        if fine < 0: stamp()
        e("s_waitcnt vmcnt(0)")
        while len(stamps) < 12: stamp()
        e("s_memrealtime s[42:43]"); e("s_waitcnt lgkmcnt(0)")
        if dbg:
            Ls = k.label("nodbg")
            e(f"s_cmp_lg_u32 s2, {dbg-1}"); e(f"s_cbranch_scc1 {Ls}"); e("s_cmp_lg_u32 s20, 0"); e(f"s_cbranch_scc1 {Ls}")
            e("s_load_dwordx2 s[34:35], s[0:1], 104"); e("s_waitcnt lgkmcnt(0)")
            srd(e, 16, 34, 256)
            e("s_mov_b32 s53, 0")
        else:
            e("s_add_u32 s34, s34, 0xC800000"); e("s_addc_u32 s35, s35, 0")
            srd(e, 16, 34, 1<<20)
            e("s_lshl_b32 s53, s2, 2"); e("s_add_u32 s53, s53, s20"); e("s_lshl_b32 s53, s53, 6")
        for i, r in enumerate(stamps[1:]):
            e(f"s_sub_u32 s54, s{r}, s{stamps[0]}")
            e("v_mov_b32 v1, s54"); e(f"v_mov_b32 v2, {4*i}")
            e("buffer_store_dword v1, v2, s[16:19], s53 offen")
        e("s_sub_u32 s54, s42, s99"); e("v_mov_b32 v1, s54"); e("v_mov_b32 v2, 60")
        e("buffer_store_dword v1, v2, s[16:19], s53 offen")
        e("v_mov_b32 v1, s99"); e("v_mov_b32 v2, 56")
        e("buffer_store_dword v1, v2, s[16:19], s53 offen")
        if dbg: e.raw(f"{Ls}:")
    e.raw(f"{Lend}:")
    e.raw("s_endpgm")
    print(f"F1: {e.count} instrs, nops inserted {e.nops_inserted}, stamps {len(stamps)}", file=sys.stderr)
    return k

if __name__ == "__main__":
    abl = [x for x in sys.argv[2:] if x.startswith("no")]
    kw = {}
    for x in sys.argv[2:]:
        if "=" in x:
            a_, b_ = x.split("="); kw[a_] = int(b_) if b_.lstrip("-").isdigit() else b_
    k = gen_f1(profile=("prof" in sys.argv[2:]), abl=abl, **kw)
    open(sys.argv[1], "w").write(build([k]))
```

```python
import sys, math
sys.path.insert(0, "gen")
from asmlib import *
from emit import E
LOG2E = 1.4426950408889634
NS = 8
GST = NS*16384
WS_UT = 0x2800000
WS_G = 0x2B00000
WS_HX = 0x3000000
WS_FL = 0x4400000
WS_USED = 0x4500000
SLOT = 16384
HREG = 5*SLOT
LDS_BYTES = 10*SLOT
US = 24576

ACC = lambda buf, a, b: 128 + buf*64 + (a*2+b)*16
C0A = [160, 176, 192, 208]; C1A = [224, 240, 96, 112]; C2A = 160
def XF(ks, b): return a((ks*2+b)*4, 4) if ks < 32 else v(96 + (ks-32)*8 + b*4, 4)
HF = lambda k_, b: a((k_*2+b)*4, 4)
def PF(k_, b): return a(144 + (k_*2+b)*4, 4) if k_ < 14 else v(128 + ((k_-14)*2+b)*4, 4)
AF = lambda st, a_: 72 + st*8 + a_*4
XR = [[64, 68, 48, 52], [72, 76, 80, 84]]
YR = [[88, 92], [64, 68], [72, 76]]
OUT = lambda i: 40 + 4*i
TMP = 56
SX = 56; SW = 65; TB = 56; TW = 74
VW = 4; VTR = 8; VTRH = 12; VHW = 14; VK0 = 15; VWH = 16; VHWH = 18; VP = 19; VHR = 20
VX = 21; VXR = 25; VXA = 29
VDX = 21; VDY = 23; VDZ = 24; BX = 25; BY = 27; WA = 29; VHA = 31; BZ = 32
VL16 = 33; VPOLL = 34; VRDY = 36; VONE = 37; VZ = 38

def gen_f2(name="f2_kernel", store_flags="", hx_flags="sc1", prefetch_code=True, profile=False, abl=(), init_units=4,
           ev0=2, ev1=4, evh=4, evx=3, evy=4, rot=1, budget=5, rd_per_gap=2, side_flags="", spin_limit=20000, fine=-1):
    k = K(name, (256,1,1), (256,1,1), LDS_BYTES, 256, agpr=256, sgpr=102)
    e = E(k)
    nst = [0]
    def stamp():
        if profile:
            e("s_memtime s[40:41]"); e("s_waitcnt lgkmcnt(0)"); e(f"v_writelane_b32 v2, s40, {nst[0]}"); nst[0] += 1
    Lend = k.label("end")
    e("s_cmp_ge_u32 s2, 256"); e(f"s_cbranch_scc1 {Lend}")
    if profile:
        e("s_memrealtime s[42:43]"); e("s_waitcnt lgkmcnt(0)"); e("s_mov_b32 s99, s42"); e("v_mov_b32 v2, 0")
    stamp()
    e("s_load_dwordx2 s[32:33], s[0:1], 0")
    e("s_load_dwordx4 s[36:39], s[0:1], 64")
    e("s_load_dwordx2 s[44:45], s[0:1], 80")
    e("s_load_dwordx2 s[34:35], s[0:1], 112")
    e("s_load_dwordx2 s[100:101], s[0:1], 88")
    e("s_load_dwordx2 s[92:93], s[0:1], 104")
    if prefetch_code:
        Lpf = k.label("pf")
        e("s_getpc_b64 s[40:41]")
        e.raw(f"{Lpf}:")
        e("v_min_u32 v1, 15, v0"); e("s_lshr_b32 s43, s2, 3"); e("s_lshl_b32 s43, s43, 4"); e("v_add_u32 v1, s43, v1")
        e("v_lshlrev_b32 v1, 7, v1"); e(f"v_min_u32 v1, ({Lend} - {Lpf}), v1")
        e("global_load_dword v63, v1, s[40:41]", tag="pf0")
    e("v_lshrrev_b32 v1, 6, v0"); e("v_and_b32 v0, 63, v0")
    e("v_readfirstlane_b32 s20, v1")
    e("s_and_b32 s42, s2, 7"); e("s_lshr_b32 s43, s2, 3")
    e("s_and_b32 s46, s42, 1"); e("s_lshl_b32 s46, s46, 3"); e("s_and_b32 s47, s43, 7"); e("s_add_u32 s46, s46, s47")
    e("s_lshr_b32 s48, s42, 1"); e("s_lshl_b32 s48, s48, 2"); e("s_lshr_b32 s49, s43, 3"); e("s_add_u32 s48, s48, s49")
    e("s_lshr_b32 s21, s20, 1"); e("s_and_b32 s22, s20, 1")
    e("s_mul_i32 s50, s48, 576"); e("s_and_b32 s51, s48, 1")
    e("s_lshl_b32 s52, s51, 6"); e("s_add_u32 s52, s52, s50")
    e("s_xor_b32 s53, s51, 1"); e("s_lshl_b32 s53, s53, 9"); e("s_add_u32 s53, s53, s50")
    e("s_lshl_b32 s24, s46, 2"); e("s_add_u32 s24, s24, s20"); e(f"s_mul_i32 s24, s24, {32*1152}")
    e(f"s_mul_i32 s23, s20, {16*9216}")
    e(f"s_mov_b32 s{SX}, s24"); e(f"s_mov_b32 s{SW}, s23")
    e("s_lshl_b32 s54, s49, 1"); e("s_add_u32 s54, s54, s47"); e("s_bfe_u32 s55, s42, 0x10001"); e("s_add_u32 s54, s54, s55"); e("s_and_b32 s54, s54, 7")
    if not rot: e("s_mov_b32 s54, 0")
    for l in range(1, 9):
        e("s_add_u32 s55, s54, 1")
        e(f"s_lshl_b32 s29, s55, 7"); e(f"s_add_u32 s{SX+l}, s24, s29")
        e(f"s_mul_i32 s29, s55, {64*9216}"); e(f"s_add_u32 s{SW+l}, s23, s29")
        if l < 8: e("s_add_u32 s54, s54, 1"); e("s_and_b32 s54, s54, 7")
    e("s_lshl_b32 s30, s20, 12"); e("s_lshl_b32 s31, s20, 11")
    c0 = -2.0*math.sqrt(2.0/math.pi)*LOG2E; c1 = c0*0.044715
    e(f"s_mov_b32 s27, {fimm(c1)}"); e(f"v_mov_b32 v{VK0}, {fimm(c0)}")
    e("v_lshrrev_b32 v1, 3, v0"); e("v_and_b32 v62, 7, v0"); e("v_bfe_u32 v3, v0, 4, 1")
    e("s_movk_i32 s55, 9216"); e("v_mul_lo_u32 v1, v1, s55")
    for q in range(4):
        m = q >> 1
        e(f"v_or_b32 v{VW+q}, {m<<1}, v3"); e(f"v_lshlrev_b32 v{VW+q}, 1, v{VW+q}"); e(f"v_xor_b32 v{VW+q}, v{VW+q}, v62")
        e(f"v_lshl_add_u32 v{VW+q}, v{VW+q}, 4, v1")
        add = (8*9216 if q & 1 else 0) - 1024*q + (2048 if m else 0)
        if add: e(f"v_add_u32 v{VW+q}, {add}, v{VW+q}")
    e("v_lshrrev_b32 v1, 3, v0"); e("s_movk_i32 s55, 1152"); e("v_mul_lo_u32 v1, v1, s55"); e("v_lshrrev_b32 v3, 4, v0")
    for i in range(4):
        e(f"v_add_u32 v{VX+i}, {4*i}, v3"); e(f"v_and_b32 v{VX+i}, 7, v{VX+i}"); e(f"v_xor_b32 v{VX+i}, v{VX+i}, v62")
        e(f"v_lshl_add_u32 v{VX+i}, v{VX+i}, 4, v1")
        add = 8*i*1152 - 1024*i
        if add: e(f"v_add_u32 v{VX+i}, {add}, v{VX+i}")
    stamp()
    e("s_waitcnt lgkmcnt(0)")
    srd(e, 4, 32, 2048*1152)
    e("s_sub_u32 s38, s38, 2048"); e("s_subb_u32 s39, s39, 0")
    e("s_add_u32 s8, s36, s52"); e("s_addc_u32 s9, s37, 0"); e("s_and_b32 s9, s9, 0xffff")
    e(f"s_mov_b32 s10, {576*9216}"); e("s_mov_b32 s11, 0x00020000")
    e("s_add_u32 s12, s38, s52"); e("s_addc_u32 s13, s39, 0"); e("s_and_b32 s13, s13, 0xffff")
    e(f"s_mov_b32 s14, {576*9216 + 2048}"); e("s_mov_b32 s15, 0x00020000")
    units = []
    for c in range(9): units.append(("X", 0, c)); units.append(("W", 0, c))
    for s_ in range(1, 4):
        for c in range(9): units.append(("W", s_, c))
    for c in range(5): units.append(("HF", 4, c))
    for c in range(6): units.append(("DX", 5, c))
    for c in range(3): units.append(("DY", 6, c))
    for c in range(3): units.append(("DY", 7, c))
    for c in range(3): units.append(("DZ", 8, c))
    phases = []; n = 0
    for c in range(9): phases.append(([n, n+1], 0, 4*c, 4)); n += 2
    for s_ in range(1, 4):
        for c in range(9): phases.append(([n], s_, 4*c, 4)); n += 1
    for c in range(5): phases.append(([n], 4, 8*c, 8 if c < 4 else 4)); n += 1
    for c in range(6): phases.append(([n], 5, 3*c, 3)); n += 1
    for st_ in (6, 7):
        for c in range(3): phases.append(([n], st_, 6*c, 6)); n += 1
    for c in range(3): phases.append(([n], 8, 12*c, 12)); n += 1
    unit_phase = {u: pi for pi, ph in enumerate(phases) for u in ph[0]}
    steps = []
    for pi, (us, sg, k0, nks) in enumerate(phases):
        for q in range(nks): steps.append((pi, q, sg, k0+q))
    nsteps = len(steps)
    dist = lambda si: 1 if steps[si][2] == 5 else 2
    bar_step = {}; last_issue = {}
    for si in range(nsteps):
        pi = steps[si][0]
        if steps[si][1] == 0: bar_step[pi] = si - dist(si)
        last_issue[pi] = max(last_issue.get(pi, -99), si - dist(si))
    def freed_by(issue_step):
        c = [q for q in bar_step if bar_step[q] > issue_step]
        return min(c) if c else 10**6
    last_h_read = max(si - dist(si) for si in range(nsteps) if steps[si][2] == 5)
    free_after = {i*SLOT: -1 for i in range(5)}
    slot_of = {}; issue_after = {}; last = -1; g2_ready = False
    for u in range(len(units)):
        if units[u][0] == "DX" and not g2_ready:
            g2_ready = True; old_fa = dict(free_after); free_after = {}
            for i in range(3):
                lo, hi = i*US, (i+1)*US
                free_after[lo] = max(fa for s_, fa in old_fa.items() if s_ < hi and s_ + SLOT > lo)
            for i in range(3): free_after[HREG + i*US] = freed_by(last_h_read)
        sl = min(free_after, key=lambda s_: (max(free_after[s_], last), s_))
        ia = max(free_after[sl], last)
        slot_of[u] = sl; issue_after[u] = ia; last = ia
        assert ia < unit_phase[u] or ia == -1, (u, ia, unit_phase[u])
        free_after[sl] = freed_by(last_issue[unit_phase[u]])
    def setbase(delta_reg, colimm=0, creg=None):
        o = []
        if delta_reg is None:
            o.append(f"s_add_u32 s4, s44, {colimm}"); o.append("s_addc_u32 s5, s45, 0")
        else:
            o.append(f"s_ashr_i32 s54, s{delta_reg}, 31"); o.append(f"s_add_u32 s4, s44, s{delta_reg}"); o.append("s_addc_u32 s5, s45, s54")
            if colimm: o.append(f"s_add_u32 s4, s4, {colimm}"); o.append("s_addc_u32 s5, s5, 0")
        if creg is not None:
            o.append(f"s_ashr_i32 s54, s{creg}, 31"); o.append(f"s_add_u32 s4, s4, s{creg}"); o.append("s_addc_u32 s5, s5, s54")
        o.append("s_and_b32 s5, s5, 0xffff")
        return o
    def dma_unit(n):
        kind, g, c = units[n]; slot = slot_of[n]; out = []
        if kind == "X":
            out.append(f"s_add_u32 m0, s30, {slot}")
            for i in range(4):
                off = f" offset:{1024*i}" if i else ""
                out.append((f"buffer_load_dwordx4 v{VX+i}, s[4:7], s{SX+c} offen{off} lds", ("dma", n)))
        elif kind == "W":
            if c == 0 and g > 0:
                out += ["s_add_u32 s8, s8, 128", "s_addc_u32 s9, s9, 0", "s_add_u32 s12, s12, 128", "s_addc_u32 s13, s13, 0"]
            out.append(f"s_add_u32 m0, s30, {slot}")
            for q in range(4):
                srd_ = "s[8:11]" if q < 2 else "s[12:15]"
                off = f" offset:{1024*q}" if q else ""
                out.append((f"buffer_load_dwordx4 v{VW+q}, {srd_}, s{SW+c} offen{off} lds", ("dma", n)))
        elif kind == "HF":
            if c == 0:
                out += ["s_add_u32 s8, s36, s53", "s_addc_u32 s9, s37, 0", "s_and_b32 s9, s9, 0xffff",
                        "s_add_u32 s12, s38, s53", "s_addc_u32 s13, s39, 0", "s_and_b32 s13, s13, 0xffff"]
            for ee in range(2 if c < 4 else 1):
                out.append(f"s_add_u32 m0, s31, {slot + ee*8192}")
                out.append((f"buffer_load_dwordx4 v{VWH}, s[8:11], s{SW+2*c+ee} offen lds", ("dma", n)))
                out.append((f"buffer_load_dwordx4 v{VWH+1}, s[12:15], s{SW+2*c+ee} offen offset:1024 lds", ("dma", n)))
        elif kind == "DX":
            if c == 0:
                out += setbase(None); out.append(f"s_mov_b32 s6, {8 << 20}")
            for q in range(3):
                kap = 3*c + q
                out.append(f"s_add_u32 m0, s31, {slot + q*8192}")
                out.append((f"buffer_load_dwordx4 v{VDX}, s[4:7], s{TW+kap} offen lds", ("dma", n)))
                out.append((f"buffer_load_dwordx4 v{VDX+1}, s[4:7], s{TW+kap} offen offset:1024 lds", ("dma", n)))
        elif kind == "DY":
            col = 0 if g == 6 else 256
            for q in range(6):
                kap = 6*c + q
                if kap == 0: out += setbase(47, col)
                if kap == 16: out += setbase(49, col)
                out.append(f"s_add_u32 m0, s51, {slot + q*4096}")
                out.append((f"buffer_load_dwordx4 v{VDY}, s[4:7], s{TW+kap} offen lds", ("dma", n)))
        else:
            if c == 0: out += setbase(None, 0, 50)
            for tt_ in range(3):
                t = 3*c + tt_
                out += [f"s_add_u32 s52, s20, {4*t}", "s_sub_u32 s53, s52, 18", "s_cmp_ge_u32 s52, 18", "s_cselect_b32 s52, s53, s52", "s_cselect_b32 s53, 1, 0",
                        "s_cmp_ge_u32 s52, 16", "s_cselect_b32 s54, s49, s47", "s_mul_i32 s53, s53, s54",
                        "s_mov_b32 m0, s52", "s_nop 0", f"s_movrels_b32 s52, s{TW}", "s_add_u32 s52, s52, s53",
                        f"s_add_u32 m0, s51, {slot + tt_*4096}"]
                out.append((f"buffer_load_dwordx4 v{VDZ}, s[4:7], s52 offen lds", ("dma", n)))
        return out
    def emit_list(lst):
        for it in lst:
            if isinstance(it, tuple) and it[0] == "WAITDS": e.wait(ds=[it[1]])
            elif isinstance(it, tuple) and it[0] == "WAITVM": e.wait(vm=[it[1]])
            elif isinstance(it, tuple) and it[0] == "CALL": it[1]()
            elif isinstance(it, tuple): e(it[0], tag=it[1])
            else: e(it)
    st_ = {"next": 0}
    dma_q = []
    def release(bar):
        while st_["next"] < len(units) and issue_after[st_["next"]] <= bar:
            if "nodma" in abl and st_["next"] >= init_units: pass
            else: dma_q.extend(dma_unit(st_["next"]))
            st_["next"] += 1
    def is_dma(it): return isinstance(it, tuple) and it[1] is not None and isinstance(it[1], tuple) and it[1][0] == "dma"
    def pop_dma(n):
        out = []
        while dma_q and n > 0:
            it = dma_q.pop(0); out.append(it)
            if is_dma(it): n -= 1
        return out
    release(-1)
    u0 = pop_dma(4); u1 = pop_dma(4)
    La = k.label("ord"); Lb = k.label("ordd")
    e("s_add_u32 s55, s47, s49"); e("s_and_b32 s55, s55, 1"); e("s_cmp_eq_u32 s55, 0"); e(f"s_cbranch_scc1 {La}")
    vm_save = list(e.vm)
    emit_list(u1); emit_list(u0); e(f"s_branch {Lb}")
    e.raw(f"{La}:"); e.vm = list(vm_save)
    emit_list(u0); emit_list(u1)
    e.raw(f"{Lb}:"); e.m0_w = -100
    stamp()
    srd(e, 16, 34, WS_USED)
    e(f"s_lshl_b32 s95, s2, 7"); e(f"s_add_u32 s95, s95, {WS_FL}")
    e("s_xor_b32 s96, s2, 64"); e("s_lshl_b32 s96, s96, 7"); e(f"s_add_u32 s96, s96, {WS_FL}")
    e(f"v_mov_b32 v{VZ}, 0"); e(f"v_mov_b32 v{VZ+1}, 0"); e(f"v_mov_b32 v{VONE}, 1")
    e(f"buffer_store_dwordx2 v[{VZ}:{VZ+1}], v{VZ}, s[16:19], s95 offen sc1", tag="zi")
    e("s_mul_i32 s24, s48, 288"); e("s_lshl_b32 s55, s20, 2"); e("s_add_u32 s24, s24, s55"); e("s_mul_i32 s24, s24, 1152")
    e("s_lshl_b32 s29, s51, 1")
    e("s_lshl_b32 s97, s47, 1")
    if not rot: e("s_mov_b32 s97, 0")
    e("s_lshl_b32 s94, s51, 1")
    for kap in range(18):
        if kap < 16: e(f"s_add_u32 s54, s97, {kap}"); e("s_and_b32 s54, s54, 15"); e("s_add_u32 s54, s54, s29")
        else: e("s_xor_b32 s54, s51, 1"); e("s_lshl_b32 s54, s54, 4"); (e(f"s_add_u32 s54, s54, {kap-16}") if kap > 16 else None)
        e(f"s_mul_i32 s55, s54, {16*1152}"); e(f"s_add_u32 s{TW+kap}, s24, s55")
    e("s_mul_i32 s55, s51, 640"); e("s_add_u32 s44, s44, s55"); e("s_addc_u32 s45, s45, 0")
    e("s_mul_i32 s55, s51, -576"); e("s_add_u32 s50, s55, 512"); e("s_mul_i32 s55, s20, 4608"); e("s_sub_u32 s50, s50, s55")
    e("s_mul_i32 s25, s51, 80"); e("s_lshl_b32 s55, s22, 4"); e("s_add_u32 s25, s25, s55"); e(f"s_mul_i32 s25, s25, {GST}")
    e("s_lshr_b32 s55, s48, 1"); e("s_lshl_b32 s55, s55, 14"); e("s_add_u32 s25, s25, s55")
    e("s_lshl_b32 s54, s46, 1"); e("s_add_u32 s54, s54, s21"); e("s_lshl_b32 s54, s54, 9"); e("s_add_u32 s25, s25, s54")
    e("s_lshl_b32 s28, s51, 3"); e("s_add_u32 s28, s28, 64"); e(f"s_mul_i32 s28, s28, {GST}"); e("s_add_u32 s28, s28, s55"); e("s_add_u32 s28, s28, s54")
    e("s_lshl_b32 s55, s22, 8"); e("s_add_u32 s28, s28, s55")
    e("s_lshl_b32 s54, s46, 4"); e("s_add_u32 s54, s54, s48"); e("s_mul_i32 s54, s54, 18")
    e("s_add_u32 s55, s54, s29"); e("s_lshl_b32 s98, s22, 1"); e("s_add_u32 s55, s55, s98"); e("s_lshl_b32 s55, s55, 12")
    e("s_lshl_b32 s98, s21, 11"); e("s_add_u32 s55, s55, s98"); e(f"s_add_u32 s98, s55, {WS_HX}")
    e("s_xor_b32 s55, s51, 1"); e("s_lshl_b32 s55, s55, 4"); e("s_add_u32 s55, s55, s54"); e("s_add_u32 s55, s55, s22"); e("s_lshl_b32 s55, s55, 12")
    e("s_lshl_b32 s3, s21, 11"); e("s_add_u32 s55, s55, s3"); e(f"s_add_u32 s3, s55, {WS_HX}")
    e("s_xor_b32 s55, s48, 1"); e("s_lshl_b32 s54, s46, 4"); e("s_add_u32 s54, s54, s55"); e("s_mul_i32 s54, s54, 18"); e("s_lshl_b32 s54, s54, 12")
    e("s_lshl_b32 s55, s21, 11"); e("s_add_u32 s54, s54, s55"); e(f"s_add_u32 s54, s54, {WS_HX}")
    e("s_lshl_b32 s55, s51, 1"); e("s_sub_u32 s55, 1, s55")
    e("s_mul_i32 s23, s55, 8192"); e("s_add_u32 s23, s23, s54")
    e("s_mul_i32 s24, s55, -65536"); e("s_add_u32 s24, s24, s54")
    e(f"s_mul_i32 s47, s55, {320*1152}"); e(f"s_mul_i32 s49, s55, {32*1152}")
    e("v_lshrrev_b32 v1, 4, v0"); e("v_bfe_u32 v61, v0, 2, 2"); e("v_and_b32 v3, 3, v0")
    T0, T1, T2, T3 = 56, 57, 58, 59
    e(f"v_lshrrev_b32 v{T0}, 1, v3"); e(f"v_lshrrev_b32 v{T1}, 1, v1"); e(f"v_lshl_add_u32 v{T1}, v{T1}, 3, v61")
    e(f"v_lshrrev_b32 v{T2}, 1, v61"); e(f"v_lshl_or_b32 v60, v{T0}, 1, v{T2}")
    e(f"v_and_b32 v{T3}, 1, v1"); e(f"v_lshlrev_b32 v63, 4, v{T3}"); e("v_and_b32 v62, 1, v3"); e("v_lshl_add_u32 v63, v62, 3, v63")
    e(f"v_lshlrev_b32 v62, 11, v{T0}"); e(f"v_lshl_add_u32 v62, v{T1}, 7, v62"); e("v_add_u32 v62, v62, v63")
    for a_ in range(2):
        e("s_lshl_b32 s55, s22, 1")
        if a_: e("s_add_u32 s55, s55, 1")
        e(f"v_xor_b32 v{VTR+2*a_+1}, s55, v60"); e(f"v_lshl_add_u32 v{VTR+2*a_}, v{VTR+2*a_+1}, 5, v62")
        e(f"v_add_u32 v{VTR+2*a_+1}, 0x10000, v{VTR+2*a_}")
    e(f"v_lshlrev_b32 v62, 10, v{T0}"); e(f"v_lshl_add_u32 v62, v{T1}, 6, v62"); e("v_add_u32 v62, v62, v63")
    e(f"v_xor_b32 v60, s22, v{T0}"); e(f"v_lshl_add_u32 v{VTRH}, v60, 5, v62"); e(f"v_add_u32 v{VTRH+1}, 0x10000, v{VTRH}")
    e("v_lshrrev_b32 v1, 2, v0"); e("s_movk_i32 s55, 9216"); e("v_mul_lo_u32 v1, v1, s55"); e("v_and_b32 v62, 3, v0")
    e(f"v_lshl_add_u32 v{VWH}, v62, 4, v1"); e("v_xor_b32 v62, 2, v62")
    e(f"v_lshl_add_u32 v{VWH+1}, v62, 4, v1"); e(f"v_add_u32 v{VWH+1}, 1024, v{VWH+1}")
    e("v_and_b32 v1, 31, v0"); e("s_lshl_b32 s55, s21, 6"); e("v_add_u32 v1, s55, v1"); e("v_lshlrev_b32 v1, 7, v1")
    e("v_lshrrev_b32 v62, 5, v0"); e("v_bfe_u32 v3, v0, 1, 3"); e("v_xor_b32 v3, v62, v3")
    e(f"v_lshl_add_u32 v{VXR}, v3, 4, v1")
    for ks in range(1, 4): e(f"v_xor_b32 v{VXR+ks}, {ks*32}, v{VXR}")
    e("v_and_b32 v1, 31, v0"); e("v_lshlrev_b32 v1, 3, v1"); e(f"v_lshlrev_b32 v{VP}, 17, v62"); e(f"v_add_u32 v{VP}, v{VP}, v1")
    assert GST == 1 << 17
    e(f"v_lshlrev_b32 v{VL16}, 4, v0"); e("s_lshl_b32 s55, s21, 11"); e(f"s_add_u32 s55, s55, {HREG}"); e(f"v_add_u32 v{VHR}, s55, v{VL16}")
    e("s_add_u32 s55, s51, s22"); e("s_lshl_b32 s55, s55, 13"); e(f"v_add_u32 v{VHW}, s55, v{VHR}")
    e("s_xor_b32 s55, s51, 1"); e("s_lshl_b32 s55, s55, 4"); e("s_add_u32 s55, s55, s22"); e("s_lshl_b32 s55, s55, 12"); e(f"v_add_u32 v{VHWH}, s55, v{VHR}")
    e("s_lshl_b32 s51, s20, 10")
    XTA = 192
    e("v_lshrrev_b32 v156, 4, v0"); e("v_bfe_u32 v157, v0, 2, 2"); e("v_and_b32 v158, 3, v0")
    for t in range(2):
        e("v_lshl_add_u32 v159, v156, 3, v157")
        if t: e("v_add_u32 v159, 4, v159")
        e("v_bfe_u32 v160, v159, 1, 3"); e("v_lshrrev_b32 v161, 1, v158"); e("v_xor_b32 v160, v160, v161")
        e("v_lshlrev_b32 v159, 7, v159"); e("v_lshl_add_u32 v159, v160, 4, v159")
        e("v_and_b32 v161, 1, v158"); e("v_lshl_add_u32 v159, v161, 3, v159")
        e(f"v_add_u32 v{XTA+4*t}, s30, v159")
        for cb in range(1, 4): e(f"v_xor_b32 v{XTA+4*t+cb}, {32*cb}, v{XTA+4*t}")
    e("s_and_b32 s26, s48, 3"); e("s_lshl_b32 s26, s26, 5")
    for t in range(2): e(f"v_xor_b32 v{XTA+9+t}, s26, v{XTA+4*t}")
    e("v_and_b32 v159, 15, v0"); e("v_lshlrev_b32 v159, 12, v159"); e(f"v_lshl_add_u32 v{XTA+8}, v156, 4, v159")
    def xt_jobs(lam):
        l = []; sl = slot_of[2*lam]
        if lam == 1:
            for cb in range(4):
                for t in range(2): l.append((f"ds_read_b64_tr_b16 {v(XTA+12+4*cb+2*t,2)}, v{XTA+4*t+cb} offset:{sl}", ("xtr", lam)))
            l.append(f"s_sub_u32 s26, s{SX+1}, s{SX}"); l.append("s_lshl_b32 s26, s26, 11")
        else:
            for t in range(2): l.append((f"ds_read_b64_tr_b16 {v(XTA+28+2*t,2)}, v{XTA+9+t} offset:{sl}", ("xtr", lam)))
            l.append("s_and_b32 s26, s48, 3"); l.append("s_lshl_b32 s26, s26, 16")
        l += ["s_lshl_b32 s55, s46, 8", "s_add_u32 s26, s26, s55", "s_lshl_b32 s55, s20, 6", "s_add_u32 s26, s26, s55", f"s_add_u32 s26, s26, {WS_UT}"]
        l.append(("WAITDS", ("xtr", lam)))
        if lam == 1:
            for cb in range(4):
                l.append((f"buffer_store_dwordx4 {v(XTA+12+4*cb,4)}, v{XTA+8}, s[16:19], s26 offen {side_flags}".rstrip(), ("st", 0)))
                if cb < 3: l.append(f"s_add_u32 s26, s26, {16*4096}")
        else:
            l.append((f"buffer_store_dwordx4 {v(XTA+28,4)}, v{XTA+8}, s[16:19], s26 offen {side_flags}".rstrip(), ("st", 0)))
        return l
    def setup2():
        l = []
        A = l.append
        A(f"v_lshrrev_b32 v{TMP}, 5, v0"); A(f"v_and_b32 v{TMP+1}, 31, v0")
        for i in range(2):
            A(f"v_add_u32 v{TMP+2}, {2*i}, v{TMP}"); A(f"v_lshlrev_b32 v{TMP+3}, 2, v{TMP+2}"); A(f"v_xor_b32 v{TMP+3}, v{TMP+3}, v{TMP+1}")
            A(f"v_mul_u32_u24 v{TMP+2}, 1152, v{TMP+2}"); A(f"v_lshl_add_u32 v{VDX+i}, v{TMP+3}, 4, v{TMP+2}")
            if i: A(f"v_subrev_u32 v{VDX+i}, 1024, v{VDX+i}")
        A(f"v_lshrrev_b32 v{TMP}, 4, v0"); A(f"v_and_b32 v{TMP+1}, 15, v0"); A(f"v_lshlrev_b32 v{TMP+2}, 2, v{TMP}"); A(f"v_xor_b32 v{TMP+2}, v{TMP+2}, v{TMP+1}")
        A(f"v_mul_u32_u24 v{TMP+3}, 1152, v{TMP}"); A(f"v_lshl_add_u32 v{VDY}, v{TMP+2}, 4, v{TMP+3}")
        A(f"v_lshrrev_b32 v{TMP}, 2, v0"); A(f"v_and_b32 v{TMP+1}, 3, v0"); A(f"v_mul_u32_u24 v{TMP}, 1152, v{TMP}"); A(f"v_lshl_add_u32 v{VDZ}, v{TMP+1}, 4, v{TMP}")
        A(f"v_lshrrev_b32 v{TMP}, 4, v0"); A(f"v_bfe_u32 v{TMP+1}, v0, 2, 2"); A(f"v_and_b32 v{TMP+2}, 3, v0")
        A(f"v_lshrrev_b32 v{TMP+3}, 1, v{TMP}"); A(f"v_lshl_add_u32 v{TMP+3}, v{TMP+3}, 2, v{TMP+1}")
        A(f"v_and_b32 v{TMP+4}, 1, v{TMP}"); A(f"v_lshlrev_b32 v{TMP+4}, 5, v{TMP+4}"); A(f"v_lshl_add_u32 v{TMP+4}, v{TMP+2}, 3, v{TMP+4}")
        for a_ in range(2):
            A("s_lshl_b32 s55, s22, 1")
            if a_: A("s_add_u32 s55, s55, 1")
            A(f"v_xor_b32 v{TMP+5}, s55, v{TMP+1}"); A(f"v_lshl_add_u32 v{TMP+5}, v{TMP+5}, 6, v{TMP+4}")
            A(f"v_lshl_add_u32 v{BX+a_}, v{TMP+3}, 9, v{TMP+5}"); A(f"v_lshl_add_u32 v{BY+a_}, v{TMP+3}, 8, v{TMP+5}")
        A(f"v_lshl_add_u32 v{BZ}, v{TMP+3}, 6, v{TMP+4}")
        return l
    def tb_jobs():
        l = []
        for kap in range(18):
            if kap < 16: l += [f"s_add_u32 s55, s97, {kap}", "s_and_b32 s55, s55, 15", "s_add_u32 s55, s55, s94", f"s_lshl_b32 s{TB+kap}, s55, 12"]
            else: l += ["s_lshl_b32 s55, s94, 3", f"s_sub_u32 s55, {16 + kap - 16}, s55", f"s_lshl_b32 s{TB+kap}, s55, 12"]
        return l
    def gate_loads():
        l = []
        l += ["s_lshl_b32 s55, s46, 4", "s_add_u32 s55, s55, s48", "s_lshl_b32 s55, s55, 2", "s_add_u32 s55, s55, s20", "s_lshl_b32 s26, s55, 1"]
        l += ["s_lshl_b32 s3, s26, 3", f"s_add_u32 s3, s3, {WS_G}", "s_mul_i32 s36, s26, 1152"]
        l += ["s_mov_b32 s8, s32", "s_and_b32 s9, s33, 0xffff", f"s_mov_b32 s10, {2048*1152}", "s_mov_b32 s12, s100", "s_and_b32 s13, s101, 0xffff", "s_mov_b32 s14, 1152"]
        l.append("v_lshlrev_b32 v1, 2, v0")
        for i in range(5): l.append((f"buffer_load_dword v{80+i}, v1, s[12:15], 0 offen offset:{256*i}", "gl"))
        for i in range(5): l.append((f"buffer_load_dword v{48+i}, v1, s[8:11], s36 offen offset:{256*i}", "gl0"))
        return l
    def gate_tok(t):
        l = [("WAITVM", "gl0" if t == 0 else "gl1")]
        acc = 86 + t
        for i in range(5):
            x = 48+i; w_ = 80+i
            l += [f"v_lshlrev_b32 v53, 16, v{x}", f"v_and_b32 v{x}, 0xffff0000, v{x}", f"v_lshlrev_b32 v54, 16, v{w_}", f"v_and_b32 v55, 0xffff0000, v{w_}",
                  "v_mul_f32 v53, v53, v54", f"v_mul_f32 v{x}, v{x}, v55", f"v_cvt_pk_bf16_f32 v53, v53, v{x}",
                  f"v_lshlrev_b32 v54, 16, v53", "v_and_b32 v53, 0xffff0000, v53"]
            if i == 0: l.append(f"v_add_f32 v{acc}, v54, v53")
            else: l += [f"v_add_f32 v{acc}, v{acc}, v54", f"v_add_f32 v{acc}, v{acc}, v53"]
        if t == 0:
            for i in range(5): l.append((f"buffer_load_dword v{48+i}, v1, s[8:11], s36 offen offset:{1152 + 256*i}", "gl1"))
        return l
    def gate_fin():
        l = []
        for sh in (1, 2, 4, 8):
            for t in range(2): l.append(f"v_add_f32_dpp v{86+t}, v{86+t}, v{86+t} row_shr:{sh} row_mask:0xf bank_mask:0xf bound_ctrl:0")
        for t in range(2): l.append(f"v_add_f32_dpp v{86+t}, v{86+t}, v{86+t} row_bcast:15 row_mask:0xa bank_mask:0xf")
        for t in range(2): l.append(f"v_add_f32_dpp v{86+t}, v{86+t}, v{86+t} row_bcast:31 row_mask:0xc bank_mask:0xf")
        for t in range(2):
            r = 86+t; o = 48+2*t
            l += [f"v_readlane_b32 s55, v{r}, 63", f"v_mov_b32 v{r}, s55", f"v_cvt_pk_bf16_f32 v{r}, v{r}, v{r}", f"v_lshlrev_b32 v{r}, 16, v{r}",
                  f"v_mul_f32 v{r}, {fimm(-LOG2E)}, v{r}", f"v_exp_f32 v{r}, v{r}", f"v_add_f32 v{r}, 1.0, v{r}", f"v_rcp_f32 v{r}, v{r}",
                  f"v_cvt_pk_bf16_f32 v{o}, v{r}, v{r}", f"v_lshlrev_b32 v{o}, 16, v{o}",
                  f"v_sub_f32 v{o+1}, 1.0, v{o}", f"v_cvt_pk_bf16_f32 v{o+1}, v{o+1}, v{o+1}", f"v_lshlrev_b32 v{o+1}, 16, v{o+1}"]
        l.append("v_mov_b32 v53, s3")
        l.append((f"buffer_store_dwordx4 v[48:51], v53, s[16:19], 0 offen {side_flags}".rstrip(), ("st", 0)))
        return l
    def dbg_srd():
        return ["s_mov_b32 s40, s92", "s_and_b32 s41, s93, 0xffff", "s_mov_b32 s42, 256", "s_mov_b32 s43, 0x00020000"]
    def ready_store(p):
        def f():
            Ls = k.label("rs")
            e("s_lshr_b32 s55, s2, 3"); e("s_mul_hi_u32 s26, s55, 0x1C71C71D"); e("s_mul_i32 s26, s26, 9"); e("s_sub_u32 s55, s55, s26")
            e(f"s_cmp_lg_u32 s55, {p}"); e(f"s_cbranch_scc1 {Ls}")
            e("s_cmp_lg_u32 s20, 0"); e(f"s_cbranch_scc1 {Ls}")
            for t_ in dbg_srd(): e.raw(t_)
            e.raw("v_mov_b32 v1, s2")
            e.raw(f"buffer_store_byte v{VONE}, v1, s[40:43], 0 offen sc1")
            e.raw(f"{Ls}:")
        return [("CALL", f)]
    def ready_load():
        return dbg_srd() + ["s_xor_b32 s55, s2, 64", "v_mov_b32 v1, s55", (f"buffer_load_ubyte v{VRDY}, v1, s[40:43], 0 offen sc1", "rdy")]
    def spin(load_text, reg):
        Lok = k.label("ok"); Ll = k.label("spin")
        e(f"v_readfirstlane_b32 s55, v{reg}")
        e("s_cmp_eq_u32 s55, 1"); e(f"s_cbranch_scc1 {Lok}")
        e.raw("s_mov_b32 s26, 0")
        e.raw(f"{Ll}:")
        e.raw("s_sleep 8")
        for t_ in load_text: e.raw(t_)
        e.raw("s_waitcnt vmcnt(0)")
        e.raw(f"v_readfirstlane_b32 s55, v{reg}")
        e.raw("s_nop 3")
        e.raw("s_cmp_eq_u32 s55, 1"); e.raw(f"s_cbranch_scc1 {Lok}")
        e.raw("s_add_u32 s26, s26, 1"); e.raw(f"s_cmp_lt_u32 s26, {spin_limit}"); e.raw(f"s_cbranch_scc1 {Ll}")
        e.raw(f"{Lok}:")
        e.valu_sw = {}; e.valu_w = {}
    def flag_release(which):
        def chk():
            e.wait(vm=["rdy"])
            spin(dbg_srd() + ["s_xor_b32 s55, s2, 64", "v_mov_b32 v1, s55", f"buffer_load_ubyte v{VRDY}, v1, s[40:43], 0 offen sc1"], VRDY)
        l = []
        if which == 0: l.append(("CALL", chk))
        l.append((f"buffer_store_dword v{VONE}, v{VZ}, s[16:19], s96 offen offset:{4*which} sc1", ("st", 0)))
        return l
    def poll_issue(which): return [(f"buffer_load_dwordx2 v[{VPOLL}:{VPOLL+1}], v{VZ}, s[16:19], s95 offen sc1", ("poll", which))]
    def poll_check(which):
        def chk():
            e.wait(vm=[("poll", which)])
            spin([f"buffer_load_dwordx2 v[{VPOLL}:{VPOLL+1}], v{VZ}, s[16:19], s95 offen sc1"], VPOLL + which)
        return [("CALL", chk)]
    def partner_loads(kaps):
        l = []
        for kap in kaps:
            l.append(f"s_add_u32 s29, s{TB+kap}, s{23 if kap < 16 else 24}")
            for b in range(2):
                off = f" offset:{1024*b}" if b else ""
                l.append((f"buffer_load_dwordx4 {PF(kap,b)}, v{VL16}, s[16:19], s29 offen{off} sc1", ("pf", kap)))
        return l
    issue_at = {}
    for si in range(nsteps): issue_at.setdefault(max(si - dist(si), -1), []).append(si)
    ycount = {}
    c_ = 0
    for si in range(nsteps):
        if steps[si][2] >= 6: ycount[si] = c_; c_ += 1
    def reads_for(si):
        pi, q, sg, ks = steps[si]; us = phases[pi][0]; out = []; st = si % 3
        ws = slot_of[us[-1]]
        if sg == 0:
            xs = slot_of[us[0]]
            if q == 0:
                for kk in range(4): out.append((f"v_add_u32 v{VXA+kk}, {xs}, v{VXR+kk}", None))
            for b in range(2):
                off = f" offset:{4096*b}" if b else ""
                out.append((f"ds_read_b128 {XF(ks,b)}, v{VXA+q}{off}", ("rd", si)))
        if sg < 4:
            for a_ in range(2):
                for t in range(2):
                    off = ws + q*4096 + t*512
                    out.append((f"ds_read_b64_tr_b16 {v(AF(st,a_)+2*t,2)}, v{VTR+2*a_+(off>>16)} offset:{off & 0xffff}", ("rd", si)))
        elif sg == 4:
            for t in range(2):
                off = ws + q*2048 + t*256
                out.append((f"ds_read_b64_tr_b16 {v(AF(st,0)+2*t,2)}, v{VTRH+(off>>16)} offset:{off & 0xffff}", ("rd", si)))
        elif sg == 5:
            if q == 0:
                for a_ in range(2): out.append((f"v_add_u32 v{WA+a_}, {ws}, v{BX+a_}", None))
            out.append((f"v_add_u32 v{VHA}, s{TB+ks}, v{VHR}", None))
            for b in range(2): out.append((f"ds_read_b128 {HF(ks,b)}, v{VHA} offset:{b*1024}", ("rd", si)))
            for cc in range(2):
                for a_ in range(2):
                    for t in range(2):
                        out.append((f"ds_read_b64_tr_b16 {v(XR[ks&1][2*cc+a_]+2*t,2)}, v{WA+a_} offset:{q*8192 + t*4096 + cc*256}", ("rd", si)))
        elif sg in (6, 7):
            if q == 0:
                for a_ in range(2): out.append((f"v_add_u32 v{WA+a_}, {ws}, v{BY+a_}", None))
            for a_ in range(2):
                for t in range(2):
                    out.append((f"ds_read_b64_tr_b16 {v(YR[ycount[si]%3][a_]+2*t,2)}, v{WA+a_} offset:{q*4096 + t*2048}", ("rd", si)))
        else:
            if q == 0: out.append((f"v_add_u32 v{WA}, {ws}, v{BZ}", None))
            for t in range(2):
                out.append((f"ds_read_b64_tr_b16 {v(YR[ycount[si]%3][0]+2*t,2)}, v{WA} offset:{q*1024 + t*512}", ("rd", si)))
        return out
    extra_wait = {}
    after_bar = {}
    def barrier_for(pi):
        if "nodma" not in abl:
            for u in phases[pi][0]:
                assert u < st_["next"] and not any(isinstance(x, tuple) and x[1] == ("dma", u) for x in dma_q), f"DMA for unit {u} not issued before its barrier"
        e.wait(vm=[("dma", u) for u in phases[pi][0]] + extra_wait.get(pi, []))
        e.wait_all_ds()
        if "nobar" not in abl or pi == 0: e("s_barrier")
        release(pi)
        now_q.extend(after_bar.get(pi, []))
    outsel = [0]
    def epi_tile(buf, a_, b, sg):
        A0 = ACC(buf, a_, b); o = OUT(outsel[0]); outsel[0] ^= 1; l = []
        for hh in range(2):
            r0 = A0 + 8*hh; t = TMP + 4*hh
            for i in range(4): l.append(f"v_mul_f32 v{t+i}, v{r0+i}, v{r0+i}")
            for i in range(4): l.append(f"v_mul_f32 v{r0+4+i}, v{r0+i}, v{r0+4+i}")
            for i in range(4): l.append(f"v_fma_f32 v{t+i}, v{t+i}, s27, v{VK0}")
            for i in range(4): l.append(f"v_mul_f32 v{r0+i}, v{t+i}, v{r0+i}")
            for i in range(4): l.append(f"v_exp_f32 v{r0+i}, v{r0+i}")
            for i in range(4): l.append(f"v_add_f32 v{r0+i}, 1.0, v{r0+i}")
            for i in range(4): l.append(f"v_rcp_f32 v{r0+i}, v{r0+i}")
            for i in range(4): l.append(f"v_mul_f32 v{r0+4+i}, v{r0+4+i}, v{r0+i}")
            l.append(f"v_cvt_pk_bf16_f32 v{o+2*hh}, v{r0+4}, v{r0+5}"); l.append(f"v_cvt_pk_bf16_f32 v{o+2*hh+1}, v{r0+6}, v{r0+7}")
        off = f" offset:{1024*b}" if b else ""
        if sg < 4:
            l.append((f"ds_write_b128 v{VHW}, {v(o,4)} offset:{(4*sg+a_)*4096 + b*1024}", ("hw", 0)))
            l.append(f"s_add_u32 s26, s98, {(4*sg+a_)*4096}")
            l.append((f"buffer_store_dwordx4 {v(o,4)}, v{VL16}, s[16:19], s26 offen{off} {hx_flags}".rstrip(), "hx1"))
        else:
            l.append((f"ds_write_b128 v{VHWH}, {v(o,4)} offset:{b*1024}", ("hw", 0)))
            l.append((f"buffer_store_dwordx4 {v(o,4)}, v{VL16}, s[16:19], s3 offen{off} {hx_flags}".rstrip(), "hx2"))
        return l
    psel = [0]
    def epi_p(tiles):
        l = []
        for (r0, sb, g0, timm) in tiles:
            for q in range(4):
                l.append(f"s_add_u32 s26, s{sb}, {(g0 + 2*q)*GST}")
                o = TMP + 2*(psel[0] & 3); psel[0] += 1
                l.append(f"v_cvt_pk_bf16_f32 v{o}, v{r0+4*q}, v{r0+4*q+1}"); l.append(f"v_cvt_pk_bf16_f32 v{o+1}, v{r0+4*q+2}, v{r0+4*q+3}")
                off = f" offset:{timm}" if timm else ""
                l.append((f"buffer_store_dwordx2 {v(o,2)}, v{VP}, s[16:19], s26 offen{off} {store_flags}".rstrip(), ("st", 0)))
        return l
    c0_tiles = [(C0A[2*a_+b], 25, 8*a_, 256*b) for a_ in range(2) for b in range(2)]
    c1_tiles = [(C1A[2*a_+b], 25, 32 + 8*a_, 256*b) for a_ in range(2) for b in range(2)]
    c2_tiles = [(C2A, 28, 0, 0)]
    def cost(it):
        t = it[0] if isinstance(it, tuple) else it
        op = t.split()[0]
        if op.startswith(("v_exp", "v_rcp")): return 2
        if op.startswith("buffer_"): return 2
        if op.startswith("ds_write"): return 2
        if op == "CALL": return 5
        return 1
    ph_of = lambda sg, c: next(pi for pi, ph in enumerate(phases) if ph[1] == sg and ph[2] == c)
    extra_wait[3] = ["zi"]
    for p in range(9): after_bar[ph_of(1, 4*p)] = ready_store(p)
    extra_wait[ph_of(5, 6)] = ["hx1"]; after_bar[ph_of(5, 6)] = flag_release(0)
    extra_wait[ph_of(5, 15)] = ["hx2"]; after_bar[ph_of(5, 15)] = flag_release(1)
    epi_q = []; now_q = []
    emit_list(pop_dma(4*(init_units-2)))
    stamp()
    barrier_for(0)
    stamp()
    for si in issue_at.get(-1, []):
        for t_, tag in reads_for(si): e(t_, tag=tag)
    for si in [s_ for s_ in range(nsteps) if s_ - dist(s_) < 0 and s_ not in issue_at.get(-1, [])]:
        for t_, tag in reads_for(si): e(t_, tag=tag)
    dma_credit = [0.0]
    stage_len = {0: 36, 1: 36, 2: 36, 3: 36, 4: 36, 5: 18, 6: 18, 7: 18, 8: 36}
    def run_steps(lo, hi, zb):
      nonlocal epi_q, now_q
      for si in range(lo, hi):
          pi, q, sg, ks = steps[si]
          if sg == 0 and ks == 0: now_q += xt_jobs(0)
          if sg == 0 and ks == 3: now_q += xt_jobs(1)
          if fine >= 0 and sg in (fine, fine+1) and q == 0 and ks != 0: stamp()
          if ks == 0 and sg >= 1:
              if fine < 0 or sg in (fine, fine+1, fine+2): stamp()
              assert not epi_q, f"epilogue not drained at stage {sg}"
              if sg == 1: epi_q += setup2()
              if sg == 3: epi_q += ready_load()
              if "noepi" not in abl:
                  if sg <= 4:
                      for a_ in range(2):
                          for b in range(2): epi_q += epi_tile((sg-1) & 1, a_, b, sg-1)
                  elif sg == 5:
                      for b in range(2): epi_q += epi_tile(0, 0, b, 4)
                  elif sg == 6: epi_q += gate_loads() + poll_issue(1) + gate_tok(0)
                  elif sg == 7: epi_q += epi_p(c0_tiles)
                  elif sg == 8: epi_q += epi_p(c1_tiles)
          if sg == 4 and ks == 26:
              assert not any(isinstance(x, tuple) and is_dma(x) and units[x[1][1]][0] == 'HF' for x in dma_q) and all(units[u][0] != 'HF' for u in range(st_['next'], len(units)))
              epi_q[:0] = tb_jobs()
          if sg == 5 and ks == 9: now_q += poll_issue(0)
          if sg == 5 and ks == 12: epi_q += poll_check(0) + partner_loads(range(0, 16))
          if sg == 6 and ks == 6: epi_q = poll_check(1) + partner_loads((16, 17)) + epi_q
          if sg == 6 and ks == 8: epi_q += gate_tok(1) + gate_fin()
          if sg in (6, 7, 8):
              kp = ks if sg < 8 else ks - 18
              if kp >= 0 and sg != 7: e.wait(vm=[("pf", kp)])
          e.wait(ds=[("rd", si)])
          mf = []
          M = "v_mfma_f32_32x32x16_bf16"
          if sg < 4:
              buf = sg & 1
              for a_ in range(2):
                  for b in range(2):
                      d_ = v(ACC(buf,a_,b),16); c = "0" if ks == 0 else d_
                      mf.append(f"{M} {d_}, {v(AF(si%3,a_),4)}, {XF(ks,b)}, {c}")
          elif sg == 4:
              for b in range(2):
                  d_ = v(ACC(0,0,b),16); c = "0" if ks == 0 else d_
                  mf.append(f"{M} {d_}, {v(AF(si%3,0),4)}, {XF(ks,b)}, {c}")
          elif sg == 5:
              for cc in range(2):
                  for a_ in range(2):
                      for b in range(2):
                          d_ = v((C0A, C1A)[cc][2*a_+b],16); c = "0" if ks == 0 else d_
                          mf.append(f"{M} {d_}, {v(XR[ks&1][2*cc+a_],4)}, {HF(ks,b)}, {c}")
          elif sg in (6, 7):
              for a_ in range(2):
                  for b in range(2):
                      d_ = v((C0A, C1A)[sg-6][2*a_+b],16)
                      mf.append(f"{M} {d_}, {v(YR[ycount[si]%3][a_],4)}, {PF(ks,b)}, {d_}")
          else:
              d_ = v(C2A,16); c = "0" if ks == 0 else d_
              Bf = HF(ks, zb) if ks < 18 else PF(ks-18, zb)
              mf.append(f"{M} {d_}, {v(YR[ycount[si]%3][0],4)}, {Bf}, {c}")
          ng = len(mf)
          nxt = issue_at.get(si, [])
          bars = [steps[s_][0] for s_ in nxt if steps[s_][1] == 0]
          rds = []
          if "nords" not in abl:
              for s_ in nxt: rds += reads_for(s_)
          do_bar = len(bars) > 0
          if sg == 5: rem = max(1, 7 - ks) if ks < 7 else max(1, 18 - ks)
          elif sg == 6: rem = max(1, 17 - ks)
          elif sg == 8: rem = max(1, 36 - ks)
          else: rem = max(1, stage_len[sg] - ks - 3)
          want = -(-sum(cost(x) for x in epi_q) // rem) if epi_q else 0
          ev = ev0 if sg == 0 else (ev1 if sg < 4 else (evh if sg == 4 else (evx if sg == 5 else evy)))
          bud = budget if ng > 1 else budget
          for gi in range(ng):
              e(mf[gi])
              used = 0
              if gi == ng-1: used += 1
              if gi == 0 and do_bar:
                  for pb in bars: barrier_for(pb)
                  used += bud
                  if ng > 2:
                      dma_credit[0] += 1.0 / ev
                      continue
              if now_q and (gi >= 1 or ng == 1):
                  emit_list(now_q); now_q.clear(); used += bud
              left_g = ng - gi
              nrd = min(len(rds), max(rd_per_gap, -(-len(rds) // left_g)))
              if gi == ng-1: nrd = len(rds)
              for it in rds[:nrd]: used += cost(it)
              emit_list(rds[:nrd]); rds = rds[nrd:]
              npend = sum(1 for x in dma_q if is_dma(x))
              evv = ev if npend <= 8 else max(1, ev // 2)
              dma_credit[0] += 1.0 / evv
              if dma_q and dma_credit[0] >= 1.0 and (used + 3 <= bud or dma_credit[0] >= 2.0):
                  lst = pop_dma(1); dma_credit[0] -= 1.0
                  for it in lst: used += cost(it)
                  emit_list(lst)
              if not dma_q: dma_credit[0] = min(dma_credit[0], 1.0)
              while epi_q and want > 0:
                  c = cost(epi_q[0]); must = (gi == ng-1)
                  if used + c > bud and not must: break
                  used += c; want -= c
                  emit_list([epi_q.pop(0)])
          assert not rds
    first_z = next(si for si in range(nsteps) if steps[si][2] == 8)
    run_steps(0, first_z, 0)
    import copy
    Lz1 = k.label("z1"); Ldone = k.label("done")
    e("s_cmp_eq_u32 s22, 1"); e(f"s_cbranch_scc1 {Lz1}")
    snap = (copy.deepcopy(e.__dict__, {id(e.k): e.k}), list(epi_q), list(now_q), list(dma_q), dict(st_), list(dma_credit), psel[0], nst[0])
    for zb in range(2):
        if zb == 1:
            e.raw(f"{Lz1}:")
            e.__dict__.update(copy.deepcopy(snap[0], {id(e.k): e.k}))
            epi_q = list(snap[1]); now_q = list(snap[2]); dma_q[:] = snap[3]; st_.update(snap[4]); dma_credit[:] = snap[5]; psel[0] = snap[6]; nst[0] = snap[7]
        run_steps(first_z, nsteps, zb)
        stamp()
        assert not dma_q or "nodma" in abl
        emit_list(epi_q); epi_q = []
        if "noepi" not in abl: emit_list(epi_p(c2_tiles))
        stamp()
        if zb == 0: e.raw(f"s_branch {Ldone}")
    e.raw(f"{Ldone}:")
    e.reset_state()
    if profile:
        e("s_waitcnt vmcnt(0)")
        stamp()
        e("s_memrealtime s[42:43]"); e("s_waitcnt lgkmcnt(0)")
        e("s_sub_u32 s54, s42, s99"); e("v_writelane_b32 v2, s54, 62"); e("v_writelane_b32 v2, s99, 63")
        e("s_add_u32 s34, s34, 0xC800000"); e("s_addc_u32 s35, s35, 0")
        srd(e, 16, 34, 1<<20)
        e("s_lshl_b32 s53, s2, 2"); e("s_add_u32 s53, s53, s20"); e("s_lshl_b32 s53, s53, 8")
        e("v_lshlrev_b32 v1, 2, v0")
        e("buffer_store_dword v2, v1, s[16:19], s53 offen")
    e.raw(f"{Lend}:")
    e.raw("s_endpgm")
    print(f"F2: {e.count} instrs, nops inserted {e.nops_inserted}, stamps {nst[0]}", file=sys.stderr)
    return k

if __name__ == "__main__":
    abl = [x for x in sys.argv[2:] if x.startswith("no")]
    kw = {}
    for x in sys.argv[2:]:
        if "=" in x:
            a_, b_ = x.split("="); kw[a_] = int(b_) if b_.lstrip("-").isdigit() else b_
    k = gen_f2(profile=("prof" in sys.argv[2:]), abl=abl, **kw)
    open(sys.argv[1], "w").write(build([k]))
```

```python
import sys, math
sys.path.insert(0, "gen")
from asmlib import *
from emit import E
LOG2E = 1.4426950408889634
WS_P = 0; WS_UT = 0x2800000; WS_G = 0x2B00000; WS_USED = 0x3000000
CP = 4160
ROWP = 528
CHP = 31616
TB = 30096
YOFF = 16640
UTP = 5120
UT0 = 4*CHP
BASE0 = UT0 + 4*UTP
LDS_BYTES = BASE0 + 4*4096

def gen_k2(name="k2_kernel", profile=False, prefetch_code=True, nsplit=16, out_flags="", dbg=0, pdepth=24, pgm=1, pinit=8, prio=0):
    k = K(name, (144,1,1), (512,1,1), LDS_BYTES, 256, sgpr=102)
    e = E(k)
    def stamp_to(r):
        if profile:
            e("s_memtime s[78:79]"); e("s_waitcnt lgkmcnt(0)"); e(f"s_mov_b32 s{r}, s78")
    Lend = k.label("end"); Lp = k.label("pw"); Lfin = k.label("fin"); Lnop = k.label("nop")
    e("s_cmp_ge_u32 s2, 144"); e(f"s_cbranch_scc1 {Lend}")
    if profile:
        e("s_memrealtime s[76:77]"); e("s_waitcnt lgkmcnt(0)"); e("s_mov_b32 s90, s76")
        for r in range(80, 90): e(f"s_mov_b32 s{r}, 0")
    stamp_to(80)
    e("s_load_dwordx8 s[8:15], s[0:1], 8")
    e("s_load_dwordx4 s[16:19], s[0:1], 40")
    e("s_load_dwordx2 s[20:21], s[0:1], 96")
    e("s_load_dwordx2 s[22:23], s[0:1], 112")
    if prefetch_code:
        Lpf = k.label("pf")
        e("s_getpc_b64 s[40:41]")
        e.raw(f"{Lpf}:")
        e("v_min_u32 v1, 7, v0"); e("s_lshr_b32 s43, s2, 3"); e("s_lshl_b32 s43, s43, 3"); e("v_add_u32 v1, s43, v1")
        e("v_lshlrev_b32 v1, 7, v1"); e(f"v_min_u32 v1, ({Lend} - {Lpf}), v1")
        e("global_load_dword v255, v1, s[40:41]", tag="pf")
    e("v_lshrrev_b32 v2, 6, v0"); e("v_and_b32 v1, 255, v0"); e("v_and_b32 v0, 63, v0")
    e("v_readfirstlane_b32 s24, v2")
    e("s_and_b32 s25, s2, 7"); e("s_mul_i32 s25, s25, 18"); e("s_lshr_b32 s26, s2, 3"); e("s_add_u32 s25, s25, s26")
    e("s_and_b32 s27, s24, 3")
    e("s_lshr_b32 s28, s24, 2")
    e("s_lshl_b32 s29, s25, 2"); e("s_add_u32 s29, s29, s27")
    e(f"s_mul_i32 s30, s27, {CHP}")
    e(f"s_mul_i32 s31, s27, {UTP}"); e(f"s_add_u32 s31, s31, {UT0}")
    e("s_lshl_b32 s32, s28, 6"); e("v_add_u32 v3, s32, v0")
    e("v_lshlrev_b32 v4, 1, v3"); e("s_lshl_b32 s33, s29, 8"); e("s_lshl_b32 s34, s29, 1"); e("v_mov_b32 v5, s34")
    e("v_lshrrev_b32 v6, 2, v0"); e("v_and_b32 v7, 3, v0")
    e("v_bfe_u32 v13, v6, 2, 1"); e("v_lshlrev_b32 v13, 1, v13"); e("v_xor_b32 v7, v7, v13")
    e("v_lshlrev_b32 v6, 6, v6"); e("v_lshl_add_u32 v6, v7, 4, v6")
    e("s_lshl_b32 s35, s29, 12"); e("s_lshl_b32 s36, s28, 11"); e("s_add_u32 s35, s35, s36"); e(f"s_add_u32 s35, s35, {WS_UT}")
    e("s_add_u32 s36, s36, s31"); e("s_add_u32 m0, s36, 1024")
    e("v_mov_b32 v14, 0"); e("v_mov_b32 v15, 0"); e("v_mov_b32 v16, 0"); e("v_mov_b32 v17, 0")
    e("v_lshlrev_b32 v13, 4, v0"); e("v_add_u32 v13, s31, v13")
    e("ds_write_b128 v13, v[14:17]", tag="z")
    e("v_lshlrev_b32 v18, 4, v1")
    e(f"s_mul_i32 s37, s25, {nsplit*16384 if pgm else 16384}")
    e("s_waitcnt lgkmcnt(0)")
    def mksrd(dst, base, n):
        e(f"s_mov_b32 s{dst}, s{base}"); e(f"s_and_b32 s{dst+1}, s{base+1}, 0xffff"); e(f"s_mov_b32 s{dst+2}, {n}"); e(f"s_mov_b32 s{dst+3}, 0x00020000")
    for i in range(4): mksrd(60+4*i, 8+2*i, 576*256)
    mksrd(44, 16, 1152)
    for i in range(4): e(f"buffer_load_ushort v{8+i}, v4, s[{60+4*i}:{63+4*i}], s33 offen", tag="par")
    e("buffer_load_ushort v12, v5, s[44:47], 0 offen", tag="par")
    mksrd(48, 22, WS_USED)
    e("buffer_load_dwordx4 v6, s[48:51], s35 offen lds", tag="ut")
    e("buffer_load_dwordx4 v6, s[48:51], s35 offen offset:1024 lds", tag="ut")
    mksrd(52, 20, 2048*1152); mksrd(56, 18, 1152)
    NP = 4*nsplit
    PA = 128; PR = 160; GR = 24; DR = 40; TL = 44
    def pload(i):
        p, fs = i // nsplit, i % nsplit
        e(f"s_add_u32 s38, s37, {(fs*16384 if pgm else fs*144*16384) + p*4096}")
        e(f"buffer_load_dwordx4 {v(PR+4*(i%pdepth),4)}, v18, s[48:51], s38 offen", tag=("p", i))
    stamp_to(81)
    e.wait(vm=["par"])
    e("s_cmp_eq_u32 s28, 0"); e(f"s_cbranch_scc1 {Lnop}")
    vm_before = list(e.vm)
    for i in range(pinit): pload(i)
    vm_p = list(e.vm)
    e.raw(f"{Lnop}:")
    e.vm = list(vm_before)
    for i in range(5): e(f"v_lshlrev_b32 v{8+i}, 16, v{8+i}")
    for r in (12, 8):
        e(f"v_mul_f32 v{r}, {fimm(LOG2E)}, v{r}"); e(f"v_exp_f32 v{r}, v{r}")
        e(f"v_cvt_pk_bf16_f32 v{r}, v{r}, v{r}"); e(f"v_lshlrev_b32 v{r}, 16, v{r}")
    for i in range(4): e(f"v_mul_f32 v{8+i}, v{8+i}, v12")
    e("v_add_f32 v20, v10, v10"); e("v_add_f32 v21, v11, v11")
    e(f"v_mul_f32 v8, {fimm(-LOG2E)}, v8"); e(f"v_mul_f32 v9, {fimm(1.0/(2*math.pi))}, v9")
    ps = [1, 2, 4, 8, 128, 256, 512, 1024]
    Eg = lambda p: 22 + 2*ps.index(p)
    T = 64
    for i, p in enumerate(ps):
        lg = int(math.log2(p)); t = T + 3*i
        if lg: e(f"v_ldexp_f32 v{t}, v8, {lg}"); e(f"v_ldexp_f32 v{t+1}, v9, {lg}")
        else: e(f"v_mov_b32 v{t}, v8"); e(f"v_mov_b32 v{t+1}, v9")
    for f_, o_, s_ in (("v_fract_f32", 1, 1), ("v_exp_f32", 0, 0), ("v_sin_f32", 2, 1), ("v_cos_f32", 1, 1)):
        for i in range(8): e(f"{f_} v{T+3*i+o_}, v{T+3*i+s_}")
    for i, p in enumerate(ps):
        t = T + 3*i
        e(f"v_mul_f32 v{Eg(p)}, v{t}, v{t+1}"); e(f"v_mul_f32 v{Eg(p)+1}, v{t}, v{t+2}")
    e("v_lshlrev_b32 v6, 2, v3"); e("v_add_u32 v6, s30, v6")
    wsel = [0]
    def cmul_parts(dst, a_, b_):
        return [f"v_pk_mul_f32 {v(dst,2)}, {v(a_,2)}, {v(b_,2)} op_sel:[0,0] op_sel_hi:[0,1]",
                f"v_pk_fma_f32 {v(dst,2)}, {v(a_,2)}, {v(b_,2)}, {v(dst,2)} op_sel:[1,1,0] op_sel_hi:[1,0,1] neg_lo:[0,1,0]"]
    def put_parts(row, src, conj=False):
        o = 100 + (wsel[0] & 7); wsel[0] += 1
        return [f"v_cvt_pk_bf16_f32 v{o}, v{src}, {'-' if conj else ''}v{src+1}", (f"ds_write_b32 v6, v{o} offset:{row*ROWP}", "uv")]
    def expand(ch):
        for it in ch:
            if it[0] == "c":
                for x in cmul_parts(it[1], it[2], it[3]): yield x
            elif it[0] == "p":
                for x in put_parts(it[1], it[2], it[3]): yield x
            else:
                yield f"v_mov_b32 v{it[1]}, 1.0"; yield f"v_mov_b32 v{it[1]+1}, 0"
    C2 = 20
    def chain_seg0a():
        cur = C2
        for i in range(8):
            if i > 0:
                nxt = 64 if cur != 64 else 66; yield ("c", nxt, cur, Eg(1)); cur = nxt
            yield ("p", i, cur, False)
    def chain_seg0b():
        yield ("c", 68, C2, Eg(128)); cur = 68
        for i in range(8):
            if i > 0:
                nxt = 70 if cur == 68 else 68; yield ("c", nxt, cur, Eg(1)); cur = nxt
            yield ("p", 8+i, cur, False)
    def chain_seg1():
        yield ("c", 72, C2, Eg(256)); cur = 72
        for i in range(4):
            if i > 0:
                nxt = 74 if cur == 72 else 72; yield ("c", nxt, cur, Eg(2)); cur = nxt
            yield ("p", 16+i, cur, False)
            yield ("c", 76 + 2*(i & 1), cur, Eg(128)); yield ("p", 20+i, 76 + 2*(i & 1), False)
    def chain_seg2():
        yield ("c", 80, C2, Eg(512)); yield ("c", 82, 80, Eg(4))
        c0_, c1_ = 80, 82
        for i in range(4):
            yield ("p", 24+2*i, c0_, False); yield ("p", 25+2*i, c1_, False)
            if i < 3:
                n0 = 84 if c0_ != 84 else 80; n1 = 86 if c1_ != 86 else 82
                yield ("c", n0, c0_, Eg(128)); yield ("c", n1, c1_, Eg(128)); c0_, c1_ = n0, n1
    def chain_seg3():
        yield ("c", 88, C2, Eg(1024)); cur = 88
        for i in range(9):
            yield ("p", 32+i, cur, False)
            if i < 8:
                nxt = 90 if cur == 88 else 88; yield ("c", nxt, cur, Eg(128)); cur = nxt
    def chain_v():
        yield ("m", 92); yield ("p", 41, 92, True); yield ("p", 42, Eg(8), True)
        cur = Eg(8)
        for j in range(2, 16):
            nxt = 92 if cur != 92 else 94; yield ("c", nxt, cur, Eg(8)); cur = nxt
            yield ("p", 41+j, cur, True)
    live = [expand(c) for c in (chain_v(), chain_seg0a(), chain_seg0b(), chain_seg3(), chain_seg1(), chain_seg2())]
    while live:
        for c in list(live):
            try: it = next(c)
            except StopIteration: live.remove(c); continue
            if isinstance(it, tuple): e(it[0], tag=it[1])
            else: e(it)
    e("v_and_b32 v7, 15, v0"); e("v_lshrrev_b32 v13, 4, v0")
    La = k.label("w0"); Lb = k.label("w1")
    e("s_cmp_eq_u32 s28, 0"); e(f"s_cbranch_scc1 {La}")
    e.raw(f"s_waitcnt vmcnt({pinit})"); e.raw(f"s_branch {Lb}")
    e.raw(f"{La}:"); e.raw("s_waitcnt vmcnt(0)"); e.raw(f"{Lb}:")
    e.vm = []
    e.wait_all_ds(); e("s_barrier")
    stamp_to(82)
    e("s_cmp_eq_u32 s28, 1"); e(f"s_cbranch_scc1 {Lp}")
    e(f"v_mul_u32_u24 v22, {ROWP}, v7"); e("v_lshl_add_u32 v22, v13, 4, v22"); e("v_add_u32 v22, s30, v22")
    KB = 64; KA = 128; KD = 24
    for s_ in range(8): e(f"ds_read_b128 {v(KB+4*s_,4)}, v22 offset:{41*ROWP + 64*s_}", tag="kb")
    for tile in range(3):
        for s_ in range(8): e(f"ds_read_b128 {v(KA+32*tile+4*s_,4)}, v22 offset:{tile*16*ROWP + 64*s_}", tag=("ka", tile))
    T1 = TB + 512; T2 = T1 + 256; T3 = T2 + 256
    j_, g_ = 7, 13
    e(f"v_lshrrev_b32 v40, 1, v{g_}"); e("v_lshlrev_b32 v40, 8, v40"); e(f"v_lshl_add_u32 v40, v{j_}, 4, v40")
    e(f"v_and_b32 v41, 1, v{g_}"); e("v_lshl_add_u32 v40, v41, 3, v40"); e("v_add_u32 v40, s30, v40")
    e(f"v_lshlrev_b32 v44, 7, v{g_}"); e(f"v_lshl_add_u32 v45, v{j_}, 3, v44"); e(f"v_lshl_add_u32 v44, v{j_}, 2, v44")
    e(f"v_cmp_gt_u32 vcc, 2, v{g_}"); e("v_cndmask_b32 v44, v44, v45, vcc")
    e("v_mov_b32 v46, 64"); e("v_mov_b32 v47, 4"); e("v_cndmask_b32 v45, v46, v47, vcc")
    e("v_add_u32 v44, s30, v44"); e("v_add_u32 v45, v44, v45")
    e(f"v_lshlrev_b32 v48, 7, v{g_}"); e(f"v_lshl_add_u32 v48, v{j_}, 1, v48"); e("v_add_u32 v48, s30, v48")
    e(f"v_min_u32 v49, 2, v{g_}"); e("v_lshlrev_b32 v49, 7, v49"); e(f"v_lshl_add_u32 v49, v{j_}, 1, v49"); e("v_add_u32 v49, s30, v49")
    e(f"v_cmp_eq_u32 vcc, 3, v{g_}"); e("v_add_u32 v50, 0x60, v49"); e("v_cndmask_b32 v50, v48, v50, vcc")
    e("s_mov_b32 s41, 0x01000100"); e("s_mov_b32 s42, 0x05040100")
    e("v_lshlrev_b32 v52, 2, v0"); e("v_add_u32 v52, s30, v52")
    e("v_lshlrev_b32 v53, 3, v0"); e("v_add_u32 v53, s30, v53")
    e("v_lshlrev_b32 v54, 4, v0"); e("v_add_u32 v54, s30, v54"); e("v_lshlrev_b32 v55, 5, v0"); e("v_add_u32 v55, s30, v55")
    e.wait(ds=[("ka", 2)])
    for s_ in range(8):
        for tile in range(3):
            c = "0" if s_ == 0 else v(KD+4*tile,4)
            e(f"v_mfma_f32_16x16x32_bf16 {v(KD+4*tile,4)}, {v(KA+32*tile+4*s_,4)}, {v(KB+4*s_,4)}, {c}")
    e("v_mov_b32 v56, 0"); e("v_mov_b32 v57, 0"); e("v_min_u32 v58, 7, v0"); e("v_lshlrev_b32 v58, 3, v58"); e("v_add_u32 v58, s30, v58")
    e("ds_write_b64 v58, v[56:57]", tag="c0")
    e(f"v_cvt_pk_bf16_f32 v42, v{KD}, v{KD+1}"); e(f"v_cvt_pk_bf16_f32 v43, v{KD+2}, v{KD+3}")
    e(f"ds_write_b64 v40, v[42:43] offset:64", tag="c0")
    e(f"v_cvt_pk_bf16_f32 v46, v{KD+4}, v{KD+5}"); e(f"v_cvt_pk_bf16_f32 v47, v{KD+6}, v{KD+7}")
    e(f"ds_write_b32 v44, v46 offset:{T1}", tag="tb"); e(f"ds_write_b32 v45, v47 offset:{T1}", tag="tb")
    e(f"v_cvt_pk_bf16_f32 v60, v{KD+8}, v{KD+9}"); e(f"v_cvt_pk_bf16_f32 v61, v{KD+10}, v{KD+11}")
    e(f"ds_write_b16 v50, v60 offset:{T3}", tag="tb"); e(f"ds_write_b16_d16_hi v49, v60 offset:{T3+32}", tag="tb")
    e(f"ds_write_b16 v49, v61 offset:{T3+64}", tag="tb"); e(f"ds_write_b16_d16_hi v49, v61 offset:{T3+96}", tag="tb")
    e.wait(ds=["tb"])
    for sg_, base in ((1, T1), (2, T2), (3, T3)):
        r0 = 64 + 4*(sg_-1)
        for q in range(3): e(f"ds_read_u16 v{r0+q}, v52 offset:{base+2*q}", tag="x")
    for ps_ in range(5):
        a_ = 20 + ps_
        e(f"v_add_u32 v{a_}, {64*ps_}, v0")
        if ps_ == 4: e(f"v_min_u32 v{a_}, 259, v{a_}")
        e(f"v_lshlrev_b32 v{a_}, 4, v{a_}"); e(f"v_add_u32 v{a_}, s30, v{a_}")
        e(f"v_subrev_u32 v{26+ps_}, 8, v{a_}"); e(f"v_max_i32 v{26+ps_}, 0, v{26+ps_}")
    e.wait(ds=["x"])
    e("v_perm_b32 v78, v64, v64, s41"); e("v_perm_b32 v79, v66, v65, s42")
    e(f"ds_write_b64 v53, v[78:79] offset:{64+512}", tag="c0")
    e("v_perm_b32 v80, v68, v68, s41"); e("v_perm_b32 v81, v69, v68, s42"); e("v_perm_b32 v82, v69, v69, s41"); e("v_perm_b32 v83, v70, v70, s41")
    e(f"ds_write_b128 v54, v[80:83] offset:{64+1024}", tag="c0")
    e("v_perm_b32 v84, v72, v72, s41"); e("v_mov_b32 v85, v84"); e("v_perm_b32 v86, v73, v72, s42"); e("v_perm_b32 v87, v73, v73, s41")
    e("v_mov_b32 v88, v87"); e("v_mov_b32 v89, v87"); e("v_perm_b32 v90, v74, v74, s41"); e("v_mov_b32 v91, v90")
    e(f"ds_write_b128 v55, v[84:87] offset:{64+2048}", tag="c0"); e(f"ds_write_b128 v55, v[88:91] offset:{64+2048+16}", tag="c0")
    e("v_bfe_u32 v32, v0, 2, 2"); e(f"v_mul_u32_u24 v32, {CP}, v32")
    e("v_and_b32 v33, 3, v0"); e("v_lshl_add_u32 v32, v33, 3, v32")
    e("v_lshlrev_b32 v33, 4, v13"); e("v_sub_u32 v32, v32, v33")
    e(f"s_add_u32 s34, s30, {64 - 8}"); e("v_add_u32 v32, s34, v32")
    VA = 32
    e.wait(ds=["c0"])
    for ps_ in range(5):
        e(f"ds_read_b128 {v(64+8*ps_+4,4)}, v{20+ps_}", tag=("cr", ps_))
        e(f"ds_read_b64 {v(64+8*ps_+2,2)}, v{26+ps_}", tag=("cr", ps_))
    VB = 40
    for d0 in range(8):
        e(f"v_add_u32 v34, {16 - d0}, v7"); e("v_bfe_u32 v35, v34, 2, 1"); e("v_lshlrev_b32 v35, 1, v35"); e("v_xor_b32 v35, v35, v13")
        e("v_lshlrev_b32 v34, 6, v34"); e("v_lshl_add_u32 v34, v35, 4, v34")
        e(f"s_sub_u32 s34, s31, 512"); e(f"v_add_u32 v{VB+d0}, s34, v34")
    for ps_ in range(5):
        a_ = 20 + ps_; D = 64 + 8*ps_; o = 128 + 12*ps_
        e.wait(ds=[("cr", ps_)])
        e(f"v_alignbit_b32 v{o}, v{D+4}, v{D+3}, 16"); e(f"v_alignbit_b32 v{o+1}, v{D+5}, v{D+4}, 16"); e(f"v_alignbit_b32 v{o+2}, v{D+6}, v{D+5}, 16"); e(f"v_alignbit_b32 v{o+3}, v{D+7}, v{D+6}, 16")
        e(f"ds_write_b128 v{a_}, {v(o,4)} offset:{CP}", tag="cw")
        e(f"v_mov_b32 v{o+4}, v{D+3}"); e(f"v_mov_b32 v{o+5}, v{D+4}"); e(f"v_mov_b32 v{o+6}, v{D+5}"); e(f"v_mov_b32 v{o+7}, v{D+6}")
        e(f"ds_write_b128 v{a_}, {v(o+4,4)} offset:{2*CP}", tag="cw")
        e(f"v_alignbit_b32 v{o+8}, v{D+3}, v{D+2}, 16"); e(f"v_mov_b32 v{o+9}, v{o}"); e(f"v_mov_b32 v{o+10}, v{o+1}"); e(f"v_mov_b32 v{o+11}, v{o+2}")
        e(f"ds_write_b128 v{a_}, {v(o+8,4)} offset:{3*CP}", tag="cw")
    e(f"s_add_u32 s34, s30, {YOFF}")
    e("v_mul_u32_u24 v48, 144, v7"); e("v_lshl_add_u32 v48, v13, 4, v48"); e("v_add_u32 v48, s34, v48")
    e.wait_all_ds()
    if prio: e("s_setprio 2")
    stamp_to(83)
    ACCc = 64
    its = [(hf, d0) for hf in range(2) for d0 in range(16)]
    AFr = lambda st, jj, rt: 128 + 16*st + 8*jj + 4*rt
    BF = lambda st, m: 160 + 16*st + 4*m
    def conv_reads(n):
        hf, d0 = its[n]; s2 = n % 2; rl = []
        vb = VB + (d0 & 7); bo = 512 if d0 < 8 else 0
        nb = 4 if hf == 0 else 2
        rl.append((f"ds_read_b128 {v(BF(s2,0),4)}, v{vb} offset:{bo}", ("cv", n)))
        for jj in range(2):
            j = 2*hf + jj
            for rt in range(2):
                for t in range(2):
                    rl.append((f"ds_read_b64_tr_b16 {v(AFr(s2,jj,rt)+2*t,2)}, v{VA} offset:{64*d0 + 1024*j + 32*rt - 8*t + 8}", ("cv", n)))
            for m in range(1 + jj*((nb-1)//2 + 0), nb):
                pass
        for m in range(1, nb):
            rl.insert(min(len(rl), 1 + 3*m), (f"ds_read_b128 {v(BF(s2,m),4)}, v{vb} offset:{bo + 1024*m}", ("cv", n)))
        return rl
    e("v_lshrrev_b32 v49, 1, v13"); e("v_and_b32 v50, 1, v13")
    e("v_lshlrev_b32 v51, 5, v49"); e("v_lshl_add_u32 v51, v7, 1, v51"); e("v_add_u32 v51, v51, v50"); e("s_lshl_b32 s34, s27, 7"); e("v_add_u32 v51, s34, v51")
    e("v_lshlrev_b32 v55, 3, v51")
    for p in range(4):
        for h in range(2):
            e(f"s_mov_b32 s34, {WS_G + p*4096 + h*512}")
            e(f"buffer_load_dword v{236+2*p+h}, v55, s[48:51], s34 offen", tag="sg")
    e("s_movk_i32 s34, 1152"); e("v_mul_lo_u32 v51, v51, s34")
    e("s_lshl_b32 s34, s27, 2"); e("v_add_u32 v49, s34, v49")
    e("v_mul_u32_u24 v52, 144, v49"); e("v_lshl_add_u32 v52, v7, 3, v52"); e("v_lshl_add_u32 v52, v50, 2, v52"); e(f"v_add_u32 v52, {YOFF}, v52")
    e(f"v_add_u32 v53, {2*CHP}, v52")
    e("s_lshl_b32 s34, s27, 12"); e(f"s_add_u32 s34, s34, {BASE0}"); e("v_lshlrev_b32 v54, 4, v0"); e("v_add_u32 v54, s34, v54")
    BASE1_OFF = 25856
    e(f"s_add_u32 s34, s30, {BASE1_OFF}"); e("v_lshlrev_b32 v55, 4, v0"); e("v_add_u32 v55, s34, v55")
    e("s_lshl_b32 s35, s25, 3")
    mksrd(52, 20, 2048*1152)
    fin_q = []
    def emit_it(it):
        if isinstance(it, tuple) and it[0] == "WAITDS": e.wait(ds=[it[1]])
        elif isinstance(it, tuple) and it[0] == "WAITVM": e.wait(vm=[it[1]])
        elif isinstance(it, tuple): e(it[0], tag=it[1])
        else: e(it)
    def final_jobs(p):
        l = []; bo = (p & 1)*2048; vb_ = 54 if p < 2 else 55
        for h in range(2):
            l.append((f"ds_read_b128 {v(208+4*h,4)}, v{vb_} offset:{bo + h*1024}", ("fb", p)))
            for ch in range(4):
                l.append((f"ds_read_b32 v{220+4*h+ch}, v{52 if ch < 2 else 53} offset:{(ch & 1)*CHP + p*16*144 + h*2*144}", ("fb", p)))
        l.append(("WAITDS", ("fb", p)))
        if p == 0: l.append(("WAITVM", "sg"))
        for h in range(2):
            for ch in range(4): l.append(f"v_fma_f32 v{208+4*h+ch}, v{236+2*p+h}, v{220+4*h+ch}, v{208+4*h+ch}")
            o = 228 + 2*((2*p+h) & 3)
            l.append(f"v_cvt_pk_bf16_f32 v{o}, v{208+4*h}, v{209+4*h}"); l.append(f"v_cvt_pk_bf16_f32 v{o+1}, v{210+4*h}, v{211+4*h}")
            l.append(f"s_add_u32 s36, s35, {(512*p + 64*h)*1152}")
            l.append((f"buffer_store_dwordx2 {v(o,2)}, v51, s[52:55], s36 offen {out_flags}".rstrip(), "o"))
        return l
    for t_, tag in conv_reads(0): e(t_, tag=tag)
    first = set()
    for n, (hf, d0) in enumerate(its):
        st = n % 2
        e.wait(ds=[("cv", n)])
        mf = []
        for jj in range(2):
            j = 2*hf + jj
            for ct in range(j, 4):
                for rt in range(2):
                    acc = ACCc + (ct*2+rt)*4
                    c = v(acc,4) if (ct, rt) in first else "0"
                    first.add((ct, rt))
                    mf.append(f"v_mfma_f32_16x16x32_bf16 {v(acc,4)}, {v(AFr(st,jj,rt),4)}, {v(BF(st,ct-j),4)}, {c}")
        rl = conv_reads(n+1) if n + 1 < len(its) else []
        idx = 0
        per = -(-len(rl) // len(mf)) if rl else 0
        for m_ in mf:
            e(m_)
            for _ in range(per):
                if idx < len(rl): e(rl[idx][0], tag=rl[idx][1]); idx += 1
            if fin_q and d0 >= 1 and idx >= len(rl): emit_it(fin_q.pop(0))
        if d0 == 15:
            while fin_q: emit_it(fin_q.pop(0))
            for ct in (2*hf, 2*hf+1):
                for rt in range(2):
                    e(f"ds_write_b128 v48, {v(ACCc+(ct*2+rt)*4,4)} offset:{ct*16*144 + rt*64}", tag=("y", hf))
            e.wait(ds=[("y", hf)])
            e("s_barrier")
            stamp_to((84, 85)[hf])
            fin_q += final_jobs(2*hf) + final_jobs(2*hf+1)
    while fin_q: emit_it(fin_q.pop(0))
    e(f"s_branch {Lfin}")
    e.raw(f"{Lp}:")
    e.reset_state(); e.vm = [t for t in vm_p if isinstance(t, tuple)]
    for i in range(pinit, pdepth): pload(i)
    e("v_and_b32 v14, 15, v0"); e("v_lshrrev_b32 v15, 4, v0")
    e("v_lshrrev_b32 v16, 1, v15"); e("v_lshlrev_b32 v16, 5, v16"); e("v_lshl_add_u32 v16, v14, 1, v16"); e("v_and_b32 v17, 1, v15"); e("v_add_u32 v16, v16, v17")
    e("s_lshl_b32 s38, s27, 7"); e(f"v_add_u32 v{TL}, s38, v16")
    e(f"v_lshlrev_b32 v17, 3, v{TL}")
    for p in range(4):
        for h in range(2):
            e(f"s_mov_b32 s38, {WS_G + p*4096 + h*512}")
            e(f"buffer_load_dwordx2 {v(GR+4*p+2*h,2)}, v17, s[48:51], s38 offen", tag="g")
    e("s_lshl_b32 s38, s25, 3"); e("v_mov_b32 v19, s38")
    e("buffer_load_dwordx2 v[48:49], v19, s[56:59], 0 offen", tag="g")
    I1 = 104; I2 = 108
    e("v_and_b32 v5, 15, v0"); e("v_lshrrev_b32 v6, 4, v0")
    e("v_lshlrev_b32 v7, 3, v6"); e("v_sub_u32 v7, v5, v7")
    e("v_add_u32 v8, 16, v7")
    for base, jr in ((I1, 7), (I2, 8)):
        for d_ in range(4):
            e(f"v_mov_b32 v{base+d_}, 0")
            e(f"v_cmp_eq_u32 vcc, {2*d_}, v{jr}"); e(f"v_mov_b32 v9, 0x3f80"); e(f"v_cndmask_b32 v{base+d_}, v{base+d_}, v9, vcc")
            e(f"v_cmp_eq_u32 vcc, {2*d_+1}, v{jr}"); e(f"v_mov_b32 v9, 0x3f800000"); e(f"v_cndmask_b32 v{base+d_}, v{base+d_}, v9, vcc")
    e("v_lshrrev_b32 v9, 1, v6"); e("s_lshl_b32 s34, s27, 2"); e("v_add_u32 v9, s34, v9")
    e("v_lshrrev_b32 v10, 2, v5"); e("s_and_b32 s34, s27, 1"); e("s_lshl_b32 s34, s34, 1"); e("v_xor_b32 v10, s34, v10")
    e("v_lshlrev_b32 v11, 6, v9"); e("v_lshl_add_u32 v11, v10, 4, v11"); e("v_and_b32 v10, 3, v5"); e("v_lshl_add_u32 v11, v10, 2, v11")
    e("v_and_b32 v10, 1, v6"); e("v_lshl_add_u32 v11, v10, 1, v11"); e(f"v_add_u32 v11, {UT0 + 1024}, v11")
    e("s_lshl_b32 s34, s27, 12"); e(f"s_add_u32 s34, s34, {BASE0}"); e("v_lshlrev_b32 v12, 4, v0"); e("v_add_u32 v12, s34, v12")
    e("s_add_u32 s34, s30, 25856"); e("v_lshlrev_b32 v13, 4, v0"); e("v_add_u32 v13, s34, v13")
    UR = 64; YR = 96
    for i in range(32): e(f"v_mov_b32 v{UR+i}, 0")
    for p in range(4):
        for h in range(2):
            for ch in range(4): e(f"ds_read_u16_d16_hi v{UR + 8*p + 4*h + ch}, v11 offset:{ch*UTP + p*1024 + h*128}", tag="ur")
    nextload = pdepth
    stamp_to(83)
    for p in range(4):
        for i in range(p*nsplit, (p+1)*nsplit):
            e.wait(vm=[("p", i)])
            r = PR + 4*(i % pdepth)
            for h in range(2):
                acc = PA + 8*p + 4*h
                c = "0" if i == p*nsplit else v(acc,4)
                e(f"v_mfma_f32_16x16x32_bf16 {v(acc,4)}, {v((I1,I2)[h],4)}, {v(r,4)}, {c}")
            if nextload < NP: pload(nextload); nextload += 1
        stamp_to((84, 85, 87, 88)[p])
        if p == 0:
            e.wait(ds=["ur"])
            e.wait(vm=["g"])
            e(f"v_lshlrev_b32 v{DR}, 16, v48"); e(f"v_and_b32 v{DR+1}, 0xffff0000, v48"); e(f"v_lshlrev_b32 v{DR+2}, 16, v49"); e(f"v_and_b32 v{DR+3}, 0xffff0000, v49")
        for h in range(2):
            g_ = GR + 4*p + 2*h
            for ch in range(4): e(f"v_mul_f32 v{UR+8*p+4*h+ch}, v{UR+8*p+4*h+ch}, v{DR+ch}")
            for ch in range(4): e(f"v_mul_f32 v{PA+8*p+4*h+ch}, v{g_+1}, v{PA+8*p+4*h+ch}")
            for ch in range(4): e(f"v_fma_f32 v{PA+8*p+4*h+ch}, v{g_}, v{UR+8*p+4*h+ch}, v{PA+8*p+4*h+ch}")
        bo = (p & 1)*2048
        for h in range(2):
            e(f"ds_write_b128 v{12 if p < 2 else 13}, {v(PA+8*p+4*h,4)} offset:{bo + h*1024}", tag=("bw", p))
        if p == 1:
            e.wait(ds=[("bw", p)]); e("s_barrier")
        if p == 3:
            e.wait(ds=[("bw", p)]); e("s_barrier")
    e.raw(f"{Lfin}:")
    e.reset_state()
    if profile:
        e("s_waitcnt vmcnt(0)"); stamp_to(86)
        e("s_memrealtime s[76:77]"); e("s_waitcnt lgkmcnt(0)")
        e("s_load_dwordx2 s[22:23], s[0:1], 112"); e("s_waitcnt lgkmcnt(0)")
        e("s_add_u32 s22, s22, 0xC900000"); e("s_addc_u32 s23, s23, 0")
        mksrd(48, 22, 1<<20)
        e("s_lshl_b32 s34, s2, 3"); e("s_add_u32 s34, s34, s24"); e("s_lshl_b32 s34, s34, 6")
        for i, r in enumerate((81, 82, 83, 84, 85, 87, 88, 86)):
            e(f"s_sub_u32 s35, s{r}, s80"); e("v_mov_b32 v1, s35"); e(f"v_mov_b32 v2, {4*i}")
            e("buffer_store_dword v1, v2, s[48:51], s34 offen")
        e("s_sub_u32 s35, s76, s90"); e("v_mov_b32 v1, s35"); e("v_mov_b32 v2, 60"); e("buffer_store_dword v1, v2, s[48:51], s34 offen")
        e("v_mov_b32 v1, s90"); e("v_mov_b32 v2, 56"); e("buffer_store_dword v1, v2, s[48:51], s34 offen")
    e.raw(f"{Lend}:")
    e.raw("s_endpgm")
    print(f"K2: {e.count} instrs, nops inserted {e.nops_inserted}", file=sys.stderr)
    return k

if __name__ == "__main__":
    k = gen_k2(profile=("prof" in sys.argv[2:]))
    open(sys.argv[1], "w").write(build([k]))
```

```python
import sys
sys.path.insert(0, "gen")
from asmlib import *
from f1 import gen_f1
from f2 import gen_f2
from k2 import gen_k2
def parse(args):
    kw = {}
    for x in args:
        if "=" in x:
            a_, b_ = x.split("="); kw[a_] = int(b_) if b_.lstrip("-").isdigit() else b_
    return kw
prof = "prof" in sys.argv[2:]
kw = parse(sys.argv[2:])
kw2 = {k_[3:]: v_ for k_, v_ in kw.items() if k_.startswith("k2_")}
kw1 = {k_: v_ for k_, v_ in kw.items() if not k_.startswith("k2_")}
both = "both" in sys.argv[2:]
if "pair" in sys.argv[2:]:
    k1 = gen_f2(name="ffn_fused_kernel", profile=both, **kw1); kw2["nsplit"] = 8
else:
    k1 = gen_f1(name="ffn_fused_kernel", profile=both, **kw1)
k2 = gen_k2(name="ssm_mix_kernel", profile=prof or both, **kw2)
open(sys.argv[1], "w").write(build([k1, k2]))
```

```python
import sys, math
sys.path.insert(0, "gen")
from asmlib import *
from emit import E
LOG2E = 1.4426950408889634
WS_P = 0
P_BYTES = 16*144*2048*8
WS_UT = 0x2800000
WS_G = 0x2B00000
WS_KX = 0x2C00000
KXP = 5120
WS_USED = 0x3000000
SLOT = 16384
HREG = 5*SLOT
LDS_BYTES = 10*SLOT

ACC = lambda buf, a, b: 128 + buf*64 + (a*2+b)*16
ACC2 = lambda buf, a, b: (160 if buf == 0 else 64) + (a*2+b)*16
def XF(ks, b):
    return a((ks*2+b)*4, 4) if ks < 32 else v(96 + (ks-32)*8 + b*4, 4)
HF = lambda ks, b: a((ks*2+b)*4, 4)
AF = lambda st, a_: 72 + st*8 + a_*4
AF2 = lambda st, a_: 144 + st*12 + a_*4
OUT = lambda i: 64 + 4*i
TMP = 56
SX = 56; SW = 65; SD = 74
SU = 83
VW = 4; VTR = 8; VHW = 14; VK0 = 15; VWH = 16; VTRH = 18; VX = 21; VXR = 25; VXA = 29
VHWH = 33; VD = 34; VT2 = 37; VP = 46; VHR = 47; VHA = 48
STAMP0 = 92

def gen_f1(name="f1_kernel", store_flags="sc1", prefetch_code=True, profile=False, abl=(), init_units=4,
           ev0=2, ev1=4, evh=4, ev2=3, rot=1, chunks=(3,3,3), budget=5, rd_per_gap=2, fine=-1, side_flags="", dbg=0, kgen=0, budget0=5, pgm=1, xt_at=20, xslots=3, sfl=""):
    k = K(name, (256,1,1), (256,1,1), LDS_BYTES, 256, agpr=256, sgpr=102)
    e = E(k)
    stamps = []
    def stamp():
        if profile:
            r = ([92,93,94,95,96,97,24,23,50,52,51,49])[len(stamps)]; stamps.append(r)
            e(f"s_memtime s[40:41]"); e("s_waitcnt lgkmcnt(0)"); e(f"s_mov_b32 s{r}, s40")
    Lend = k.label("end")
    e(f"s_cmp_ge_u32 s2, {192 if 'no64' in abl else 256}")
    e(f"s_cbranch_scc1 {Lend}")
    if profile:
        e("s_memrealtime s[42:43]"); e("s_waitcnt lgkmcnt(0)"); e("s_mov_b32 s99, s42")
    stamp()
    e("s_load_dwordx2 s[32:33], s[0:1], 0")
    e("s_load_dwordx4 s[36:39], s[0:1], 64")
    e("s_load_dwordx2 s[44:45], s[0:1], 80")
    e("s_load_dwordx2 s[34:35], s[0:1], 112")
    e("s_load_dwordx2 s[100:101], s[0:1], 88")
    if kgen:
        e("s_load_dwordx8 s[76:83], s[0:1], 8")
        e("s_load_dwordx2 s[84:85], s[0:1], 40")
    if prefetch_code:
        Lpf = k.label("pf")
        e("s_getpc_b64 s[40:41]")
        e.raw(f"{Lpf}:")
        e("v_min_u32 v1, 15, v0")
        e("s_lshr_b32 s43, s2, 3")
        e("s_lshl_b32 s43, s43, 4")
        e("v_add_u32 v1, s43, v1")
        e("v_lshlrev_b32 v1, 7, v1")
        e(f"v_min_u32 v1, ({Lend} - {Lpf}), v1")
        e("global_load_dword v63, v1, s[40:41]", tag="pf")
    e("v_lshrrev_b32 v1, 6, v0")
    e("v_and_b32 v0, 63, v0")
    e("v_readfirstlane_b32 s20, v1")
    e("s_and_b32 s42, s2, 7")
    e("s_lshr_b32 s43, s2, 3")
    e("s_and_b32 s46, s42, 1"); e("s_lshl_b32 s46, s46, 3"); e("s_and_b32 s47, s43, 7"); e("s_add_u32 s46, s46, s47")
    e("s_lshr_b32 s48, s42, 1"); e("s_lshl_b32 s48, s48, 2"); e("s_lshr_b32 s49, s43, 3"); e("s_add_u32 s48, s48, s49")
    e("s_lshr_b32 s21, s20, 1")
    e("s_and_b32 s22, s20, 1")
    e("s_mul_i32 s50, s48, 576")
    e("s_and_b32 s51, s48, 1")
    e("s_lshl_b32 s52, s51, 6"); e("s_add_u32 s52, s52, s50")
    e("s_xor_b32 s53, s51, 1"); e("s_lshl_b32 s53, s53, 9"); e("s_add_u32 s53, s53, s50")
    e("s_lshl_b32 s24, s46, 2"); e("s_add_u32 s24, s24, s20"); e(f"s_mul_i32 s24, s24, {32*1152}")
    e(f"s_mul_i32 s23, s20, {16*9216}")
    e(f"s_mov_b32 s{SX}, s24"); e(f"s_mov_b32 s{SW}, s23")
    e("s_lshl_b32 s54, s49, 1"); e("s_add_u32 s54, s54, s47"); e("s_bfe_u32 s55, s42, 0x10001"); e("s_add_u32 s54, s54, s55"); e("s_and_b32 s54, s54, 7")
    if not rot: e("s_mov_b32 s54, 0")
    for l in range(1, 9):
        e("s_add_u32 s55, s54, 1")
        e(f"s_lshl_b32 s29, s55, 7"); e(f"s_add_u32 s{SX+l}, s24, s29")
        e(f"s_mul_i32 s29, s55, {64*9216}"); e(f"s_add_u32 s{SW+l}, s23, s29")
        if l < 8:
            e("s_add_u32 s54, s54, 1"); e("s_and_b32 s54, s54, 7")
    e("s_lshl_b32 s30, s20, 12")
    e("s_lshl_b32 s31, s20, 11")
    c0 = -2.0*math.sqrt(2.0/math.pi)*LOG2E; c1 = c0*0.044715
    e(f"s_mov_b32 s27, {fimm(c1)}")
    e(f"v_mov_b32 v{VK0}, {fimm(c0)}")
    e("v_lshrrev_b32 v1, 3, v0"); e("v_and_b32 v2, 7, v0"); e("v_bfe_u32 v3, v0, 4, 1")
    e("s_movk_i32 s55, 9216"); e("v_mul_lo_u32 v1, v1, s55")
    for q in range(4):
        m = q >> 1
        e(f"v_or_b32 v{VW+q}, {m<<1}, v3")
        e(f"v_lshlrev_b32 v{VW+q}, 1, v{VW+q}")
        e(f"v_xor_b32 v{VW+q}, v{VW+q}, v2")
        e(f"v_lshl_add_u32 v{VW+q}, v{VW+q}, 4, v1")
        add = (8*9216 if q & 1 else 0) - 1024*q + (2048 if m else 0)
        if add: e(f"v_add_u32 v{VW+q}, {add}, v{VW+q}")
    e("v_lshrrev_b32 v1, 3, v0"); e("s_movk_i32 s55, 1152"); e("v_mul_lo_u32 v1, v1, s55"); e("v_lshrrev_b32 v3, 4, v0")
    for i in range(4):
        e(f"v_add_u32 v{VX+i}, {4*i}, v3")
        e(f"v_and_b32 v{VX+i}, 7, v{VX+i}")
        e(f"v_xor_b32 v{VX+i}, v{VX+i}, v2")
        e(f"v_lshl_add_u32 v{VX+i}, v{VX+i}, 4, v1")
        add = 8*i*1152 - 1024*i
        if add: e(f"v_add_u32 v{VX+i}, {add}, v{VX+i}")
    if profile and fine < 0: stamp()
    e("s_waitcnt lgkmcnt(0)")
    srd(e, 4, 32, 2048*1152)
    e("s_sub_u32 s38, s38, 2048"); e("s_subb_u32 s39, s39, 0")
    e("s_add_u32 s8, s36, s52"); e("s_addc_u32 s9, s37, 0"); e("s_and_b32 s9, s9, 0xffff")
    e(f"s_mov_b32 s10, {576*9216}"); e("s_mov_b32 s11, 0x00020000")
    e("s_add_u32 s12, s38, s52"); e("s_addc_u32 s13, s39, 0"); e("s_and_b32 s13, s13, 0xffff")
    e(f"s_mov_b32 s14, {576*9216 + 2048}"); e("s_mov_b32 s15, 0x00020000")
    units = []
    for c in range(9):
        units.append(("X", 0, c)); units.append(("W", 0, c))
    for s_ in range(1, 4):
        for c in range(9): units.append(("W", s_, c))
    for c in range(5): units.append(("HF", 4, c))
    for dc in range(len(chunks)):
        for c in range(9): units.append(("D", dc, c))
    phases = []
    n = 0
    for c in range(9): phases.append(([n, n+1], 0, 4*c, 4)); n += 2
    for s_ in range(1, 4):
        for c in range(9): phases.append(([n], s_, 4*c, 4)); n += 1
    for c in range(5): phases.append(([n], 4, 8*c, 8 if c < 4 else 4)); n += 1
    for dc in range(len(chunks)):
        for c in range(9): phases.append(([n], 5+dc, 2*c, 2)); n += 1
    unit_phase = {}
    for pi, ph in enumerate(phases):
        for u in ph[0]: unit_phase[u] = pi
    first_g2 = next(pi for pi, ph in enumerate(phases) if ph[1] == 5)
    first_g2c1 = next(pi for pi, ph in enumerate(phases) if ph[1] == 6)
    free_after = {i*SLOT: -1 for i in range(5)}
    first_ph = lambda sg_: next(pi for pi, ph in enumerate(phases) if ph[1] == sg_)
    expire = {}
    if xslots >= 1: free_after[HREG + 14*4096] = -1; expire[HREG + 14*4096] = first_ph(4)
    if xslots >= 2: free_after[HREG + 10*4096] = -1; expire[HREG + 10*4096] = first_ph(3)
    if xslots >= 3: free_after[HREG + 6*4096] = -1; expire[HREG + 6*4096] = first_ph(2)
    slot_of = {}; issue_after = {}
    last = -1
    g2_ready = False
    for u in range(len(units)):
        if units[u][0] == "D" and not g2_ready:
            g2_ready = True
            old_fa = {s_: fa for s_, fa in free_after.items() if s_ < HREG}
            free_after = {}; expire = {}
            US = 12288
            for i in range(6):
                lo, hi = i*US, (i+1)*US
                free_after[lo] = max(fa for s_, fa in old_fa.items() if s_ < hi and s_ + SLOT > lo)
            for i in range(6):
                free_after[HREG + i*US] = first_g2c1
        cand = [s_ for s_ in free_after if s_ not in expire or unit_phase[u] + 1 <= expire[s_]]
        sl = min(cand, key=lambda s_: (max(free_after[s_], last), s_))
        ia = max(free_after[sl], last)
        slot_of[u] = sl; issue_after[u] = ia; last = ia
        free_after[sl] = unit_phase[u] + 1
    col_of_chunk = [sum(chunks[:i])*64 for i in range(len(chunks))]
    def dma_unit(n):
        kind, g, c = units[n]
        slot = slot_of[n]
        out = []
        if kind == "X":
            out.append(f"s_add_u32 m0, s30, {slot}")
            for i in range(4):
                off = f" offset:{1024*i}" if i else ""
                out.append((f"buffer_load_dwordx4 v{VX+i}, s[4:7], s{SX+c} offen{off} lds", ("dma", n)))
        elif kind == "W":
            if c == 0 and g > 0:
                out.append("s_add_u32 s8, s8, 128"); out.append("s_addc_u32 s9, s9, 0")
                out.append("s_add_u32 s12, s12, 128"); out.append("s_addc_u32 s13, s13, 0")
            out.append(f"s_add_u32 m0, s30, {slot}")
            for q in range(4):
                srd_ = "s[8:11]" if q < 2 else "s[12:15]"
                off = f" offset:{1024*q}" if q else ""
                out.append((f"buffer_load_dwordx4 v{VW+q}, {srd_}, s{SW+c} offen{off} lds", ("dma", n)))
        elif kind == "HF":
            if c == 0:
                out.append("s_add_u32 s8, s36, s53"); out.append("s_addc_u32 s9, s37, 0"); out.append("s_and_b32 s9, s9, 0xffff")
                out.append("s_add_u32 s12, s38, s53"); out.append("s_addc_u32 s13, s39, 0"); out.append("s_and_b32 s13, s13, 0xffff")
            nk = 2 if c < 4 else 1
            for ee in range(nk):
                out.append(f"s_add_u32 m0, s31, {slot + ee*8192}")
                out.append((f"buffer_load_dwordx4 v{VWH}, s[8:11], s{SW+2*c+ee} offen lds", ("dma", n)))
                out.append((f"buffer_load_dwordx4 v{VWH+1}, s[12:15], s{SW+2*c+ee} offen offset:1024 lds", ("dma", n)))
        else:
            nt = chunks[g]
            assert nt == 3
            if c == 0 and g > 0:
                out.append(f"s_add_u32 s4, s4, {chunks[g-1]*128}"); out.append("s_addc_u32 s5, s5, 0")
            out.append(f"s_add_u32 m0, s28, {slot}")
            for i in range(3):
                off = f" offset:{1024*i}" if i else ""
                out.append((f"buffer_load_dwordx4 v{VD+i}, s[4:7], s{SD+c} offen{off} lds", ("dma", n)))
        return out
    def emit_list(lst):
        for it in lst:
            if isinstance(it, tuple) and it[0] == "WAITDS": e.wait(ds=[it[1]])
            elif isinstance(it, tuple) and it[0] == "WAITVM": e.wait(vm=[it[1]])
            elif isinstance(it, tuple): e(it[0], tag=it[1])
            else: e(it)
    next_dma = 0
    dma_q = []
    def release(bar):
        nonlocal next_dma
        while next_dma < len(units) and issue_after[next_dma] <= bar:
            if units[next_dma][0] == "D" and units[next_dma][1] == 0 and units[next_dma][2] == 0:
                dma_q.extend(g2_setup())
            if "nodma" in abl and next_dma >= init_units: pass
            else: dma_q.extend(dma_unit(next_dma))
            next_dma += 1
    def is_dma(it): return isinstance(it, tuple) and it[1] is not None and it[1][0] == "dma"
    def pop_dma(n):
        out = []
        while dma_q and n > 0:
            it = dma_q.pop(0); out.append(it)
            if is_dma(it): n -= 1
        return out
    def g2_setup():
        l = []
        l.append("s_mov_b32 s4, s44"); l.append("s_and_b32 s5, s45, 0xffff"); l.append(f"s_mov_b32 s6, {4608*1152}")
        return l
    release(-1)
    u0 = pop_dma(4); u1 = pop_dma(4)
    La = k.label("ord"); Lb = k.label("ordd")
    e("s_add_u32 s55, s47, s49"); e("s_and_b32 s55, s55, 1"); e("s_cmp_eq_u32 s55, 0")
    e(f"s_cbranch_scc1 {La}")
    vm_save = list(e.vm)
    emit_list(u1); emit_list(u0)
    e(f"s_branch {Lb}")
    e.raw(f"{La}:")
    e.vm = list(vm_save)
    emit_list(u0); emit_list(u1)
    e.raw(f"{Lb}:")
    e.m0_w = -100
    pending_init = init_units - 2
    if profile and fine < 0: stamp()
    if kgen:
        e("s_lshl_b32 s55, s2, 2"); e("s_add_u32 s55, s55, s20"); e("s_sub_u32 s26, s55, 576"); e("s_cmp_ge_u32 s55, 576"); e("s_cselect_b32 s91, s26, s55")
        e("s_lshl_b32 s55, s91, 8")
        e("v_lshlrev_b32 v233, 1, v0")
        for i in range(4):
            e(f"s_mov_b32 s40, s{76+2*i}"); e(f"s_and_b32 s41, s{77+2*i}, 0xffff"); e(f"s_mov_b32 s42, {576*256}"); e("s_mov_b32 s43, 0x00020000")
            e(f"buffer_load_ushort v{224+i}, v233, s[40:43], s55 offen", tag="kp")
            e(f"buffer_load_ushort v{228+i}, v233, s[40:43], s55 offen offset:128", tag="kp")
        e("s_mov_b32 s40, s84"); e("s_and_b32 s41, s85, 0xffff"); e("s_mov_b32 s42, 1152")
        e("s_lshl_b32 s55, s91, 1"); e("v_mov_b32 v233, s55")
        e("buffer_load_ushort v232, v233, s[40:43], 0 offen", tag="kp")
        e(f"s_mul_i32 s29, s91, {KXP}"); e(f"s_add_u32 s29, s29, {WS_KX}")
    srd(e, 16, 34, WS_USED)
    e("s_mul_i32 s24, s48, 288"); e("s_lshl_b32 s55, s20, 3"); e("s_add_u32 s24, s24, s55"); e("s_mul_i32 s24, s24, 1152")
    for l in range(9):
        if l < 8:
            if rot: e(f"s_add_u32 s54, s47, {l}"); e("s_and_b32 s54, s54, 7")
            else: e(f"s_mov_b32 s54, {l}")
            e("s_add_u32 s54, s54, s51")
        else:
            e("s_xor_b32 s54, s51, 1"); e("s_lshl_b32 s54, s54, 3")
        e(f"s_lshl_b32 s{SU+l}, s54, 13")
        e(f"s_mul_i32 s55, s54, {32*1152}"); e(f"s_add_u32 s{SD+l}, s24, s55")
    e("s_mul_i32 s28, s20, 3072")
    GST = 16*16384 if pgm else 16384
    if pgm:
        e("s_mul_i32 s25, s22, 24"); e("s_lshl_b32 s25, s25, 4"); e("s_add_u32 s25, s25, s48"); e("s_lshl_b32 s25, s25, 14")
    else:
        e("s_mul_i32 s25, s48, 144"); e("s_mul_i32 s55, s22, 24"); e("s_add_u32 s25, s25, s55"); e("s_lshl_b32 s25, s25, 14")
    e("s_lshl_b32 s55, s46, 1"); e("s_add_u32 s55, s55, s21"); e("s_lshl_b32 s55, s55, 9"); e("s_add_u32 s25, s25, s55")
    e("v_lshrrev_b32 v1, 4, v0"); e("v_bfe_u32 v2, v0, 2, 2"); e("v_and_b32 v3, 3, v0")
    T0, T1, T2, T3 = 56, 57, 58, 59
    e(f"v_lshrrev_b32 v{T0}, 1, v3")
    e(f"v_lshrrev_b32 v{T1}, 1, v1")
    e(f"v_lshl_add_u32 v{T1}, v{T1}, 3, v2")
    e(f"v_lshrrev_b32 v{T2}, 1, v2")
    e(f"v_lshl_or_b32 v60, v{T0}, 1, v{T2}")
    e(f"v_and_b32 v{T3}, 1, v1")
    e(f"v_lshlrev_b32 v61, 4, v{T3}")
    e("v_and_b32 v62, 1, v3")
    e("v_lshl_add_u32 v61, v62, 3, v61")
    e(f"v_lshlrev_b32 v62, 11, v{T0}")
    e(f"v_lshl_add_u32 v62, v{T1}, 7, v62")
    e("v_add_u32 v62, v62, v61")
    for a_ in range(2):
        e("s_lshl_b32 s55, s22, 1")
        if a_: e("s_add_u32 s55, s55, 1")
        e(f"v_xor_b32 v{VTR+1}, s55, v60")
        e(f"v_lshl_add_u32 v{VTR+3*a_}, v{VTR+1}, 5, v62") if a_ == 1 else None
        if a_ == 0:
            e(f"v_lshl_add_u32 v{VTR}, v{VTR+1}, 5, v62")
    e(f"v_add_u32 v{VTR+1}, 0x10000, v{VTR}")
    e(f"v_add_u32 v{VTR+4}, 0x10000, v{VTR+3}")
    e(f"v_add_u32 v{VTR+2}, 0x20000, v{VTR}")
    e(f"v_add_u32 v{VTR+5}, 0x20000, v{VTR+3}")
    e(f"v_lshlrev_b32 v62, 10, v{T0}")
    e(f"v_lshl_add_u32 v62, v{T1}, 6, v62")
    e("v_add_u32 v62, v62, v61")
    e(f"v_xor_b32 v60, s22, v{T0}")
    e(f"v_lshl_add_u32 v{VTRH}, v60, 5, v62")
    e(f"v_add_u32 v{VTRH+1}, 0x10000, v{VTRH}")
    e(f"v_add_u32 v{VTRH+2}, 0x20000, v{VTRH}")
    e("v_lshrrev_b32 v60, 1, v1"); e("v_lshl_add_u32 v60, v60, 2, v2")
    e("s_movk_i32 s55, 384"); e("v_mul_lo_u32 v60, v60, s55")
    e(f"v_lshl_add_u32 v60, v{T3}, 5, v60"); e("v_lshl_add_u32 v60, v3, 3, v60")
    for a_ in range(3):
        e("s_mul_i32 s55, s22, 3"); e(f"s_add_u32 s55, s55, {a_}")
        e(f"v_xor_b32 v61, s55, v{T2}")
        e(f"v_lshl_add_u32 v{VT2+3*a_}, v61, 6, v60")
        e(f"v_add_u32 v{VT2+3*a_+1}, 0x10000, v{VT2+3*a_}")
        e(f"v_add_u32 v{VT2+3*a_+2}, 0x20000, v{VT2+3*a_}")
    for i in range(3):
        e(f"v_add_u32 v60, {64*i}, v0")
        e("v_mul_u32_u24 v61, 2731, v60"); e("v_lshrrev_b32 v61, 16, v61")
        e("v_mul_u32_u24 v62, 24, v61"); e("v_sub_u32 v62, v60, v62")
        e("v_bfe_u32 v60, v61, 1, 1"); e("v_lshlrev_b32 v60, 2, v60")
        e("v_xor_b32 v62, v62, v60")
        e("v_mul_u32_u24 v61, 1152, v61")
        e(f"v_lshl_add_u32 v{VD+i}, v62, 4, v61")
        if i: e(f"v_subrev_u32 v{VD+i}, {1024*i}, v{VD+i}")
    e("v_lshrrev_b32 v1, 2, v0"); e("s_movk_i32 s55, 9216"); e("v_mul_lo_u32 v1, v1, s55"); e("v_and_b32 v2, 3, v0")
    e(f"v_lshl_add_u32 v{VWH}, v2, 4, v1"); e("v_xor_b32 v2, 2, v2")
    e(f"v_lshl_add_u32 v{VWH+1}, v2, 4, v1"); e(f"v_add_u32 v{VWH+1}, 1024, v{VWH+1}")
    e("v_and_b32 v1, 31, v0"); e("s_lshl_b32 s55, s21, 6"); e("v_add_u32 v1, s55, v1"); e("v_lshlrev_b32 v1, 7, v1")
    e("v_lshrrev_b32 v2, 5, v0"); e("v_bfe_u32 v3, v0, 1, 3"); e("v_xor_b32 v3, v2, v3")
    e(f"v_lshl_add_u32 v{VXR}, v3, 4, v1")
    for ks in range(1, 4): e(f"v_xor_b32 v{VXR+ks}, {ks*32}, v{VXR}")
    e("v_and_b32 v1, 31, v0"); e("v_lshlrev_b32 v1, 3, v1"); e(f"v_lshl_add_u32 v{VP}, v2, {18 if pgm else 14}, v1")
    e("v_lshlrev_b32 v1, 4, v0"); e("s_lshl_b32 s55, s21, 11"); e(f"s_add_u32 s55, s55, {HREG}"); e(f"v_add_u32 v{VHR}, s55, v1")
    e("s_add_u32 s55, s51, s22"); e("s_lshl_b32 s55, s55, 13"); e(f"v_add_u32 v{VHW}, s55, v{VHR}")
    e("s_xor_b32 s55, s51, 1"); e("s_lshl_b32 s55, s55, 4"); e("s_add_u32 s55, s55, s22"); e("s_lshl_b32 s55, s55, 12")
    e(f"v_add_u32 v{VHWH}, s55, v{VHR}")
    steps = []
    for pi, (us, sg, k0, nks) in enumerate(phases):
        for q in range(nks): steps.append((pi, q, sg, k0+q))
    def reads_for(si):
        pi, q, sg, ks = steps[si]
        us = phases[pi][0]
        out = []; st = si % 3
        if sg == 0:
            xs = slot_of[us[0]]
            if q == 0:
                for kk in range(4): out.append((f"v_add_u32 v{VXA+kk}, {xs}, v{VXR+kk}", None))
            for b in range(2):
                off = f" offset:{4096*b}" if b else ""
                out.append((f"ds_read_b128 {XF(ks,b)}, v{VXA+q}{off}", ("rd", si)))
        ws = slot_of[us[-1]]
        if sg < 4:
            for a_ in range(2):
                for t in range(2):
                    off = ws + q*4096 + t*512
                    out.append((f"ds_read_b64_tr_b16 {v(AF(st,a_)+2*t,2)}, v{VTR+3*a_+(off>>16)} offset:{off & 0xffff}", ("rd", si)))
        elif sg == 4:
            for t in range(2):
                off = ws + q*2048 + t*256
                out.append((f"ds_read_b64_tr_b16 {v(AF(st,0)+2*t,2)}, v{VTRH+(off>>16)} offset:{off & 0xffff}", ("rd", si)))
        else:
            if sg == 5:
                if q == 0: out.append((f"v_add_u32 v{VHA}, s{SU+ks//2}, v{VHR}", None))
                for b in range(2):
                    out.append((f"ds_read_b128 {HF(ks,b)}, v{VHA} offset:{q*4096 + b*1024}", ("rd", si)))
            for a_ in range(chunks[sg-5]):
                for t in range(2):
                    off = ws + q*16*384 + t*8*384
                    out.append((f"ds_read_b64_tr_b16 {a(AF2(st,a_)+2*t,2)}, v{VT2+3*a_+(off>>16)} offset:{off & 0xffff}", ("rd", si)))
        return out
    def barrier_for(pi):
        if "nodma" not in abl:
            for u in phases[pi][0]:
                assert u < next_dma and not any(isinstance(x, tuple) and x[1] == ("dma", u) for x in dma_q), f"DMA for unit {u} not issued before its barrier"
        if not ("novm" in abl and phases[pi][1] >= 6): e.wait(vm=[("dma", u) for u in phases[pi][0]])
        e.wait_all_ds()
        if "nobar" not in abl or pi == 0: e("s_barrier")
        release(pi)
    outsel = [0]
    def epi_tile(buf, a_, b, sg):
        A0 = ACC(buf, a_, b)
        o = OUT(outsel[0]); outsel[0] ^= 1
        l = []
        for hh in range(2):
            r0 = A0 + 8*hh; t = TMP + 4*hh
            for i in range(4): l.append(f"v_mul_f32 v{t+i}, v{r0+i}, v{r0+i}")
            for i in range(4): l.append(f"v_mul_f32 v{r0+4+i}, v{r0+i}, v{r0+4+i}")
            for i in range(4): l.append(f"v_fma_f32 v{t+i}, v{t+i}, s27, v{VK0}")
            for i in range(4): l.append(f"v_mul_f32 v{r0+i}, v{t+i}, v{r0+i}")
            for i in range(4): l.append(f"v_exp_f32 v{r0+i}, v{r0+i}")
            for i in range(4): l.append(f"v_add_f32 v{r0+i}, 1.0, v{r0+i}")
            for i in range(4): l.append(f"v_rcp_f32 v{r0+i}, v{r0+i}")
            for i in range(4): l.append(f"v_mul_f32 v{r0+4+i}, v{r0+4+i}, v{r0+i}")
            l.append(f"v_cvt_pk_bf16_f32 v{o+2*hh}, v{r0+4}, v{r0+5}")
            l.append(f"v_cvt_pk_bf16_f32 v{o+2*hh+1}, v{r0+6}, v{r0+7}")
        if sg < 4: l.append((f"ds_write_b128 v{VHW}, {v(o,4)} offset:{(4*sg+a_)*4096 + b*1024}", ("hw", 0)))
        else: l.append((f"ds_write_b128 v{VHWH}, {v(o,4)} offset:{b*1024}", ("hw", 0)))
        return l
    psel = [0]
    def epi2(dc):
        buf = dc & 1; l = []
        g0 = col_of_chunk[dc]//4
        for a_ in range(chunks[dc]):
            for q in range(4):
                l.append(f"s_add_u32 s26, s25, {(g0 + 8*a_ + 2*q)*GST}")
                for b in range(2):
                    r = ACC2(buf, a_, b) + 4*q
                    o = TMP + 2*(psel[0] & 3); psel[0] += 1
                    l.append(f"v_cvt_pk_bf16_f32 v{o}, v{r}, v{r+1}")
                    l.append(f"v_cvt_pk_bf16_f32 v{o+1}, v{r+2}, v{r+3}")
                    off = f" offset:{256*b}" if b else ""
                    fl = store_flags if not sfl else {"p": "", "s": "sc1", "n": "nt"}[sfl[dc]]
                    l.append((f"buffer_store_dwordx2 {v(o,2)}, v{VP}, s[16:19], s26 offen{off} {fl}".rstrip(), ("st", 0)))
        return l
    emit_list(pop_dma(4*pending_init))
    GX = 96; GW = 106; GT = 112
    def gate_loads():
        l = []
        l.append("v_lshlrev_b32 v72, 2, v0")
        l.append("s_lshl_b32 s55, s46, 4"); l.append("s_add_u32 s55, s55, s48"); l.append("s_lshl_b32 s55, s55, 2"); l.append("s_add_u32 s55, s55, s20")
        l.append("s_lshl_b32 s26, s55, 1")
        l.append("s_lshl_b32 s3, s26, 3"); l.append(f"s_add_u32 s3, s3, {WS_G}")
        l.append("s_mul_i32 s29, s26, 1152")
        l.append("s_mov_b32 s8, s32"); l.append("s_and_b32 s9, s33, 0xffff"); l.append(f"s_mov_b32 s10, {2048*1152}")
        l.append("s_mov_b32 s12, s100"); l.append("s_and_b32 s13, s101, 0xffff"); l.append("s_mov_b32 s14, 1152")
        for t in range(2):
            for i in range(5):
                l.append((f"buffer_load_dword v{GX+5*t+i}, v72, s[8:11], s29 offen offset:{1152*t + 256*i}", "gl"))
        for i in range(5):
            l.append((f"buffer_load_dword v{GW+i}, v72, s[12:15], 0 offen offset:{256*i}", "gl"))
        return l
    def gate_jobs():
        l = [("WAITVM", "gl")]
        for i in range(5):
            l.append(f"v_lshlrev_b32 v{GT+2*i}, 16, v{GW+i}"); l.append(f"v_and_b32 v{GT+2*i+1}, 0xffff0000, v{GW+i}")
        for t in range(2):
            acc = 76 + t
            for i in range(5):
                x = GX+5*t+i
                l.append(f"v_lshlrev_b32 v74, 16, v{x}"); l.append(f"v_and_b32 v75, 0xffff0000, v{x}")
                l.append(f"v_mul_f32 v74, v74, v{GT+2*i}"); l.append(f"v_mul_f32 v75, v75, v{GT+2*i+1}")
                l.append(f"v_cvt_pk_bf16_f32 v73, v74, v75")
                l.append(f"v_lshlrev_b32 v74, 16, v73"); l.append(f"v_and_b32 v75, 0xffff0000, v73")
                if i == 0: l.append(f"v_add_f32 v{acc}, v74, v75")
                else:
                    l.append(f"v_add_f32 v{acc}, v{acc}, v74"); l.append(f"v_add_f32 v{acc}, v{acc}, v75")
        for sh in (1, 2, 4, 8):
            for t in range(2): l.append(f"v_add_f32_dpp v{76+t}, v{76+t}, v{76+t} row_shr:{sh} row_mask:0xf bank_mask:0xf bound_ctrl:0")
        for t in range(2): l.append(f"v_add_f32_dpp v{76+t}, v{76+t}, v{76+t} row_bcast:15 row_mask:0xa bank_mask:0xf")
        for t in range(2): l.append(f"v_add_f32_dpp v{76+t}, v{76+t}, v{76+t} row_bcast:31 row_mask:0xc bank_mask:0xf")
        for t in range(2):
            r = 76+t; o = 80+2*t
            l.append(f"v_readlane_b32 s55, v{r}, 63"); l.append(f"v_mov_b32 v{r}, s55")
            l.append(f"v_cvt_pk_bf16_f32 v{r}, v{r}, v{r}"); l.append(f"v_lshlrev_b32 v{r}, 16, v{r}")
            l.append(f"v_mul_f32 v{r}, {fimm(-LOG2E)}, v{r}"); l.append(f"v_exp_f32 v{r}, v{r}"); l.append(f"v_add_f32 v{r}, 1.0, v{r}"); l.append(f"v_rcp_f32 v{r}, v{r}")
            l.append(f"v_cvt_pk_bf16_f32 v{o}, v{r}, v{r}"); l.append(f"v_lshlrev_b32 v{o}, 16, v{o}")
            l.append(f"v_sub_f32 v{o+1}, 1.0, v{o}"); l.append(f"v_cvt_pk_bf16_f32 v{o+1}, v{o+1}, v{o+1}"); l.append(f"v_lshlrev_b32 v{o+1}, 16, v{o+1}")
        l.append("v_mov_b32 v74, s3")
        l.append((f"buffer_store_dwordx4 v[80:83], v74, s[16:19], 0 offen {side_flags}".rstrip(), ("st", 0)))
        return l
    XTA = 192
    e("v_lshrrev_b32 v156, 4, v0"); e("v_bfe_u32 v157, v0, 2, 2"); e("v_and_b32 v158, 3, v0")
    for t in range(2):
        e(f"v_lshl_add_u32 v159, v156, 3, v157")
        if t: e("v_add_u32 v159, 4, v159")
        e("v_bfe_u32 v160, v159, 1, 3")
        e("v_lshrrev_b32 v161, 1, v158"); e("v_xor_b32 v160, v160, v161")
        e("v_lshlrev_b32 v159, 7, v159"); e("v_lshl_add_u32 v159, v160, 4, v159")
        e("v_and_b32 v161, 1, v158"); e("v_lshl_add_u32 v159, v161, 3, v159")
        e(f"v_add_u32 v{XTA+4*t}, s30, v159")
        for cb in range(1, 4): e(f"v_xor_b32 v{XTA+4*t+cb}, {32*cb}, v{XTA+4*t}")
    e("s_and_b32 s26, s48, 3"); e("s_lshl_b32 s26, s26, 5")
    for t in range(2): e(f"v_xor_b32 v{XTA+9+t}, s26, v{XTA+4*t}")
    e("v_and_b32 v159, 15, v0"); e("v_lshlrev_b32 v159, 12, v159"); e(f"v_lshl_add_u32 v{XTA+8}, v156, 4, v159")
    def xt_jobs(lam):
        l = []
        sl = slot_of[2*lam]
        assert sl + 0 < 65536 - 16384
        if lam == 1:
            for cb in range(4):
                for t in range(2): l.append((f"ds_read_b64_tr_b16 {v(XTA+12+4*cb+2*t,2)}, v{XTA+4*t+cb} offset:{sl}", ("xtr", lam)))
            l.append(f"s_sub_u32 s26, s{SX+1}, s{SX}"); l.append("s_lshl_b32 s26, s26, 11")
        else:
            for t in range(2): l.append((f"ds_read_b64_tr_b16 {v(XTA+28+2*t,2)}, v{XTA+9+t} offset:{sl}", ("xtr", lam)))
            l.append("s_and_b32 s26, s48, 3"); l.append("s_lshl_b32 s26, s26, 16")
        l.append("s_lshl_b32 s55, s46, 8"); l.append("s_add_u32 s26, s26, s55"); l.append("s_lshl_b32 s55, s20, 6"); l.append("s_add_u32 s26, s26, s55")
        l.append(f"s_add_u32 s26, s26, {WS_UT}")
        l.append(("WAITDS", ("xtr", lam)))
        if lam == 1:
            for cb in range(4):
                l.append((f"buffer_store_dwordx4 {v(XTA+12+4*cb,4)}, v{XTA+8}, s[16:19], s26 offen {side_flags}".rstrip(), ("st", 0)))
                if cb < 3: l.append(f"s_add_u32 s26, s26, {16*4096}")
        else:
            l.append((f"buffer_store_dwordx4 {v(XTA+28,4)}, v{XTA+8}, s[16:19], s26 offen {side_flags}".rstrip(), ("st", 0)))
        return l
    def kgen_jobs():
        l = []
        ROWP = 272
        def A(x): l.append(x)
        A(("WAITVM", "kp"))
        for i in range(9): A(f"v_lshlrev_b32 v{224+i}, 16, v{224+i}")
        for r in (232, 224, 228):
            A(f"v_mul_f32 v{r}, {fimm(LOG2E)}, v{r}"); A(f"v_exp_f32 v{r}, v{r}")
            A(f"v_cvt_pk_bf16_f32 v{r}, v{r}, v{r}"); A(f"v_lshlrev_b32 v{r}, 16, v{r}")
        for b in (224, 228):
            for i in range(4): A(f"v_mul_f32 v{b+i}, v{b+i}, v232")
            A(f"v_add_f32 v{b+2}, v{b+2}, v{b+2}"); A(f"v_add_f32 v{b+3}, v{b+3}, v{b+3}")
            A(f"v_mul_f32 v{b}, {fimm(-LOG2E)}, v{b}"); A(f"v_mul_f32 v{b+1}, {fimm(1.0/(2*math.pi))}, v{b+1}")
        A(f"s_lshl_b32 s26, s20, 14"); A(f"s_add_u32 s26, s26, {HREG}"); A("s_mov_b32 s28, s26") if False else None
        A("v_lshlrev_b32 v233, 2, v0"); A("v_add_u32 v233, s26, v233")
        A("v_and_b32 v246, 15, v0"); A("v_lshrrev_b32 v247, 4, v0")
        A(f"v_mul_u32_u24 v248, {ROWP}, v246"); A("v_lshl_add_u32 v248, v247, 4, v248"); A("v_add_u32 v248, s26, v248")
        EREG = {1: 192, 2: 194, 4: 196, 8: 198, 128: 200, 256: 202, 512: 204, 1024: 206}
        ps = list(EREG)
        KD = 234
        wsel = [0]
        def cmul(dst, a_, b_):
            A(f"v_pk_mul_f32 {v(dst,2)}, {v(a_,2)}, {v(b_,2)} op_sel:[0,0] op_sel_hi:[0,1]")
            A(f"v_pk_fma_f32 {v(dst,2)}, {v(a_,2)}, {v(b_,2)}, {v(dst,2)} op_sel:[1,1,0] op_sel_hi:[1,0,1] neg_lo:[0,1,0]")
        def put(row, src, conj=False):
            o = 252 + (wsel[0] & 3); wsel[0] += 1
            A(f"v_cvt_pk_bf16_f32 v{o}, v{src}, {'-' if conj else ''}v{src+1}")
            A((f"ds_write_b32 v233, v{o} offset:{row*ROWP}", ("uv", 0)))
        def run(chains):
            live = list(chains)
            while live:
                for c in list(live):
                    try: it = next(c)
                    except StopIteration: live.remove(c); continue
                    if it[0] == "c": cmul(it[1], it[2], it[3])
                    elif it[0] == "p": put(it[1], it[2], it[3])
                    else: A(f"v_mov_b32 v{it[1]}, 1.0"); A(f"v_mov_b32 v{it[1]+1}, 0")
        for pas in range(2):
            zb = 224 + 4*pas; C2 = zb + 2
            for grp in range(2):
                T = 208
                for ii in range(4):
                    i = 4*grp + ii; lg = int(math.log2(ps[i]))
                    if lg:
                        A(f"v_ldexp_f32 v{T+3*ii}, v{zb}, {lg}"); A(f"v_ldexp_f32 v{T+3*ii+1}, v{zb+1}, {lg}")
                    else:
                        A(f"v_mov_b32 v{T+3*ii}, v{zb}"); A(f"v_mov_b32 v{T+3*ii+1}, v{zb+1}")
                for ii in range(4): A(f"v_fract_f32 v{T+3*ii+1}, v{T+3*ii+1}")
                for ii in range(4): A(f"v_exp_f32 v{T+3*ii}, v{T+3*ii}")
                for ii in range(4): A(f"v_sin_f32 v{T+3*ii+2}, v{T+3*ii+1}")
                for ii in range(4): A(f"v_cos_f32 v{T+3*ii+1}, v{T+3*ii+1}")
                for ii in range(4):
                    p = ps[4*grp+ii]
                    A(f"v_mul_f32 v{EREG[p]}, v{T+3*ii}, v{T+3*ii+1}"); A(f"v_mul_f32 v{EREG[p]+1}, v{T+3*ii}, v{T+3*ii+2}")
            def chain_seg0():
                cur = C2; regs = [208, 210]
                for i in range(8):
                    if i > 0:
                        nxt = regs[i & 1]; yield ("c", nxt, cur, EREG[1]); cur = nxt
                    yield ("p", i, cur, False)
                    yield ("c", 212 + 2*(i & 1), cur, EREG[128]); yield ("p", 8+i, 212 + 2*(i & 1), False)
            def chain_v():
                yield ("m", 216); yield ("p", 41, 216, True); yield ("p", 42, EREG[8], True)
                cur = EREG[8]
                for j in range(2, 16):
                    nxt = 216 if cur != 216 else 218; yield ("c", nxt, cur, EREG[8]); cur = nxt
                    yield ("p", 41+j, cur, True)
            def chain_seg12():
                yield ("c", 208, C2, EREG[256]); cur = 208; regs = [210, 212]
                for i in range(4):
                    if i > 0:
                        nxt = regs[i & 1]; yield ("c", nxt, cur, EREG[2]); cur = nxt
                    yield ("p", 16+i, cur, False)
                    yield ("c", 214 + 2*(i & 1), cur, EREG[128]); yield ("p", 20+i, 214 + 2*(i & 1), False)
                yield ("c", 208, C2, EREG[512]); yield ("c", 210, 208, EREG[4])
                c0_, c1_ = 208, 210
                for i in range(4):
                    yield ("p", 24+2*i, c0_, False); yield ("p", 25+2*i, c1_, False)
                    if i < 3:
                        n0 = 212 if c0_ != 212 else 208; n1 = 214 if c1_ != 214 else 210
                        yield ("c", n0, c0_, EREG[128]); yield ("c", n1, c1_, EREG[128]); c0_, c1_ = n0, n1
            def chain_seg3():
                yield ("c", 218, C2, EREG[1024]); cur = 218
                for i in range(9):
                    yield ("p", 32+i, cur, False)
                    if i < 8:
                        nxt = 220 if cur == 218 else 218; yield ("c", nxt, cur, EREG[128]); cur = nxt
            run([chain_seg0(), chain_v()]); run([chain_seg12(), chain_seg3()])
            A(("WAITDS", ("uv", 0)))
            for s_ in range(4): A((f"ds_read_b128 {v(192+4*s_,4)}, v248 offset:{41*ROWP + 64*s_}", ("kb", pas)))
            for tile in range(3):
                for s_ in range(4): A((f"ds_read_b128 {v(208+4*s_,4)}, v248 offset:{tile*16*ROWP + 64*s_}", ("ka", pas, tile)))
                A(("WAITDS", ("ka", pas, tile)))
                for s_ in range(4):
                    c = "0" if (s_ == 0 and pas == 0) else v(KD+4*tile,4)
                    A(f"v_mfma_f32_16x16x32_bf16 {v(KD+4*tile,4)}, {v(208+4*s_,4)}, {v(192+4*s_,4)}, {c}")
        TB = 8192; T1 = TB + 512; T2 = T1 + 256; T3 = T2 + 256
        j_, g_ = 246, 247
        A(f"v_lshrrev_b32 v192, 1, v{g_}"); A("v_lshlrev_b32 v192, 8, v192"); A(f"v_lshl_add_u32 v192, v{j_}, 4, v192")
        A(f"v_and_b32 v193, 1, v{g_}"); A("v_lshl_add_u32 v192, v193, 3, v192"); A("v_add_u32 v192, s26, v192")
        A(f"v_cvt_pk_bf16_f32 v194, v{KD}, v{KD+1}"); A(f"v_cvt_pk_bf16_f32 v195, v{KD+2}, v{KD+3}")
        A((f"ds_write_b64 v192, v[194:195] offset:{TB}", ("tb", 0)))
        A(f"v_lshlrev_b32 v196, 7, v{g_}"); A(f"v_lshl_add_u32 v197, v{j_}, 3, v196"); A(f"v_lshl_add_u32 v196, v{j_}, 2, v196")
        A(f"v_cmp_gt_u32 vcc, 2, v{g_}"); A("v_cndmask_b32 v196, v196, v197, vcc")
        A("v_mov_b32 v198, 64"); A("v_mov_b32 v199, 4"); A("v_cndmask_b32 v197, v198, v199, vcc")
        A("v_add_u32 v196, s26, v196"); A("v_add_u32 v197, v196, v197")
        A(f"v_cvt_pk_bf16_f32 v198, v{KD+4}, v{KD+5}"); A(f"v_cvt_pk_bf16_f32 v199, v{KD+6}, v{KD+7}")
        A((f"ds_write_b32 v196, v198 offset:{T1}", ("tb", 0))); A((f"ds_write_b32 v197, v199 offset:{T1}", ("tb", 0)))
        A(f"v_lshlrev_b32 v200, 7, v{g_}"); A(f"v_lshl_add_u32 v200, v{j_}, 1, v200"); A("v_add_u32 v200, s26, v200")
        A(f"v_min_u32 v201, 2, v{g_}"); A("v_lshlrev_b32 v201, 7, v201"); A(f"v_lshl_add_u32 v201, v{j_}, 1, v201"); A("v_add_u32 v201, s26, v201")
        A(f"v_cmp_eq_u32 vcc, 3, v{g_}"); A("v_add_u32 v202, 0x60, v201"); A("v_cndmask_b32 v202, v200, v202, vcc")
        A(f"v_cvt_pk_bf16_f32 v204, v{KD+8}, v{KD+9}"); A(f"v_cvt_pk_bf16_f32 v205, v{KD+10}, v{KD+11}")
        A((f"ds_write_b16 v202, v204 offset:{T3}", ("tb", 0))); A((f"ds_write_b16_d16_hi v201, v204 offset:{T3+32}", ("tb", 0)))
        A((f"ds_write_b16 v201, v205 offset:{T3+64}", ("tb", 0))); A((f"ds_write_b16_d16_hi v201, v205 offset:{T3+96}", ("tb", 0)))
        A("s_mov_b32 s42, 0x01000100"); A("s_mov_b32 s43, 0x05040100")
        A("v_lshlrev_b32 v206, 2, v0"); A("v_add_u32 v206, s26, v206")
        A("v_lshlrev_b32 v207, 3, v0"); A("v_add_u32 v207, s26, v207")
        A(("WAITDS", ("tb", 0)))
        for sg_, base in ((1, T1), (2, T2), (3, T3)):
            r0 = 208 + 4*(sg_-1)
            for q in range(3): A((f"ds_read_u16 v{r0+q}, v206 offset:{base+2*q}", ("x", 0)))
        A((f"ds_read_b64 v[220:221], v207 offset:{TB}", ("x", 0)))
        A("v_lshlrev_b32 v222, 4, v0"); A("v_add_u32 v222, s26, v222"); A("v_lshlrev_b32 v223, 5, v0"); A("v_add_u32 v223, s26, v223")
        A("v_mov_b32 v234, 0"); A("v_mov_b32 v235, 0"); A("v_min_u32 v236, 7, v0"); A("v_lshlrev_b32 v236, 3, v236"); A("v_add_u32 v236, s26, v236")
        A(("ds_write_b64 v236, v[234:235]", ("c0", 0)))
        A(("WAITDS", ("x", 0)))
        A((f"ds_write_b64 v207, v[220:221] offset:64", ("c0", 0)))
        A("v_perm_b32 v238, v208, v208, s42"); A("v_perm_b32 v239, v210, v209, s43")
        A((f"ds_write_b64 v207, v[238:239] offset:{64+512}", ("c0", 0)))
        A("v_perm_b32 v240, v212, v212, s42"); A("v_perm_b32 v241, v213, v212, s43"); A("v_perm_b32 v242, v213, v213, s42"); A("v_perm_b32 v243, v214, v214, s42")
        A((f"ds_write_b128 v222, v[240:243] offset:{64+1024}", ("c0", 0)))
        A("v_perm_b32 v192, v216, v216, s42"); A("v_mov_b32 v193, v192"); A("v_perm_b32 v194, v217, v216, s43"); A("v_perm_b32 v195, v217, v217, s42")
        A("v_mov_b32 v196, v195"); A("v_mov_b32 v197, v195"); A("v_perm_b32 v198, v218, v218, s42"); A("v_mov_b32 v199, v198")
        A((f"ds_write_b128 v223, v[192:195] offset:{64+2048}", ("c0", 0))); A((f"ds_write_b128 v223, v[196:199] offset:{64+2048+16}", ("c0", 0)))
        A(("WAITDS", ("c0", 0)))
        for i in range(5): A((f"ds_read_b128 {v(200+4*i,4)}, v222 offset:{1024*i}", ("ko", 0)))
        A("v_lshlrev_b32 v236, 4, v0")
        A(("WAITDS", ("ko", 0)))
        for i in range(5):
            if i == 4: A("s_add_u32 s29, s29, 4096")
            off = f" offset:{1024*i}" if 0 < i < 4 else ""
            A((f"buffer_store_dwordx4 {v(200+4*i,4)}, v236, s[16:19], s29 offen{off} {side_flags}".rstrip(), ("st", 0)))
        return [x for x in l if x is not None]
    epi_q = []
    if profile and fine < 0: stamp()
    barrier_for(0)
    if profile and fine < 0: stamp()
    for si in (0, 1):
        for t_, tag in reads_for(si): e(t_, tag=tag)
    nsteps = len(steps)
    gapctr = 0
    budget_n = budget
    now_q = []
    xt_late = []
    dma_credit = [0.0]
    def cost(it):
        t = it[0] if isinstance(it, tuple) else it
        op = t.split()[0]
        if op.startswith(("v_exp", "v_rcp")): return 2
        if op.startswith("buffer_"): return 2
        if op.startswith("ds_write"): return 2
        return 1
    for si in range(nsteps):
        pi, q, sg, ks = steps[si]
        if profile and fine >= 0 and sg == fine and q == 0 and len(stamps) < 11: stamp()
        if sg == 0 and ks == 0:
            j_ = xt_jobs(0); nr_ = sum(1 for x in j_ if isinstance(x, tuple) and x[0].startswith("ds_read")); now_q += j_[:nr_]; xt_late += j_[nr_:]
        if sg == 0 and ks == 3:
            j_ = xt_jobs(1); nr_ = sum(1 for x in j_ if isinstance(x, tuple) and x[0].startswith("ds_read")); now_q += j_[:nr_]; xt_late += j_[nr_:]
        if sg == 0 and ks == xt_at: epi_q += xt_late
        if sg == 0 and ks == 5 and kgen: epi_q += kgen_jobs()
        if sg == 5 and ks == 11: epi_q += gate_jobs()
        if ks == 0 and sg >= 1:
            if profile and fine < 0 and sg in (1, 4, 5, 6): stamp()
            assert not epi_q, f"epilogue not drained at stage {sg}"
            if "noepi" not in abl:
                if sg <= 4:
                    for a_ in range(2):
                        for b in range(2): epi_q += epi_tile((sg-1) & 1, a_, b, sg-1)
                elif sg == 5:
                    epi_q += gate_loads()
                    for b in range(2): epi_q += epi_tile(0, 0, b, 4)
                else:
                    epi_q += epi2(sg-6)
        e.wait(ds=[("rd", si)])
        mf = []
        if sg < 4:
            buf = sg & 1
            for a_ in range(2):
                for b in range(2):
                    c = "0" if ks == 0 else v(ACC(buf,a_,b),16)
                    mf.append(f"v_mfma_f32_32x32x16_bf16 {v(ACC(buf,a_,b),16)}, {v(AF(si%3,a_),4)}, {XF(ks,b)}, {c}")
        elif sg == 4:
            for b in range(2):
                c = "0" if ks == 0 else v(ACC(0,0,b),16)
                mf.append(f"v_mfma_f32_32x32x16_bf16 {v(ACC(0,0,b),16)}, {v(AF(si%3,0),4)}, {XF(ks,b)}, {c}")
        else:
            buf = (sg-5) & 1
            for a_ in range(chunks[sg-5]):
                for b in range(2):
                    c = "0" if ks == 0 else v(ACC2(buf,a_,b),16)
                    mf.append(f"v_mfma_f32_32x32x16_bf16 {v(ACC2(buf,a_,b),16)}, {a(AF2(si%3,a_),4)}, {HF(ks,b)}, {c}")
        ng = len(mf)
        do_bar = si + 2 < nsteps and steps[si+2][1] == 0
        rds = reads_for(si+2) if (si + 2 < nsteps and "nords" not in abl) else []
        nk_stage = 36 if sg <= 4 else 18
        if sg == 5: rem = max(1, 11 - ks) if ks < 11 else max(1, 17 - ks)
        else: rem = max(1, nk_stage - ks - 3)
        want = -(-sum(cost(x) for x in epi_q) // rem) if epi_q else 0
        ev = ev0 if sg == 0 else (ev1 if sg < 4 else (evh if sg == 4 else ev2))
        budget = budget0 if sg == 0 else budget_n
        for gi in range(ng):
            e(mf[gi])
            used = 0
            if gi == ng-1: used += 1
            if gi == 0 and do_bar:
                barrier_for(steps[si+2][0]); used += budget
                gapctr += 1
                if ng > 2: continue
            if now_q and gi >= 1:
                emit_list(now_q); now_q.clear(); used += budget
            left_g = ng - gi
            nrd = min(len(rds), max(rd_per_gap, -(-len(rds) // left_g)))
            if gi == ng-1: nrd = len(rds)
            for it in rds[:nrd]: used += cost(it)
            emit_list(rds[:nrd]); rds = rds[nrd:]
            gapctr += 1
            npend = sum(1 for x in dma_q if is_dma(x))
            evv = ev if npend <= 8 else max(1, ev // 2)
            dma_credit[0] += 1.0 / evv
            if dma_q and dma_credit[0] >= 1.0 and (used + 3 <= budget or dma_credit[0] >= 2.0):
                lst = pop_dma(1); dma_credit[0] -= 1.0
                for it in lst: used += cost(it)
                emit_list(lst)
            if not dma_q: dma_credit[0] = min(dma_credit[0], 1.0)
            while epi_q and want > 0:
                c = cost(epi_q[0])
                must = (gi == ng-1)
                if used + c > budget and not must: break
                used += c; want -= c
                emit_list([epi_q.pop(0)])
        assert not rds
    if profile and fine < 0: stamp()
    assert not dma_q or "nodma" in abl
    emit_list(epi_q)
    if "noepi" not in abl: emit_list(epi2(len(chunks)-1))
    if profile:
        if fine < 0: stamp()
        e("s_waitcnt vmcnt(0)")
        while len(stamps) < 12: stamp()
        e("s_memrealtime s[42:43]"); e("s_waitcnt lgkmcnt(0)")
        if dbg:
            Ls = k.label("nodbg")
            e(f"s_cmp_lg_u32 s2, {dbg-1}"); e(f"s_cbranch_scc1 {Ls}"); e("s_cmp_lg_u32 s20, 0"); e(f"s_cbranch_scc1 {Ls}")
            e("s_load_dwordx2 s[34:35], s[0:1], 104"); e("s_waitcnt lgkmcnt(0)")
            srd(e, 16, 34, 256)
            e("s_mov_b32 s53, 0")
        else:
            e("s_add_u32 s34, s34, 0xC800000"); e("s_addc_u32 s35, s35, 0")
            srd(e, 16, 34, 1<<20)
            e("s_lshl_b32 s53, s2, 2"); e("s_add_u32 s53, s53, s20"); e("s_lshl_b32 s53, s53, 6")
        for i, r in enumerate(stamps[1:]):
            e(f"s_sub_u32 s54, s{r}, s{stamps[0]}")
            e("v_mov_b32 v1, s54"); e(f"v_mov_b32 v2, {4*i}")
            e("buffer_store_dword v1, v2, s[16:19], s53 offen")
        e("s_sub_u32 s54, s42, s99"); e("v_mov_b32 v1, s54"); e("v_mov_b32 v2, 60")
        e("buffer_store_dword v1, v2, s[16:19], s53 offen")
        e("v_mov_b32 v1, s99"); e("v_mov_b32 v2, 56")
        e("buffer_store_dword v1, v2, s[16:19], s53 offen")
        if dbg: e.raw(f"{Ls}:")
    e.raw(f"{Lend}:")
    e.raw("s_endpgm")
    print(f"F1: {e.count} instrs, nops inserted {e.nops_inserted}, stamps {len(stamps)}", file=sys.stderr)
    return k

if __name__ == "__main__":
    abl = [x for x in sys.argv[2:] if x.startswith("no")]
    kw = {}
    for x in sys.argv[2:]:
        if "=" in x:
            a_, b_ = x.split("="); kw[a_] = int(b_) if b_.lstrip("-").isdigit() else b_
    k = gen_f1(profile=("prof" in sys.argv[2:]), abl=abl, **kw)
    open(sys.argv[1], "w").write(build([k]))
```
